```python
import torch

def _softmax(x, axis=-1):
    return torch.softmax(x, dim=axis)

def _gelu(x):
    return torch.nn.functional.gelu(x, approximate='tanh')

def _silu(x):
    return torch.nn.functional.silu(x)

def _sigmoid(x):
    return torch.sigmoid(x)

def _layernorm(x, axis=-1, eps=1e-05):
    m = x.mean(dim=axis, keepdim=True)
    v = x.var(dim=axis, keepdim=True, unbiased=False)
    return (x - m) / torch.sqrt(v + eps)

def _scatter_add(tgt, idx, src, axis=0):
    return tgt.clone().index_add_(axis, idx, src)

def _segment_sum(src, seg, n):
    out = torch.zeros((n,) + src.shape[1:], dtype=src.dtype)
    return out.index_add_(0, seg, src)

def _pad(x, pw):
    flat = tuple((v for pair in reversed(pw) for v in pair))
    return torch.nn.functional.pad(x, flat)
kernel_name = 'adaLN_cond__ssm_conv_s4__mixer_gmlp__prompt'

def setup_inputs():

    _w = lambda a: (lambda t: t.to(torch.bfloat16) if t.is_floating_point() else t)(torch.as_tensor(a))

    def _A_setup():
        B, L, D, N = (1, 2048, 640, 128)
        A_re = -(lambda _x: torch.exp(torch.as_tensor(_x)))((lambda *s: torch.randn(*s, dtype=torch.bfloat16) * 3.2)(D, N))
        A_im = torch.pi * (lambda *s: torch.randn(*s, dtype=torch.bfloat16) * 0.1)(D, N)
        B_re = (lambda *s: torch.randn(*s, dtype=torch.bfloat16) * 0.2)(D, N)
        B_im = (lambda *s: torch.randn(*s, dtype=torch.bfloat16) * 0.2)(D, N)
        C_re = (lambda *s: torch.randn(*s, dtype=torch.bfloat16) * 0.2)(D, N)
        C_im = (lambda *s: torch.randn(*s, dtype=torch.bfloat16) * 0.2)(D, N)
        log_dt = (lambda *s: torch.randn(*s, dtype=torch.bfloat16) * 0.1)(D) * 0.5 - 4.0
        Dskip = (lambda *s: torch.randn(*s, dtype=torch.bfloat16) * 0.1)(D)
        return {'u': _w((lambda *s: torch.randn(*s, dtype=torch.bfloat16) * 0.05)(B, L, D)), 'A_re': _w(A_re), 'A_im': _w(A_im), 'B_re': _w(B_re), 'B_im': _w(B_im), 'C_re': _w(C_re), 'C_im': _w(C_im), 'log_dt': _w(log_dt), 'Dskip': _w(Dskip)}
    _A_in = _A_setup()

    def _B_setup():
        B, S, D, F = (1, 2048, 640, 1728)
        Fh = F // 2
        return {'x': _w((lambda *s: torch.randn(*s, dtype=torch.bfloat16) * 0.05)(B, S, D)), 'w_in': _w((lambda *s: torch.randn(*s, dtype=torch.bfloat16) * 0.2)(D, 2 * Fh)), 'w_sp': _w(0.01 * (lambda *s: torch.randn(*s, dtype=torch.bfloat16) * 0.2)(S, S)), 'b_sp': _w(1.0 + 0.01 * (lambda *s: torch.randn(*s, dtype=torch.bfloat16) * 0.05)(S)), 'w_out': _w((lambda *s: torch.randn(*s, dtype=torch.bfloat16) * 0.05)(Fh, D))}
    _B_in = _B_setup()
    return {'A_u': _A_in['u'], 'A_A_re': _A_in['A_re'], 'A_A_im': _A_in['A_im'], 'A_B_re': _A_in['B_re'], 'A_B_im': _A_in['B_im'], 'A_C_re': _A_in['C_re'], 'A_C_im': _A_in['C_im'], 'A_log_dt': _A_in['log_dt'], 'A_Dskip': _A_in['Dskip'], 'B_x': _B_in['x'], 'B_w_in': _B_in['w_in'], 'B_w_sp': _B_in['w_sp'], 'B_b_sp': _B_in['b_sp'], 'B_w_out': _B_in['w_out'], 'c': _w((lambda *s: torch.randn(*s, dtype=torch.bfloat16) * 0.1)(1, 640) * 8.0), 'w_mod': _w((lambda *s: torch.randn(*s, dtype=torch.bfloat16) * 0.1)(640, 6 * 640) * 640 ** (-0.5) * 8.0)}

def reference(A_u, A_A_re, A_A_im, A_B_re, A_B_im, A_C_re, A_C_im, A_log_dt, A_Dskip, B_x, B_w_in, B_w_sp, B_b_sp, B_w_out, c, w_mod):

    def _A_ref(u, A_re, A_im, B_re, B_im, C_re, C_im, log_dt, Dskip):
        Bsz, L, D = u.shape
        dt = torch.exp(log_dt)[:, None]
        A = A_re + 1j * A_im
        Bc = B_re + 1j * B_im
        Cc = C_re + 1j * C_im
        logdA = dt * A
        dB = dt * Bc
        l = (lambda x, dt: x.to(dt))(torch.arange(L), A_re.dtype)
        P = torch.exp(logdA[:, :, None] * l[None, None, :])
        K = torch.einsum('dn,dnl,dn->dl', Cc, P, dB).real
        L2 = 2 * L
        Kp = _pad(K, ((0, 0), (0, L)))
        up = (lambda x, *d: x.permute(*d))(u, 0, 2, 1)
        up = _pad(up, ((0, 0), (0, 0), (0, L)))
        Kf = (lambda x, axes=(-2, -1): torch.fft.rfft2(x.float(), dim=axes))(Kp[:, None, :], axes=(-2, -1))
        Uf = (lambda x, axes=(-2, -1): torch.fft.rfft2(x.float(), dim=axes))(up[:, :, None, :], axes=(-2, -1))
        Yf = Uf * Kf[None, :, :, :]
        y = (lambda x, s, axes=(-2, -1): torch.fft.irfft2(x, s=s, dim=axes).to(torch.bfloat16))(Yf, (1, L2), axes=(-2, -1))[:, :, 0, :L]
        y = (lambda x, *d: x.permute(*d))(y, 0, 2, 1) + u * Dskip[None, None, :]
        return y

    def _B_ref(x, w_in, w_sp, b_sp, w_out):
        B, S, D = x.shape
        F = w_in.shape[-1]
        Fh = F // 2
        z = _gelu(torch.einsum('bsd,df->bsf', x, w_in))
        z1 = z[..., :Fh].clone()
        z2 = _layernorm(z[..., Fh:], axis=-1)
        g = torch.einsum('ts,bsf->btf', w_sp, z2) + b_sp[None, :, None]
        return torch.einsum('bsf,fd->bsd', z1 * g, w_out)
    x = A_u
    mod = (_silu(c) @ w_mod).reshape(c.shape[0], 6, 1, -1)
    sa, ca, ga, sb, cb, gb = (mod[:, 0].clone(), mod[:, 1].clone(), mod[:, 2].clone(), mod[:, 3].clone(), mod[:, 4].clone(), mod[:, 5].clone())
    h = _layernorm(x, axis=-1) * (1 + ca) + sa
    x = x + ga * _A_ref(h, A_A_re, A_A_im, A_B_re, A_B_im, A_C_re, A_C_im, A_log_dt, A_Dskip)
    h = _layernorm(x, axis=-1) * (1 + cb) + sb
    x = x + gb * _B_ref(h, B_w_in, B_w_sp, B_b_sp, B_w_out)
    return x
```

```python
import re

REG_RE = re.compile(r'\b([vas])(\d+)\b|\b([vas])\[(\d+):(\d+)\]|\b(vcc|exec|m0|scc)\b')

TRANS = ('v_exp_f32', 'v_log_f32', 'v_rcp_f32', 'v_rsq_f32', 'v_sqrt_f32', 'v_sin_f32', 'v_cos_f32',
         'v_rcp_iflag_f32', 'v_exp_f16', 'v_log_f16', 'v_rcp_f16', 'v_rsq_f16', 'v_sqrt_f16')


def regs_of(tok):
    out = []
    for m in REG_RE.finditer(tok):
        if m.group(1):
            out.append((m.group(1), int(m.group(2))))
        elif m.group(3):
            for i in range(int(m.group(4)), int(m.group(5)) + 1):
                out.append((m.group(3), i))
        else:
            n = m.group(6)
            if n == 'vcc':
                out += [('vcc', 0)]
            elif n == 'exec':
                out += [('exec', 0)]
            else:
                out += [(n, 0)]
    return out


def split_ops(s):
    ops, depth, cur = [], 0, ''
    for ch in s:
        if ch == '[':
            depth += 1
        elif ch == ']':
            depth -= 1
        if ch == ',' and depth == 0:
            ops.append(cur.strip())
            cur = ''
        else:
            cur += ch
    if cur.strip():
        ops.append(cur.strip())
    return ops


class Inst:
    __slots__ = ('text', 'mn', 'reads', 'writes', 'kind', 'passes', 'srcc', 'srcab', 'dpp', 'is_label', 'label',
                 'target', 'nops', 'sdata', 'opsel', 'lanesel', 'cond')

    def __init__(self, text):
        self.text = text
        t = text.split(';')[0].strip()
        self.is_label = t.endswith(':')
        self.label = t[:-1] if self.is_label else None
        self.reads, self.writes = [], []
        self.kind = 'other'
        self.passes = 0
        self.srcc, self.srcab, self.sdata, self.lanesel = [], [], [], []
        self.dpp = False
        self.opsel = False
        self.target = None
        self.cond = False
        self.nops = 1
        self.mn = ''
        if self.is_label or not t or t.startswith('.'):
            self.kind = 'none'
            self.nops = 0
            return
        parts = t.split(None, 1)
        mn = parts[0]
        self.mn = mn
        rest = parts[1] if len(parts) > 1 else ''
        ops = split_ops(rest)
        R = lambda i: regs_of(ops[i]) if i < len(ops) else []
        allr = lambda a: [r for o in ops[a:] for r in regs_of(o.split(' ')[0] if False else o)]
        if mn == 's_nop':
            self.kind = 'nop'
            self.nops = int(ops[0], 0) + 1
        elif mn in ('s_branch',) or mn.startswith('s_cbranch'):
            self.kind = 'branch'
            self.target = ops[0]
            self.cond = mn != 's_branch'
            if 'vcc' in mn:
                self.reads = [('vcc', 0)]
        elif mn == 's_endpgm':
            self.kind = 'end'
        elif mn.startswith('v_mfma'):
            self.kind = 'mfma'
            self.writes = R(0)
            self.srcab = R(1) + R(2)
            self.srcc = regs_of(ops[3].split(' ')[0])
            self.reads = self.srcab + self.srcc
            if '16x16x32' in mn or '16x16x16' in mn:
                self.passes = 4
            elif '32x32x16' in mn or '32x32x8' in mn:
                self.passes = 8
            else:
                raise ValueError('unknown mfma ' + mn)
        elif mn.startswith('v_'):
            self.kind = 'valu'
            if mn.replace('_e32', '').replace('_e64', '') in TRANS:
                self.kind = 'trans'
            self.dpp = '_dpp' in mn or 'row_' in rest or 'quad_perm' in rest or 'wave_' in rest
            self.opsel = '_sdwa' in mn or ('op_sel' in rest and not mn.startswith('v_pk_'))
            if mn.startswith('v_cmp'):
                self.writes = R(0)
                self.reads = allr(1)
                if mn.startswith('v_cmpx'):
                    raise ValueError('v_cmpx not supported by hazard pass')
            elif mn.startswith('v_readfirstlane') or mn.startswith('v_readlane'):
                self.kind = 'readlane'
                self.writes = R(0)
                self.reads = allr(1)
                self.lanesel = R(2)
            elif mn.startswith('v_writelane'):
                self.writes = R(0)
                self.reads = allr(1) + R(0)
                self.lanesel = R(2)
            elif mn.startswith('v_permlane') or mn.startswith('v_swap'):
                self.kind = 'permlane'
                self.writes = R(0) + R(1)
                self.reads = R(0) + R(1)
            elif re.match(r'v_(add|sub|subrev)_co_u32|v_(addc|subb|subbrev)_co_u32|v_mad_u64_u32|v_div_scale', mn):
                self.writes = R(0) + R(1)
                self.reads = allr(2)
            else:
                self.writes = R(0)
                self.reads = allr(1)
                if re.match(r'v_(fmac|pk_fmac|dot2c|mac|fmamk|dot4c)', mn) or self.dpp or '_sdwa' in mn:
                    self.reads = self.reads + R(0)
        elif mn.startswith('buffer_') or mn.startswith('global_') or mn.startswith('flat_'):
            self.kind = 'vmem'
            isl = ' lds' in (' ' + rest) or 'load_lds' in mn
            if mn in ('buffer_inv', 'buffer_wbl2'):
                pass
            elif 'load' in mn and not isl:
                self.writes = R(0)
                self.reads = allr(1)
                if 'd16' in mn:
                    self.reads = self.reads + R(0)
            elif isl:
                self.reads = allr(0) + [('m0', 0)]
                self.kind = 'ldsdma'
            elif 'store' in mn:
                self.reads = allr(0)
                d = R(0) if mn.startswith('buffer_') else R(1)
                if 'x3' in mn or 'x4' in mn:
                    self.sdata = d
            elif 'atomic' in mn:
                self.reads = allr(0)
                if 'sc0' in rest:
                    self.writes = R(0)
            else:
                raise ValueError('unknown vmem ' + text)
        elif mn.startswith('ds_'):
            self.kind = 'ds'
            if mn.startswith('ds_read') or mn.startswith('ds_bpermute') or mn.startswith('ds_permute') or mn.startswith('ds_swizzle'):
                self.writes = R(0)
                self.reads = allr(1)
                if 'd16' in mn:
                    self.reads = self.reads + R(0)
            else:
                self.reads = allr(0)
        elif mn.startswith('s_'):
            self.kind = 'salu'
            if mn.startswith('s_cmp') or mn in ('s_waitcnt', 's_barrier', 's_sleep', 's_setprio', 's_bitcmp0_b32', 's_bitcmp1_b32'):
                self.reads = allr(0)
            elif mn.startswith('s_load') or mn.startswith('s_buffer_load') or mn.startswith('s_memtime') or mn.startswith('s_memrealtime'):
                self.kind = 'smem'
                self.writes = R(0)
                self.reads = allr(1)
            elif 'saveexec' in mn:
                self.writes = R(0) + [('exec', 0)]
                self.reads = allr(1) + [('exec', 0)]
            else:
                self.writes = R(0)
                self.reads = allr(1)
        else:
            raise ValueError('unknown instr: ' + text)


BIG = 64


def required_gap(hist, ins):
    need = 0

    def chk(key, req):
        nonlocal need
        a = hist.get(key)
        if a is not None and a < req:
            need = max(need, req - a)

    k = ins.kind
    isvalu = k in ('valu', 'trans', 'readlane', 'permlane')
    vr = [r for r in ins.reads if r[0] in 'va']
    vw = [r for r in ins.writes if r[0] in 'va']
    sr = [r for r in ins.reads if r[0] in ('s', 'vcc')]
    if k == 'mfma':
        for r in ins.reads:
            chk(('valu_w', r), 2)
        for r in ins.srcab:
            chk(('mfma4_w', r), 8)
            chk(('mfma8_w', r), 12)
        sig = (ins.passes, tuple(ins.srcc))
        for r in ins.srcc:
            for p, req in ((4, 6), (8, 10)):
                a = hist.get(('mfma%d_w' % p, r))
                if a is not None and a < req:
                    if hist.get(('mfma_sig', r)) == sig and a is not None:
                        continue
                    need = max(need, req - a)
        chk(('valu_exec', 0), 4)
    if isvalu or k in ('vmem', 'ds', 'ldsdma'):
        for r in vr:
            chk(('mfma4_w', r), 8)
            chk(('mfma8_w', r), 12)
        for r in vw:
            chk(('mfma4_w', r), 8)
            chk(('mfma8_w', r), 12)
    if isvalu:
        for r in vw:
            chk(('mfma4_c', r), 3)
            chk(('mfma8_c', r), 7)
            chk(('store_d', r), 2)
        if k != 'trans':
            for r in vr:
                chk(('trans_w', r), 1)
        for r in vr + vw:
            chk(('opsel_w', r), 1)
        for r in sr:
            chk(('valu_sw', r), 2)
        for r in ins.lanesel:
            chk(('valu_sw', r), 4)
        if ins.dpp:
            for r in vr:
                chk(('valu_w', r), 2)
        if k == 'permlane':
            for r in vr:
                chk(('valu_w', r), 2)
        if k == 'readlane':
            for r in vr:
                chk(('valu_w', r), 1)
    if k in ('vmem', 'ds', 'ldsdma'):
        for r in vw:
            chk(('store_d', r), 1)
    if k in ('vmem', 'ldsdma'):
        for r in sr:
            chk(('valu_sw', r), 5)
    if k == 'ldsdma':
        chk(('salu_m0', 0), 1)
    if k in ('salu', 'smem', 'branch'):
        for r in sr:
            chk(('valu_sw', r), 1)
    return need


def step(hist, ins):
    n = ins.nops
    h = {}
    for key, a in hist.items():
        if key[0] == 'mfma_sig':
            h[key] = a
            continue
        a2 = a + n
        if a2 < 24:
            h[key] = a2
    k = ins.kind
    isvalu = k in ('valu', 'trans', 'readlane', 'permlane')
    if isvalu:
        for r in ins.writes:
            if r[0] in 'va':
                h[('valu_w', r)] = 0
                h.pop(('mfma_sig', r), None)
                if k == 'trans':
                    h[('trans_w', r)] = 0
                if ins.opsel:
                    h[('opsel_w', r)] = 0
            elif r[0] in ('s', 'vcc'):
                h[('valu_sw', r)] = 0
            elif r[0] == 'exec':
                h[('valu_exec', 0)] = 0
    if k == 'mfma':
        sig = (ins.passes, tuple(ins.writes))
        for r in ins.writes:
            h[('mfma%d_w' % ins.passes, r)] = 0
            h[('mfma_sig', r)] = sig
        for r in ins.srcc:
            h[('mfma%d_c' % ins.passes, r)] = 0
    if ins.sdata:
        for r in ins.sdata:
            h[('store_d', r)] = 0
    if k == 'salu':
        for r in ins.writes:
            if r[0] == 'm0':
                h[('salu_m0', 0)] = 0
            h.pop(('valu_sw', r), None)
    for key in [x for x in h if x[0] == 'mfma_sig']:
        r = key[1]
        if ('mfma4_w', r) not in h and ('mfma8_w', r) not in h:
            del h[key]
    return h


def merge(h1, h2):
    if h1 is None:
        return dict(h2), True
    changed = False
    out = dict(h1)
    for k, v in h2.items():
        if k[0] == 'mfma_sig':
            if k in out and out[k] != v:
                out[k] = None
                changed = True
            elif k not in out:
                out[k] = v
                changed = True
            continue
        if k not in out or v < out[k]:
            out[k] = v
            changed = True
    return out, changed


def fix_hazards(lines):
    insts = [Inst(l) for l in lines]
    for _ in range(50):
        labels = {i.label: n for n, i in enumerate(insts) if i.is_label}
        state = [None] * (len(insts) + 1)
        state[0] = {}
        work = [0]
        while work:
            n = work.pop()
            h = state[n]
            while n < len(insts):
                ins = insts[n]
                if ins.kind == 'end':
                    break
                need = required_gap(h, ins) if ins.kind != 'none' else 0
                hh = h
                if need:
                    hh = {k: (v if k[0] == 'mfma_sig' else v + need) for k, v in h.items()}
                h2 = step(hh, ins) if ins.kind != 'none' else hh
                if ins.kind == 'branch':
                    t = labels[ins.target]
                    m, ch = merge(state[t], h2)
                    if ch:
                        state[t] = m
                        work.append(t)
                    if not ins.cond:
                        break
                nxt = n + 1
                if nxt < len(insts) and insts[nxt].is_label:
                    m, ch = merge(state[nxt], h2)
                    if ch:
                        state[nxt] = m
                        work.append(nxt)
                    break
                state[nxt] = h2
                h = h2
                n = nxt
        out, changed = [], False
        for n, ins in enumerate(insts):
            if ins.kind not in ('none',) and state[n] is not None:
                need = required_gap(state[n], ins)
                while need > 0:
                    k = min(need, 16)
                    out.append(Inst('    s_nop %d' % (k - 1)))
                    need -= k
                    changed = True
            out.append(ins)
        insts = out
        if not changed:
            break
    return [i.text for i in insts]


class Kern:
    def __init__(self, name, grid, block, lds, vgpr=256, agpr=0, sgpr=96):
        self.name, self.grid, self.block, self.lds = name, grid, block, lds
        self.vgpr, self.agpr, self.sgpr = vgpr, agpr, sgpr
        self.L = []
        self._lab = 0

    def __call__(self, s):
        for line in s.strip('\n').split('\n'):
            t = line.strip()
            if not t or t.startswith(';'):
                continue
            if t.endswith(':'):
                self.L.append(t)
            else:
                self.L.append('    ' + t)

    def label(self, base):
        self._lab += 1
        return '%s_%s_%d' % (self.name[:8], base, self._lab)

    def body(self):
        return fix_hazards(self.L)

    def text(self):
        body = self.body()
        maxv = maxa = maxs = -1
        for l in body:
            t = l.split(';')[0]
            for r in regs_of(t):
                if r[0] == 'v':
                    maxv = max(maxv, r[1])
                elif r[0] == 'a':
                    maxa = max(maxa, r[1])
                elif r[0] == 's':
                    maxs = max(maxs, r[1])
        acc_off = max(4, (maxv + 1 + 3) // 4 * 4)
        nfv = acc_off + (maxa + 1) if maxa >= 0 else maxv + 1
        assert maxv < 256 and maxa < 256 and maxs < 102, (maxv, maxa, maxs)
        self.stats = (maxv + 1, maxa + 1, maxs + 1, len(body))
        s = '.globl %s\n.p2align 8\n.type %s,@function\n%s:\n' % (self.name, self.name, self.name)
        s += '\n'.join(body) + '\n'
        kd = '''.amdhsa_kernel %s
  .amdhsa_next_free_vgpr %d
  .amdhsa_next_free_sgpr %d
  .amdhsa_accum_offset %d
  .amdhsa_group_segment_fixed_size 0
  .amdhsa_kernarg_size 152
  .amdhsa_user_sgpr_count 2
  .amdhsa_user_sgpr_kernarg_segment_ptr 1
  .amdhsa_system_sgpr_workgroup_id_x 1
  .amdhsa_float_denorm_mode_32 3
.end_amdhsa_kernel
''' % (self.name, nfv, max(maxs + 1, 16), acc_off)
        return s, kd


def assemble_file(kerns, header):
    out = header
    for k in kerns:
        out += '; @launch kernel=%s grid=(%d,1,1) block=(%d,1,1) lds=%d\n' % (k.name, k.grid, k.block, k.lds)
    out += '.amdgcn_target "amdgcn-amd-amdhsa--gfx950"\n.text\n'
    kds = []
    for k in kerns:
        s, kd = k.text()
        out += s
        kds.append(kd)
    out += '.section .rodata,"a"\n'
    for kd in kds:
        out += '.p2align 6\n' + kd
    return out
```

```python
from asmlib import Kern
from layout import WS, KR_STRIDE
import struct


def f32(x):
    return '0x%08x' % struct.unpack('<I', struct.pack('<f', x))[0]


PTR = {n: 16 + 2 * i for i, n in enumerate(
    ['u', 'Are', 'Aim', 'Bre', 'Bim', 'Cre', 'Cim', 'logdt', 'Dskip', 'Bx', 'win', 'wsp', 'bsp', 'wout', 'c', 'wmod',
     'out', 'dbg', 'ws'])}

LOG2E = 1.4426950408889634
INV2PI = 0.15915494309189535


def load_ptrs(k):
    k('''
    s_load_dwordx16 s[16:31], s[0:1], 0
    s_load_dwordx16 s[32:47], s[0:1], 64
    s_load_dwordx4 s[48:51], s[0:1], 128
    s_load_dwordx2 s[52:53], s[0:1], 144
    ''')


def srd(k, d, ptr, size, off=0):
    p = PTR[ptr]
    if off:
        k(f'''
        s_add_u32 s{d}, s{p}, {off}
        s_addc_u32 s{d+1}, s{p+1}, 0''')
    else:
        k(f'''
        s_mov_b32 s{d}, s{p}
        s_mov_b32 s{d+1}, s{p+1}''')
    k(f'''
    s_mov_b32 s{d+2}, {size}
    s_mov_b32 s{d+3}, 0x00020000''')


def srd_ws(k, d, name):
    off, size = WS[name]
    srd(k, d, 'ws', size, off)


def dpp_sum16(k, v):
    for n in (8, 4, 2, 1):
        k(f'v_add_f32_dpp v{v}, v{v}, v{v} row_ror:{n} row_mask:0xf bank_mask:0xf')


N_LN1, N_MOD, N_WOF, N_KG = 128, 240, 54, 640
K1_LDS = 32768


def role_ln1(k):
    RS = 1344
    srd(k, 56, 'u', 2048 * 1280)
    srd_ws(k, 60, 'XT')
    srd_ws(k, 64, 'XNT')
    k(f'''
    v_and_b32 v1, 15, v0
    v_lshrrev_b32 v2, 4, v0
    s_mul_i32 s3, s2, {16*1280}
    v_mul_u32_u24 v3, 1280, v2
    v_lshl_add_u32 v3, v1, 4, v3
    ''')
    for i in range(5):
        k(f'buffer_load_dwordx4 v[{8+4*i}:{11+4*i}], v3, s[56:59], s3 offen offset:{256*i}')
    k(f'''
    v_mul_u32_u24 v4, {RS}, v2
    v_lshl_add_u32 v4, v1, 4, v4
    v_and_b32 v88, 63, v0            ; lane
    v_lshrrev_b32 v89, 6, v0         ; wave
    v_lshrrev_b32 v90, 4, v88        ; g
    v_bfe_u32 v91, v88, 2, 2         ; rr
    v_and_b32 v92, 3, v88            ; c
    v_lshrrev_b32 v93, 1, v90        ; g>>1
    v_and_b32 v94, 1, v90            ; g&1
    v_lshl_add_u32 v5, v93, 3, v91
    v_mul_u32_u24 v5, {RS}, v5
    v_lshl_add_u32 v5, v94, 5, v5
    v_lshl_add_u32 v5, v92, 3, v5
    v_lshl_add_u32 v5, v89, 6, v5
    v_and_b32 v6, 15, v88            ; i
    v_lshl_add_u32 v6, v94, 4, v6
    v_lshl_add_u32 v6, v89, 5, v6    ; d_local = 32w + 16(g&1) + i
    v_lshlrev_b32 v6, 12, v6
    v_lshl_add_u32 v6, v93, 4, v6
    s_lshl_b32 s4, s2, 5
    ''')
    for it in range(1, 5):
        k(f's_add_u32 s{4+it}, s4, {524288*it}')
    for i in range(5):
        k(f'''s_waitcnt vmcnt({4-i})
        ds_write_b128 v4, v[{8+4*i}:{11+4*i}] offset:{256*i}''')
    k('''
    s_waitcnt lgkmcnt(0)
    s_barrier
    ''')

    def transpose(srdn, base):
        for it in range(5):
            k(f'''
            ds_read_b64_tr_b16 v[{base+4*it}:{base+4*it+1}], v5 offset:{256*it}
            ds_read_b64_tr_b16 v[{base+4*it+2}:{base+4*it+3}], v5 offset:{256*it+4*RS}''')
        for it in range(5):
            k(f'''
            s_waitcnt lgkmcnt({8-2*it})
            buffer_store_dwordx4 v[{base+4*it}:{base+4*it+3}], v6, s[{srdn}:{srdn+3}], s{4+it} offen''')

    transpose(60, 68)
    for j in range(20):
        k(f'''
        v_lshlrev_b32 v{28+2*j}, 16, v{8+j}
        v_and_b32 v{29+2*j}, 0xffff0000, v{8+j}''')
    k('v_pk_add_f32 v[8:9], v[28:29], v[30:31]')
    k('v_pk_add_f32 v[10:11], v[32:33], v[34:35]')
    for j in range(4, 20):
        a = 8 + 2 * (j & 1)
        k(f'v_pk_add_f32 v[{a}:{a+1}], v[{a}:{a+1}], v[{28+2*j}:{29+2*j}]')
    k('''
    v_pk_add_f32 v[8:9], v[8:9], v[10:11]
    v_add_f32 v8, v8, v9''')
    dpp_sum16(k, 8)
    k(f'''
    v_mul_f32 v10, {f32(-1.0/640)}, v8
    v_mov_b32 v11, v10''')
    for j in range(20):
        k(f'v_pk_add_f32 v[{28+2*j}:{29+2*j}], v[{28+2*j}:{29+2*j}], v[10:11]')
    k('v_pk_mul_f32 v[8:9], v[28:29], v[28:29]')
    k('v_pk_mul_f32 v[12:13], v[30:31], v[30:31]')
    for j in range(2, 20):
        a = 8 + 4 * (j & 1)
        k(f'v_pk_fma_f32 v[{a}:{a+1}], v[{28+2*j}:{29+2*j}], v[{28+2*j}:{29+2*j}], v[{a}:{a+1}]')
    k('''
    v_pk_add_f32 v[8:9], v[8:9], v[12:13]
    v_add_f32 v8, v8, v9''')
    dpp_sum16(k, 8)
    k(f'''
    v_mov_b32 v9, {f32(1e-5)}
    v_fmac_f32 v9, {f32(1.0/640)}, v8
    v_rsq_f32 v10, v9
    s_nop 0
    v_mov_b32 v11, v10''')
    for j in range(20):
        k(f'v_pk_mul_f32 v[{28+2*j}:{29+2*j}], v[{28+2*j}:{29+2*j}], v[10:11]')
    for j in range(20):
        k(f'v_cvt_pk_bf16_f32 v{8+j}, v{28+2*j}, v{29+2*j}')
    k('s_barrier')
    for i in range(5):
        k(f'ds_write_b128 v4, v[{8+4*i}:{11+4*i}] offset:{256*i}')
    k('''
    s_waitcnt lgkmcnt(0)
    s_barrier
    ''')
    transpose(64, 28)
    k('s_endpgm')


def role_mod(k):
    srd(k, 56, 'wmod', 640 * 7680)
    srd(k, 60, 'c', 1280)
    srd_ws(k, 64, 'MODP')
    k(f'''
    s_sub_u32 s3, s2, {N_LN1}
    s_mul_i32 s4, s3, 1093
    s_lshr_b32 s4, s4, 16            ; ks
    s_mul_i32 s5, s4, 60
    s_sub_u32 s5, s3, s5             ; cb
    v_and_b32 v1, 7, v0
    v_lshrrev_b32 v2, 3, v0          ; rg
    v_mul_u32_u24 v3, 7680, v2
    v_lshl_add_u32 v3, v1, 4, v3
    s_mul_i32 s6, s4, {160*7680}
    s_lshl_b32 s7, s5, 7
    s_add_u32 s6, s6, s7
    v_lshlrev_b32 v4, 1, v2
    s_mul_i32 s12, s4, 320
    ''')
    for i in range(1, 5):
        k(f's_add_u32 s{6+i}, s6, {32*7680*i}')
    for i in range(5):
        k(f'buffer_load_ushort v{28+i}, v4, s[60:63], s12 offen offset:{64*i}')
    for i in range(5):
        k(f'buffer_load_dwordx4 v[{8+4*i}:{11+4*i}], v3, s[56:59], s{6+i} offen')
    k('s_waitcnt vmcnt(5)')
    for i in range(5):
        c = 28 + i
        k(f'''
        v_lshlrev_b32 v{c}, 16, v{c}
        v_mul_f32 v5, {f32(-LOG2E)}, v{c}
        v_exp_f32 v5, v5
        s_nop 0
        v_add_f32 v5, 1.0, v5
        v_rcp_f32 v5, v5
        s_nop 0
        v_mul_f32 v5, v{c}, v5
        v_cvt_pk_bf16_f32 v5, v5, v5
        v_lshlrev_b32 v{34+2*i}, 16, v5
        v_lshlrev_b32 v{35+2*i}, 16, v5
        ''')
    for i in range(5):
        k(f's_waitcnt vmcnt({4-i})')
        for j in range(4):
            r = 8 + 4 * i + j
            k(f'''
            v_lshlrev_b32 v52, 16, v{r}
            v_and_b32 v53, 0xffff0000, v{r}''')
            if i == 0:
                k(f'v_pk_mul_f32 v[{44+2*j}:{45+2*j}], v[52:53], v[34:35]')
            else:
                k(f'v_pk_fma_f32 v[{44+2*j}:{45+2*j}], v[52:53], v[{34+2*i}:{35+2*i}], v[{44+2*j}:{45+2*j}]')
    for j in range(8):
        k(f'v_add_f32_dpp v{44+j}, v{44+j}, v{44+j} row_ror:8 row_mask:0xf bank_mask:0xf')
    k(f'''
    v_lshrrev_b32 v5, 4, v0
    v_lshlrev_b32 v5, 8, v5
    v_lshl_add_u32 v5, v1, 5, v5
    ds_write_b128 v5, v[44:47]
    ds_write_b128 v5, v[48:51] offset:16
    s_waitcnt lgkmcnt(0)
    s_barrier
    v_cmp_gt_u32 vcc, 64, v0
    s_and_saveexec_b64 s[14:15], vcc
    s_cbranch_execz k1_mod_end
    v_lshlrev_b32 v6, 2, v0
    ''')
    for i in range(16):
        k(f'ds_read_b32 v{8+i}, v6 offset:{256*i}')
    k('s_waitcnt lgkmcnt(0)')
    for s in (8, 4, 2, 1):
        for i in range(s):
            k(f'v_add_f32 v{8+i}, v{8+i}, v{8+i+s}')
    k(f'''
    s_mul_i32 s6, s4, {3840*4}
    s_lshl_b32 s7, s5, 8
    s_add_u32 s6, s6, s7
    buffer_store_dword v8, v6, s[64:67], s6 offen
k1_mod_end:
    s_endpgm
    ''')


def role_wof(k):
    RS = 704
    srd(k, 56, 'wout', 864 * 1280)
    srd_ws(k, 60, 'WOF')
    k(f'''
    s_sub_u32 s3, s2, {N_LN1+N_MOD}
    s_lshr_b32 s4, s3, 1             ; beta
    s_and_b32 s5, s3, 1              ; half
    v_and_b32 v1, 7, v0
    v_lshrrev_b32 v2, 3, v0          ; row 0..31
    v_mul_u32_u24 v3, 1280, v2
    v_lshl_add_u32 v3, v1, 4, v3
    s_mul_i32 s6, s4, {32*1280}
    s_mul_i32 s7, s5, 640
    s_add_u32 s6, s6, s7
    ''')
    for i in range(5):
        k(f'buffer_load_dwordx4 v[{8+4*i}:{11+4*i}], v3, s[56:59], s6 offen offset:{128*i}')
    k(f'''
    v_mul_u32_u24 v4, {RS}, v2
    v_lshl_add_u32 v4, v1, 4, v4
    v_and_b32 v40, 63, v0            ; lane
    v_lshrrev_b32 v41, 6, v0         ; wave
    v_lshrrev_b32 v42, 4, v40        ; kq
    v_bfe_u32 v43, v40, 2, 2         ; rr
    v_and_b32 v44, 3, v40            ; c
    v_lshl_add_u32 v5, v42, 3, v43
    v_mul_u32_u24 v5, {RS}, v5
    v_lshl_add_u32 v5, v44, 4, v5    ; +16c
    v_lshlrev_b32 v6, 4, v40
    v_readfirstlane_b32 s8, v41
    ''')
    for i in range(5):
        k(f'''s_waitcnt vmcnt({4-i})
        ds_write_b128 v4, v[{8+4*i}:{11+4*i}] offset:{128*i}''')
    k(f'''
    s_mul_i32 s8, s8, 5              ; dl0
    s_mul_i32 s9, s4, 40
    s_mul_i32 s10, s5, 20
    s_add_u32 s9, s9, s10
    s_add_u32 s9, s9, s8
    s_lshl_b32 s9, s9, 10
    s_waitcnt lgkmcnt(0)
    s_barrier
    ''')
    for j in range(5):
        k(f'''
        s_add_u32 s10, s8, {j}
        s_lshr_b32 s11, s10, 1
        s_lshl_b32 s11, s11, 6
        s_and_b32 s10, s10, 1
        s_lshl_b32 s10, s10, 3
        s_add_u32 s10, s10, s11
        v_add_u32 v7, s10, v5
        ds_read_b64_tr_b16 v[{8+4*j}:{9+4*j}], v7
        ds_read_b64_tr_b16 v[{10+4*j}:{11+4*j}], v7 offset:{4*RS}
        ''')
    for j in range(5):
        k(f'''
        s_waitcnt lgkmcnt({8-2*j})
        buffer_store_dwordx4 v[{8+4*j}:{11+4*j}], v6, s[60:63], s9 offen offset:{1024*j if j < 4 else 0}''' if j < 4 else f'''
        s_waitcnt lgkmcnt(0)
        s_add_u32 s9, s9, 4096
        buffer_store_dwordx4 v[{8+4*j}:{11+4*j}], v6, s[60:63], s9 offen''')
    k('s_endpgm')


KG_RS = 544
KG_UL = 0
KG_VL = 41 * KG_RS
KG_T = KG_VL + 16 * KG_RS


def role_kgen(k):
    for n, (name) in enumerate(['Are', 'Aim', 'Bre', 'Bim', 'Cre', 'Cim']):
        srd(k, 56 + 4 * n, name, 640 * 256)
    srd(k, 80, 'logdt', 1280)
    srd_ws(k, 84, 'KR')
    k(f'''
    s_sub_u32 s3, s2, {N_LN1+N_MOD+N_WOF}   ; d
    v_and_b32 v1, 127, v0            ; n
    v_lshlrev_b32 v2, 1, v1
    s_lshl_b32 s4, s3, 8
    s_lshl_b32 s5, s3, 1
    v_mov_b32 v3, 0
    buffer_load_ushort v16, v3, s[80:83], s5 offen
    ''')
    for n in range(6):
        k(f'buffer_load_ushort v{10+n}, v2, s[{56+4*n}:{59+4*n}], s4 offen')
    k(f'''
    v_lshrrev_b32 v4, 6, v0
    v_lshlrev_b32 v5, 2, v1
    v_readfirstlane_b32 s6, v4
    s_waitcnt vmcnt(0)
    ''')
    for n in range(7):
        k(f'v_lshlrev_b32 v{10+n}, 16, v{10+n}')
    k(f'''
    v_mul_f32 v16, {f32(LOG2E)}, v16
    v_exp_f32 v16, v16
    s_nop 0
    v_cvt_pk_bf16_f32 v16, v16, v16
    v_lshlrev_b32 v16, 16, v16       ; dt
    v_mul_f32 v10, v16, v10
    v_mul_f32 v10, {f32(LOG2E)}, v10  ; a2
    v_mul_f32 v11, v16, v11
    v_mul_f32 v11, {f32(INV2PI)}, v11 ; w (rev/step)
    v_mul_f32 v12, v16, v12          ; dBr
    v_mul_f32 v13, v16, v13          ; dBi
    v_mul_f32 v18, v14, v12
    v_fma_f32 v18, -v15, v13, v18    ; Wr
    v_mul_f32 v19, v14, v13
    v_fma_f32 v19, v15, v12, v19     ; Wi
    v_mul_f32 v6, v18, v18
    v_fma_f32 v6, v19, v19, v6
    v_max_f32 v6, {f32(1e-36)}, v6
    v_log_f32 v6, v6
    s_nop 0
    v_mul_f32 v7, 0.25, v6
    v_exp_f32 v8, v7                 ; sv = |W|^(1/2)
    v_exp_f32 v7, -v7                ; 1/sv
    s_nop 0
    v_mul_f32 v18, v18, v7
    v_mul_f32 v19, v19, v7           ; W' = W/sv in v[18:19]
    '''.replace('0.25', f32(0.25)))

    def pw(dst, e):
        k(f'''
        v_mul_f32 v6, {f32(float(e))}, v10
        v_mul_f32 v7, {f32(float(e))}, v11
        v_exp_f32 v6, v6
        v_fract_f32 v7, v7
        v_cos_f32 v{dst}, v7
        v_sin_f32 v{dst+1}, v7
        s_nop 0
        v_mul_f32 v{dst}, v{dst}, v6
        v_mul_f32 v{dst+1}, v{dst+1}, v6
        ''')

    def cmul(d, x, y):
        k(f'''
        v_pk_mul_f32 v[{d}:{d+1}], v[{x}:{x+1}], v[{y}:{y+1}] op_sel:[0,0] op_sel_hi:[0,1]
        v_pk_fma_f32 v[{d}:{d+1}], v[{x}:{x+1}], v[{y}:{y+1}], v[{d}:{d+1}] op_sel:[1,1,0] op_sel_hi:[1,0,1] neg_lo:[0,1,0]
        ''')

    tmpc = [0]

    def outU(row, x):
        t = 60 + (tmpc[0] % 8)
        tmpc[0] += 1
        k(f'''
        v_cvt_pk_f16_f32 v{t}, v{x}, -v{x+1}
        ds_write_b32 v5, v{t} offset:{KG_UL + row*KG_RS}''')

    def outV(row, x):
        t = 60 + (tmpc[0] % 8)
        tmpc[0] += 1
        k(f'''
        v_cvt_pk_f16_f32 v{t}, v{x}, v{x+1}
        ds_write_b32 v5, v{t} offset:{KG_VL + row*KG_RS}''')

    k('''
    s_cmp_ge_u32 s6, 2
    s_cbranch_scc1 k1_kg_g1
    ''')
    pw(20, 1)
    pw(22, 128)
    pw(24, 256)
    pw(26, 8)
    k('v_mov_b32 v28, v18\nv_mov_b32 v29, v19')
    outU(0, 28)
    k('v_mov_b32 v48, v8\nv_mov_b32 v49, 0')
    outV(0, 48)
    for r in range(1, 8):
        cmul(28 + 2 * r, 28 + 2 * (r - 1), 20)
        outU(r, 28 + 2 * r)
        a, b = (48, 50) if r % 2 else (50, 48)
        cmul(b, a, 26)
        outV(r, b)
    for r in range(8):
        t = 44 + 2 * (r & 1)
        cmul(t, 28 + 2 * r, 22)
        outU(8 + r, t)
        if r % 2 == 0:
            cmul(52, t, 24)
            outU(20 + r // 2, 52)
            cmul(54, 28 + 2 * r, 24)
            outU(16 + r // 2, 54)
    k('s_branch k1_kg_join')
    k('k1_kg_g1:')
    pw(20, 4)
    pw(22, 128)
    pw(24, 1024)
    pw(26, 8)
    pw(28, 64)
    k('v_mul_f32 v48, v28, v8\nv_mul_f32 v49, v29, v8')
    outV(8, 48)
    cur = 18
    for a in range(8):
        if a > 0:
            nxt = 30 + 2 * (a & 1)
            cmul(nxt, cur, 22)
            cur = nxt
            va, vb = (48, 50) if a % 2 else (50, 48)
            cmul(vb, va, 26)
            outV(8 + a, vb)
        t = 36 + 2 * (a & 1)
        cmul(t, cur, 24)
        outU(32 + a, t)
        if a == 0:
            cmul(40, t, 24)
            outU(40, 40)
        if a >= 4:
            outU(24 + 2 * (a - 4), cur)
            cmul(42, cur, 20)
            outU(24 + 2 * (a - 4) + 1, 42)
    k('k1_kg_join:')
    k(f'''
    v_and_b32 v6, 63, v0             ; lane
    v_and_b32 v7, 15, v6             ; i
    v_lshrrev_b32 v9, 4, v6          ; q
    v_mul_u32_u24 v10, {KG_RS}, v7
    v_lshl_add_u32 v10, v9, 4, v10   ; i*RS + 16q
    s_mul_i32 s7, s6, {16*KG_RS}
    v_add_u32 v11, s7, v10           ; A addr
    s_waitcnt lgkmcnt(0)
    s_barrier
    s_cmp_ge_u32 s6, 3
    s_cbranch_scc1 k1_kg_gather
    ''')
    for s in range(8):
        k(f'''
        ds_read_b128 v[{16+8*s}:{19+8*s}], v11 offset:{KG_UL+64*s}
        ds_read_b128 v[{20+8*s}:{23+8*s}], v10 offset:{KG_VL+64*s}''')
    k('''
    s_cmp_eq_u32 s6, 1
    s_cbranch_scc1 k1_kg_w1
    s_cmp_eq_u32 s6, 2
    s_cbranch_scc1 k1_kg_w2
    v_lshrrev_b32 v12, 1, v9
    v_lshlrev_b32 v12, 7, v12
    v_and_b32 v13, 1, v9
    v_lshl_add_u32 v12, v13, 2, v12
    v_lshl_add_u32 v12, v7, 3, v12
    v_add_u32 v13, 1, v12
    v_add_u32 v14, 2, v12
    v_add_u32 v15, 3, v12
    s_branch k1_kg_wj
k1_kg_w1:
    ; q<2: 256+64q+4i+r ; q>=2: 384+64(q-2)+2i+{0,1,32,33}
    v_lshlrev_b32 v12, 6, v9
    v_add_u32 v12, 256, v12
    v_lshl_add_u32 v13, v7, 2, v12
    v_lshl_add_u32 v14, v7, 1, v12
    v_cmp_gt_u32 vcc, 2, v9
    s_nop 1
    v_cndmask_b32 v12, v14, v13, vcc
    v_mov_b32 v14, 32
    v_cndmask_b32 v14, v14, 2, vcc
    v_add_u32 v13, 1, v12
    v_add_u32 v14, v14, v12
    v_add_u32 v15, 1, v14
    s_branch k1_kg_wj
k1_kg_w2:
    v_lshlrev_b32 v12, 6, v9
    v_add_u32 v12, 512, v12
    v_add_u32 v12, v12, v7
    v_add_u32 v13, 16, v12
    v_add_u32 v14, 32, v12
    v_add_u32 v15, 48, v12
k1_kg_wj:
    '''.replace('v_cndmask_b32 v14, v14, 2, vcc', 'v_cndmask_b32_e64 v14, v14, 2, vcc'))
    for r in range(4):
        k(f'v_lshlrev_b32 v{12+r}, 1, v{12+r}')
    for s in range(8):
        k(f's_waitcnt lgkmcnt({14-2*s})')
        c = '0' if s == 0 else 'v[80:83]'
        k(f'v_mfma_f32_16x16x32_f16 v[80:83], v[{16+8*s}:{19+8*s}], v[{20+8*s}:{23+8*s}], {c}')
    k(f'''
    v_cvt_pk_bf16_f32 v84, v80, v81
    v_cvt_pk_bf16_f32 v85, v82, v83
    ds_write_b16 v12, v84 offset:{KG_T}
    ds_write_b16_d16_hi v13, v84 offset:{KG_T}
    ds_write_b16 v14, v85 offset:{KG_T}
    ds_write_b16_d16_hi v15, v85 offset:{KG_T}
k1_kg_gather:
    ; l_e = 2047 - 8*tid - e
    v_lshlrev_b32 v6, 3, v0
    v_sub_u32 v6, 2047, v6
    ''')
    for e in range(8):
        k(f'''
        v_subrev_u32 v{16+e}, {e}, v6
        v_cvt_f32_u32 v{24+e}, v{16+e}''')
    for e in range(0, 8, 2):
        k(f'v_cvt_pk_bf16_f32 v{32+e//2}, v{24+e}, v{25+e}')
    for e in range(8):
        if e % 2 == 0:
            k(f'v_and_b32 v{24+e}, 0xffff, v{32+e//2}')
        else:
            k(f'v_lshrrev_b32 v{24+e}, 16, v{32+e//2}')
        k(f'''
        v_subrev_u32 v{24+e}, {0x4300-128}, v{24+e}
        v_cmp_gt_u32 vcc, 128, v{16+e}
        v_cndmask_b32 v{24+e}, v{24+e}, v{16+e}, vcc
        v_lshlrev_b32 v{24+e}, 1, v{24+e}
        ''')
    k('''
    s_waitcnt lgkmcnt(0)
    s_barrier
    ''')
    for e in range(8):
        k(f'ds_read_u16 v{44+e}, v{24+e} offset:{KG_T}')
    k(f'''
    s_mul_i32 s7, s3, {KR_STRIDE}
    v_lshlrev_b32 v6, 4, v0
    v_mov_b32 v40, 0
    v_mov_b32 v41, 0
    v_mov_b32 v42, 0
    v_mov_b32 v43, 0
    s_waitcnt lgkmcnt(0)
    v_lshl_or_b32 v36, v45, 16, v44
    v_lshl_or_b32 v37, v47, 16, v46
    v_lshl_or_b32 v38, v49, 16, v48
    v_lshl_or_b32 v39, v51, 16, v50
    buffer_store_dwordx4 v[36:39], v6, s[84:87], s7 offen
    v_cmp_gt_u32 vcc, 2, v0
    s_and_saveexec_b64 s[14:15], vcc
    s_cbranch_execz k1_kg_end
    s_add_u32 s7, s7, 4096
    buffer_store_dwordx4 v[40:43], v6, s[84:87], s7 offen
k1_kg_end:
    s_endpgm
    ''')


def make_k1():
    total = N_LN1 + N_MOD + N_WOF + N_KG
    k = Kern('prep_kernel', total, 256, K1_LDS)
    k(f'''
    s_cmp_ge_u32 s2, {total}
    s_cbranch_scc1 k1_exit
    ''')
    load_ptrs(k)
    k(f'''
    s_waitcnt lgkmcnt(0)
    s_cmp_ge_u32 s2, {N_LN1+N_MOD+N_WOF}
    s_cbranch_scc1 k1_kgen
    s_cmp_ge_u32 s2, {N_LN1+N_MOD}
    s_cbranch_scc1 k1_wof
    s_cmp_ge_u32 s2, {N_LN1}
    s_cbranch_scc1 k1_mod
    ''')
    role_ln1(k)
    k('k1_mod:')
    role_mod(k)
    k('k1_wof:')
    role_wof(k)
    k('k1_kgen:')
    role_kgen(k)
    k('k1_exit:\ns_endpgm')
    return k
```

```python
from asmlib import Kern
from layout import WS, KR_STRIDE
from gen_k1 import f32, load_ptrs, srd, srd_ws

N_WP, N_MISC, N_CONV = 108, 32, 640
CS = 4160
HOFF = 8 * CS
K2_LDS = 38912


def quad_sum(k, v):
    k(f'''
    v_add_f32_dpp v{v}, v{v}, v{v} quad_perm:[1,0,3,2] row_mask:0xf bank_mask:0xf
    v_add_f32_dpp v{v}, v{v}, v{v} quad_perm:[2,3,0,1] row_mask:0xf bank_mask:0xf
    ''')


def role_wp(k):
    RS = 192
    RED = 160 * RS
    srd(k, 56, 'win', 640 * 3456)
    srd_ws(k, 60, 'MODP')
    srd_ws(k, 64, 'WPF')
    srd_ws(k, 68, 'CSP')
    srd_ws(k, 72, 'BIP')
    k(f'''
    s_mul_i32 s4, s2, 2428
    s_lshr_b32 s4, s4, 16            ; dq
    s_mul_i32 s5, s4, 27
    s_sub_u32 s5, s2, s5             ; fb
    v_and_b32 v1, 7, v0              ; c8
    v_lshrrev_b32 v2, 3, v0          ; rg
    v_mul_u32_u24 v3, 3456, v2
    v_lshl_add_u32 v3, v1, 4, v3
    s_mul_i32 s6, s4, {160*3456}
    s_lshl_b32 s7, s5, 7
    s_add_u32 s6, s6, s7
    v_and_b32 v4, 3, v1
    v_mul_u32_u24 v4, 15360, v4
    v_lshrrev_b32 v5, 2, v1
    v_mul_u32_u24 v5, 2560, v5
    v_add_u32 v4, v4, v5
    v_lshl_add_u32 v4, v2, 2, v4
    s_mul_i32 s12, s4, 640
    s_add_u32 s12, s12, {3*2560}
    ''')
    for i in range(1, 5):
        k(f's_add_u32 s{6+i}, s6, {32*3456*i}')
    for i in range(5):
        k(f'buffer_load_dword v{28+i}, v4, s[60:63], s12 offen offset:{128*i}')
    for i in range(5):
        k(f'buffer_load_dwordx4 v[{8+4*i}:{11+4*i}], v3, s[56:59], s{6+i} offen')
    k(f'''
    v_mul_u32_u24 v6, {RS}, v2
    v_lshl_add_u32 v6, v1, 4, v6
    v_cmp_gt_u32 vcc, 4, v1
    s_waitcnt vmcnt(5)
    ''')
    for i in range(5):
        v = 28 + i
        quad_sum(k, v)
        k(f'''
        v_cvt_pk_bf16_f32 v{v}, v{v}, v{v}
        v_lshlrev_b32 v{v}, 16, v{v}
        v_mov_b32_dpp v5, v{v} row_half_mirror row_mask:0xf bank_mask:0xf
        v_cndmask_b32 v{34+4*i}, v{v}, v5, vcc      ; cb
        v_cndmask_b32 v{36+4*i}, v5, v{v}, vcc      ; sb
        v_add_f32 v{34+4*i}, 1.0, v{34+4*i}
        v_mov_b32 v{35+4*i}, v{34+4*i}
        v_mov_b32 v{37+4*i}, v{36+4*i}
        ''')
    for i in range(5):
        k(f's_waitcnt vmcnt({4-i})')
        for j in range(4):
            r = 8 + 4 * i + j
            k(f'''
            v_lshlrev_b32 v72, 16, v{r}
            v_and_b32 v73, 0xffff0000, v{r}
            v_pk_mul_f32 v[74:75], v[72:73], v[{34+4*i}:{35+4*i}]
            ''')
            if i == 0:
                k(f'v_pk_mul_f32 v[{64+2*j}:{65+2*j}], v[72:73], v[{36+4*i}:{37+4*i}]')
            else:
                k(f'v_pk_fma_f32 v[{64+2*j}:{65+2*j}], v[72:73], v[{36+4*i}:{37+4*i}], v[{64+2*j}:{65+2*j}]')
            k(f'v_cvt_pk_bf16_f32 v{r}, v74, v75')
            if i == 0:
                k(f'''
                v_lshlrev_b32 v{56+2*j}, 16, v{r}
                v_and_b32 v{57+2*j}, 0xffff0000, v{r}''')
            else:
                k(f'''
                v_lshlrev_b32 v76, 16, v{r}
                v_and_b32 v77, 0xffff0000, v{r}
                v_pk_add_f32 v[{56+2*j}:{57+2*j}], v[{56+2*j}:{57+2*j}], v[76:77]''')
        k(f'ds_write_b128 v6, v[{8+4*i}:{11+4*i}] offset:{32*RS*i}')
    for j in range(16):
        k(f'v_add_f32_dpp v{56+j}, v{56+j}, v{56+j} row_ror:8 row_mask:0xf bank_mask:0xf')
    k(f'''
    v_lshrrev_b32 v5, 4, v0
    v_lshlrev_b32 v5, 8, v5
    v_lshl_add_u32 v5, v1, 5, v5
    ds_write_b128 v5, v[56:59] offset:{RED}
    ds_write_b128 v5, v[60:63] offset:{RED+16}
    ds_write_b128 v5, v[64:67] offset:{RED+4096}
    ds_write_b128 v5, v[68:71] offset:{RED+4096+16}
    v_and_b32 v40, 63, v0            ; lane
    v_lshrrev_b32 v41, 6, v0
    v_lshrrev_b32 v42, 4, v40        ; kq
    v_bfe_u32 v43, v40, 2, 2         ; rr
    v_and_b32 v44, 3, v40            ; c
    v_lshl_add_u32 v7, v42, 3, v43
    v_mul_u32_u24 v7, {RS}, v7
    v_lshl_add_u32 v7, v44, 4, v7    ; + 16c
    v_lshrrev_b32 v45, 1, v41
    v_lshl_add_u32 v7, v45, 6, v7    ; + 64 blk
    v_and_b32 v45, 1, v41
    v_lshl_add_u32 v7, v45, 3, v7    ; + 8a
    v_lshlrev_b32 v46, 4, v40
    v_lshl_add_u32 v46, v41, 10, v46
    s_mul_i32 s6, s4, {5*108}
    s_lshl_b32 s7, s5, 2
    s_add_u32 s6, s6, s7
    s_lshl_b32 s6, s6, 10
    s_waitcnt lgkmcnt(0)
    s_barrier
    ''')
    for j in range(5):
        k(f'''
        ds_read_b64_tr_b16 v[{8+4*j}:{9+4*j}], v7 offset:{32*RS*j}
        ds_read_b64_tr_b16 v[{10+4*j}:{11+4*j}], v7 offset:{32*RS*j+4*RS}''')
    for j in range(5):
        k(f'''
        s_waitcnt lgkmcnt({8-2*j})
        buffer_store_dwordx4 v[{8+4*j}:{11+4*j}], v46, s[64:67], s6 offen
        s_add_u32 s6, s6, {108*1024}''')
    k(f'''
    v_cmp_gt_u32 vcc, 128, v0
    s_and_saveexec_b64 s[14:15], vcc
    s_cbranch_execz k2_wp_end
    v_lshlrev_b32 v6, 2, v40
    v_lshl_add_u32 v5, v41, 12, v6
    ''')
    for i in range(16):
        k(f'ds_read_b32 v{48+i}, v5 offset:{RED+256*i}')
    k('s_waitcnt lgkmcnt(0)')
    for s in (8, 4, 2, 1):
        for i in range(s):
            k(f'v_add_f32 v{48+i}, v{48+i}, v{48+i+s}')
    k(f'''
    s_mul_i32 s6, s4, {1728*4}
    s_lshl_b32 s7, s5, 8
    s_add_u32 s6, s6, s7
    v_readfirstlane_b32 s8, v41
    s_cmp_eq_u32 s8, 0
    s_cbranch_scc0 k2_wp_b
    buffer_store_dword v48, v6, s[68:71], s6 offen
    s_endpgm
k2_wp_b:
    buffer_store_dword v48, v6, s[72:75], s6 offen
k2_wp_end:
    s_endpgm
    ''')


def role_misc(k):
    srd_ws(k, 56, 'STAT')
    srd_ws(k, 60, 'MODP')
    srd_ws(k, 64, 'MODF')
    k(f'''
    s_sub_u32 s3, s2, {N_WP}
    s_lshl_b32 s4, s3, 12
    v_lshlrev_b32 v1, 4, v0
    v_mov_b32 v4, -1
    v_mov_b32 v5, -1
    v_mov_b32 v6, -1
    v_mov_b32 v7, -1
    buffer_store_dwordx4 v[4:7], v1, s[56:59], s4 offen
    s_cmp_ge_u32 s3, 15
    s_cbranch_scc1 k2_misc_end
    v_lshlrev_b32 v2, 2, v0
    s_lshl_b32 s5, s3, 10
    s_add_u32 s6, s5, 15360
    s_add_u32 s7, s5, 30720
    s_add_u32 s8, s5, 46080
    buffer_load_dword v8, v2, s[60:63], s5 offen
    buffer_load_dword v9, v2, s[60:63], s6 offen
    buffer_load_dword v10, v2, s[60:63], s7 offen
    buffer_load_dword v11, v2, s[60:63], s8 offen
    s_waitcnt vmcnt(0)
    v_add_f32 v8, v8, v9
    v_add_f32 v10, v10, v11
    v_add_f32 v8, v8, v10
    v_cvt_pk_bf16_f32 v8, v8, v8
    v_lshlrev_b32 v8, 16, v8
    buffer_store_dword v8, v2, s[64:67], s5 offen
k2_misc_end:
    s_endpgm
    ''')


def role_conv(k):
    srd_ws(k, 56, 'KR')
    srd_ws(k, 60, 'XNT')
    srd_ws(k, 64, 'XT')
    srd_ws(k, 68, 'MODP')
    srd(k, 72, 'Dskip', 1280)
    srd_ws(k, 76, 'X1T')
    FR = [8, 72]
    ACC = 136
    XR = 4
    k(f'''
    s_sub_u32 s3, s2, {N_WP+N_MISC}   ; d
    v_and_b32 v1, 63, v0             ; lane
    v_lshrrev_b32 v8, 6, v0
    s_nop 0
    v_readfirstlane_b32 s4, v8       ; wave
    s_mul_i32 s5, s3, {KR_STRIDE}
    s_lshl_b32 s6, s3, 12            ; d*4096
    v_lshlrev_b32 v9, 4, v1
    s_lshl_b32 s7, s4, 2             ; 2*(2w) bytes
    v_add_u32 v9, s7, v9
    v_add_u32 v10, 2, v9
    s_mul_i32 s8, s4, {2*CS}
    s_mov_b32 m0, s8
    s_add_u32 s9, s8, {CS}
    ''')
    for c in range(4):
        k(f'buffer_load_dwordx4 v9, s[56:59], s5 offen offset:{1024*c} lds')
    k('s_mov_b32 m0, s9')
    for c in range(4):
        k(f'buffer_load_dwordx4 v10, s[56:59], s5 offen offset:{1024*c} lds')
    k(f'''
    v_lshlrev_b32 v11, 4, v0
    buffer_load_dwordx4 v[12:15], v11, s[60:63], s6 offen
    v_and_b32 v16, 3, v1
    v_mul_u32_u24 v16, 15360, v16
    v_bfe_u32 v17, v1, 2, 2
    v_min_u32 v17, 2, v17
    v_mul_u32_u24 v17, 2560, v17
    v_add_u32 v16, v16, v17
    s_lshl_b32 s10, s3, 2
    buffer_load_dword v18, v16, s[68:71], s10 offen
    v_mov_b32 v19, 0
    s_lshl_b32 s11, s3, 1
    buffer_load_ushort v20, v19, s[72:75], s11 offen
    v_and_b32 v21, 15, v1            ; n / b
    v_lshrrev_b32 v22, 4, v1         ; q / kq
    v_lshlrev_b32 v23, 5, v21
    v_lshl_add_u32 v23, v22, 3, v23  ; 32n + 8q
    s_lshl_b32 s12, s4, 10
    s_add_u32 s13, s6, s12
    buffer_load_dwordx2 v[4:5], v23, s[64:67], s13 offen
    buffer_load_dwordx2 v[6:7], v23, s[64:67], s13 offen offset:512
    v_mov_b32 v24, 0
    v_mov_b32 v25, 0
    v_mov_b32 v26, 0
    v_mov_b32 v27, 0
    v_and_b32 v28, 7, v0
    v_mul_u32_u24 v28, {CS}, v28
    ds_write_b128 v28, v[24:27] offset:4096
    v_min_u32 v29, 29, v1
    v_lshlrev_b32 v29, 4, v29
    ds_write_b128 v29, v[24:27] offset:{HOFF}
    v_sub_u32 v30, 15, v21           ; b'
    v_and_b32 v31, 7, v30
    v_mul_u32_u24 v2, {CS}, v31
    v_lshrrev_b32 v30, 3, v30
    v_add_u32 v30, v30, v22
    v_lshl_add_u32 v2, v30, 4, v2
    s_lshl_b32 s14, s4, 7
    s_sub_u32 s14, 384, s14          ; 448 - 128w - 64
    v_add_u32 v2, s14, v2
    v_lshlrev_b32 v3, 5, v21
    v_lshl_add_u32 v3, v22, 4, v3
    s_add_u32 s15, s14, {HOFF}
    v_add_u32 v3, s15, v3
    s_waitcnt vmcnt(3)
    ''')
    quad_sum(k, 18)
    k(f'''
    v_cvt_pk_bf16_f32 v18, v18, v18
    v_lshlrev_b32 v18, 16, v18
    s_nop 0
    v_readlane_b32 s80, v18, 0       ; sa
    v_readlane_b32 s81, v18, 4       ; ca
    v_readlane_b32 s82, v18, 8       ; ga
    s_nop 1
    v_mov_b32 v32, s81
    v_add_f32 v32, 1.0, v32
    v_mov_b32 v33, v32
    v_mov_b32 v34, s80
    v_mov_b32 v35, s80
    ''')
    for j in range(4):
        k(f'''
        v_lshlrev_b32 v36, 16, v{12+j}
        v_and_b32 v37, 0xffff0000, v{12+j}
        v_pk_fma_f32 v[36:37], v[36:37], v[32:33], v[34:35]
        v_cvt_pk_bf16_f32 v{12+j}, v36, v37''')
    k(f'''
    ds_write_b128 v11, v[12:15] offset:{HOFF+480}
    s_waitcnt vmcnt(2)
    v_lshlrev_b32 v20, 16, v20
    s_nop 0
    v_readfirstlane_b32 s83, v20     ; Dskip
    s_waitcnt lgkmcnt(0)
    s_barrier
    ''')
    for rr in range(2):
        b = FR[rr]
        ex = 64 * (1 - rr)
        for p in range(8):
            k(f'''
            ds_read_b128 v[{b+32+4*p}:{b+35+4*p}], v3 offset:{512*p+ex}
            ds_read_b128 v[{b+4*p}:{b+3+4*p}], v2 offset:{3584-512*p+ex}''')
    first = [True] * 8
    for rr in range(2):
        b = FR[rr]
        for m in range(8):
            outstanding_after = 32 - (16 * rr + 2 * (m + 1))
            k(f's_waitcnt lgkmcnt({min(outstanding_after, 15)})')
            pairs = [(p, q) for p in range(m + 1) for q in range(m + 1) if max(p, q) == m and p + q <= 7]
            for (p, q) in pairs:
                i = p + q
                a = ACC + 4 * i
                c = '0' if first[i] else f'v[{a}:{a+3}]'
                first[i] = False
                k(f'v_mfma_f32_16x16x32_bf16 v[{a}:{a+3}], v[{b+4*p}:{b+3+4*p}], v[{b+32+4*q}:{b+35+4*q}], {c}')
    k(f'''
    v_lshlrev_b32 v8, 4, v1          ; lane*16
    s_barrier
    ''')
    for w in range(4):
        k(f'''
        s_cmp_eq_u32 s4, {w}
        s_cbranch_scc0 k2_red_{w}''')
        for i in range(8):
            o = i >> 1
            if o == w:
                continue
            src = (w - o - 1) % 4
            k(f'ds_write_b128 v8, v[{ACC+4*i}:{ACC+4*i+3}] offset:{(i*3+src)*1024}')
        for j in range(8):
            k(f'v_mov_b32 v{40+j}, v{ACC+8*w+j}')
        k(f'k2_red_{w}:')
    k(f'''
    s_mul_i32 s12, s4, 6144
    v_add_u32 v9, s12, v8
    v_and_b32 v21, 15, v1
    v_lshrrev_b32 v22, 4, v1
    v_lshlrev_b32 v23, 5, v21
    v_lshl_add_u32 v23, v22, 3, v23
    s_lshl_b32 s12, s4, 10
    v_add_u32 v10, s12, v23
    v_lshrrev_b32 v11, 1, v21
    v_lshlrev_b32 v11, 6, v11
    v_and_b32 v12, 1, v22
    v_lshl_add_u32 v11, v12, 5, v11
    v_and_b32 v12, 1, v21
    v_lshl_add_u32 v11, v12, 4, v11
    v_lshrrev_b32 v12, 1, v22
    v_lshl_add_u32 v11, v12, 3, v11
    s_waitcnt lgkmcnt(0)
    s_barrier
    ds_read_b64 v[12:13], v10 offset:{HOFF+480}
    ds_read_b64 v[14:15], v10 offset:{HOFF+480+512}
    ''')
    for j in range(6):
        k(f'ds_read_b128 v[{48+4*j}:{51+4*j}], v9 offset:{1024*j}')
    k(f'''
    v_mov_b32 v16, s83
    v_mov_b32 v17, s83
    v_mov_b32 v18, s82
    v_mov_b32 v19, s82
    s_waitcnt lgkmcnt(0) vmcnt(0)
    ''')
    for t in range(2):
        o = 40 + 4 * t
        for j in range(3):
            s = 48 + 12 * t + 4 * j
            k(f'''
            v_pk_add_f32 v[{o}:{o+1}], v[{o}:{o+1}], v[{s}:{s+1}]
            v_pk_add_f32 v[{o+2}:{o+3}], v[{o+2}:{o+3}], v[{s+2}:{s+3}]''')
        for hh in range(2):
            hv = 12 + 2 * t + hh
            xv = XR + 2 * t + hh
            y = o + 2 * hh
            k(f'''
            v_lshlrev_b32 v20, 16, v{hv}
            v_and_b32 v21, 0xffff0000, v{hv}
            v_pk_fma_f32 v[{y}:{y+1}], v[20:21], v[16:17], v[{y}:{y+1}]
            v_lshlrev_b32 v22, 16, v{xv}
            v_and_b32 v23, 0xffff0000, v{xv}
            v_pk_fma_f32 v[{y}:{y+1}], v[{y}:{y+1}], v[18:19], v[22:23]
            v_cvt_pk_bf16_f32 v{24+2*t+hh}, v{y}, v{y+1}
            ''')
        k(f'buffer_store_dwordx2 v[{24+2*t}:{25+2*t}], v11, s[76:79], s13 offen offset:{512*t}')
    k('s_endpgm')


def make_k2():
    total = N_WP + N_MISC + N_CONV
    k = Kern('conv_kernel', total, 256, K2_LDS)
    k(f'''
    s_cmp_ge_u32 s2, {total}
    s_cbranch_scc1 k2_exit
    ''')
    load_ptrs(k)
    k(f'''
    s_waitcnt lgkmcnt(0)
    s_cmp_ge_u32 s2, {N_WP+N_MISC}
    s_cbranch_scc1 k2_conv
    s_cmp_ge_u32 s2, {N_WP}
    s_cbranch_scc1 k2_misc
    ''')
    role_wp(k)
    k('k2_misc:')
    role_misc(k)
    k('k2_conv:')
    role_conv(k)
    k('k2_exit:\ns_endpgm')
    return k
```

```python
from asmlib import Kern
from layout import WS
from gen_k1 import f32, load_ptrs, srd, srd_ws, PTR, dpp_sum16

NS = 6
SLOT = 16384
CONST = NS * SLOT
K3_LDS = CONST + 1024
NK = 20

ACC = 100
GRAM = 156
SUM = 164
ONES = 172
FRG = [28, 64]

C0 = -2.0 * 0.7978845608028654 * 1.4426950408889634
C1 = C0 * 0.044715


def gelu_pairs(k, regs, t0):
    for n in range(0, len(regs), 2):
        grp = regs[n:n + 2]
        T = [t0 + 4 * g for g in range(len(grp))]
        for x, t in zip(grp, T):
            k(f'v_pk_mul_f32 v[{t}:{t+1}], v[{x}:{x+1}], v[{x}:{x+1}]')
        for x, t in zip(grp, T):
            k(f'v_pk_mul_f32 v[{t}:{t+1}], v[{t}:{t+1}], s[72:73]')
        for x, t in zip(grp, T):
            k(f'v_pk_add_f32 v[{t}:{t+1}], v[{t}:{t+1}], s[70:71]')
        for x, t in zip(grp, T):
            k(f'v_pk_mul_f32 v[{t}:{t+1}], v[{t}:{t+1}], v[{x}:{x+1}]')
        for x, t in zip(grp, T):
            k(f'v_exp_f32 v{t}, v{t}\nv_exp_f32 v{t+1}, v{t+1}')
        for x, t in zip(grp, T):
            k(f'v_pk_add_f32 v[{t}:{t+1}], v[{t}:{t+1}], s[74:75]')
        for x, t in zip(grp, T):
            k(f'v_rcp_f32 v{t}, v{t}\nv_rcp_f32 v{t+1}, v{t+1}')
        for x, t in zip(grp, T):
            k(f'v_pk_mul_f32 v[{x}:{x+1}], v[{x}:{x+1}], v[{t}:{t+1}]')


def dma_stage(k, st):
    slot = st % NS
    k(f'''
    s_add_u32 m0, s10, {slot*SLOT}
    buffer_load_dwordx4 v2, s[60:63], s12 offen lds
    buffer_load_dwordx4 v2, s[60:63], s12 offen offset:1024 lds
    buffer_load_dwordx4 v3, s[56:59], s11 offen offset:2048 lds
    buffer_load_dwordx4 v4, s[56:59], s11 offen offset:3072 lds
    s_add_u32 s11, s11, {32*4096}
    s_add_u32 s12, s12, {108*1024}
    ''')


def frag_reads(k, st):
    slot = st % NS
    hi = slot >= 3
    base = (slot - 3 if hi else slot) * SLOT
    F = FRG[st & 1]
    va = (8, 9) if hi else (6, 7)
    vb = 11 if hi else 10
    for a in range(2):
        k(f'''
        ds_read_b64_tr_b16 v[{F+4*a}:{F+4*a+1}], v{va[a]} offset:{base}
        ds_read_b64_tr_b16 v[{F+4*a+2}:{F+4*a+3}], v{va[a]} offset:{base+1024}''')
    for b in range(7):
        k(f'ds_read_b128 v[{F+8+4*b}:{F+11+4*b}], v{vb} offset:{base+(b>>1)*4096+(b&1)*1024}')


def mainloop(k, typ):
    k(f'''
    s_waitcnt vmcnt({4*(NS-1)})
    s_barrier
    ''')
    frag_reads(k, 0)
    for kk in range(NK):
        F = FRG[kk & 1]
        if kk + 1 < NK:
            n = 4 * (min(kk + NS - 1, NK - 1) - (kk + 1))
            k(f'''
            s_waitcnt vmcnt({n}) lgkmcnt(0)
            s_barrier''')
            if kk + NS < NK:
                dma_stage(k, kk + NS)
            frag_reads(k, kk + 1)
        else:
            k('s_waitcnt lgkmcnt(0)')
        z = kk == 0
        for a in range(2):
            x = f'v[{F+4*a}:{F+4*a+3}]'
            for b in range(7):
                w = f'v[{F+8+4*b}:{F+11+4*b}]'
                acc = ACC + 4 * (7 * a + b)
                c = '0' if z else f'v[{acc}:{acc+3}]'
                if typ == 1:
                    k(f'v_mfma_f32_16x16x32_bf16 v[{acc}:{acc+3}], {w}, {x}, {c}')
                else:
                    k(f'v_mfma_f32_16x16x32_bf16 v[{acc}:{acc+3}], {x}, {w}, {c}')
            g = GRAM + 4 * a
            s = SUM + 4 * a
            k(f'v_mfma_f32_16x16x32_bf16 v[{g}:{g+3}], {x}, {x}, ' + ('0' if z else f'v[{g}:{g+3}]'))
            o = f'v[{ONES}:{ONES+3}]'
            if typ == 1:
                k(f'v_mfma_f32_16x16x32_bf16 v[{s}:{s+3}], {o}, {x}, ' + ('0' if z else f'v[{s}:{s+3}]'))
            else:
                k(f'v_mfma_f32_16x16x32_bf16 v[{s}:{s+3}], {x}, {o}, ' + ('0' if z else f'v[{s}:{s+3}]'))
        lab = k.label('nodump')
        k(f'''
        s_cmp_eq_u32 s6, {kk & 15}
        s_cbranch_scc0 {lab}
        s_mov_b32 s13, {kk*128*1024}
        buffer_store_dwordx4 v[{F}:{F+3}], v5, s[64:67], s13 offen
        buffer_store_dwordx4 v[{F+4}:{F+7}], v5, s[64:67], s13 offen offset:1024
{lab}:
        ''')


def epilogue_z1(k):
    k(f'''
    v_and_b32 v15, 3, v13
    v_lshrrev_b32 v16, 2, v13
    v_lshl_add_u32 v16, v16, 4, v13
    v_lshlrev_b32 v16, 2, v16
    v_cmp_eq_u32 s[92:93], 1, v15
    v_cmp_eq_u32 s[94:95], 2, v15
    v_cmp_eq_u32 s[96:97], 3, v15
    v_lshlrev_b32 v17, 4, v14
    v_add_u32 v17, {CONST}, v17
    ''')
    for a in range(2):
        g = GRAM + 4 * a
        k(f'''
        v_cndmask_b32 v{18+a}, v{g}, v{g+1}, s[92:93]
        v_cndmask_b32 v{18+a}, v{18+a}, v{g+2}, s[94:95]
        v_cndmask_b32 v{18+a}, v{18+a}, v{g+3}, s[96:97]
        ds_bpermute_b32 v{18+a}, v16, v{18+a}
        ''')
    for b in range(7):
        k(f'''
        ds_read_b128 v[{28+4*b}:{31+4*b}], v17 offset:{64*b}
        ds_read_b128 v[{56+4*b}:{59+4*b}], v17 offset:{512+64*b}''')
    k('s_waitcnt lgkmcnt(14)')
    for a in range(2):
        s = SUM + 4 * a
        r = 20 + 4 * a
        k(f'''
        v_mul_f32 v{s}, {f32(1.0/640)}, v{s}            ; mean
        v_mov_b32 v{r}, {f32(1e-5)}
        v_fmac_f32 v{r}, {f32(1.0/640)}, v{18+a}
        v_fma_f32 v{r}, -v{s}, v{s}, v{r}
        v_max_f32 v{r}, {f32(1e-5)}, v{r}
        v_rsq_f32 v{r}, v{r}
        v_mov_b32 v{r+1}, v{r}
        v_mul_f32 v{r+2}, v{s}, v{r}
        v_sub_f32 v{r+2}, 0, v{r+2}
        v_mov_b32 v{r+3}, v{r+2}
        ''')
    k('s_waitcnt lgkmcnt(0)')
    k(f'''
    s_lshl_b32 s13, s9, 11
    v_add_u32 v15, s13, v12
    ''')
    for b in range(7):
        regs = []
        for a in range(2):
            acc = ACC + 4 * (7 * a + b)
            r = 20 + 4 * a
            for p in range(2):
                x = acc + 2 * p
                k(f'''
                v_pk_fma_f32 v[84:85], v[{28+4*b+2*p}:{29+4*b+2*p}], v[{r+2}:{r+3}], v[{56+4*b+2*p}:{57+4*b+2*p}]
                v_pk_fma_f32 v[{x}:{x+1}], v[{x}:{x+1}], v[{r}:{r+1}], v[84:85]''')
                regs.append(x)
        gelu_pairs(k, regs, 88)
        k(f'''
        s_add_u32 s13, s8, {b}
        s_lshr_b32 s14, s13, 1
        s_lshl_b32 s14, s14, 17
        s_and_b32 s13, s13, 1
        s_lshl_b32 s13, s13, 3
        s_add_u32 s13, s13, s14
        ''')
        for a in range(2):
            acc = ACC + 4 * (7 * a + b)
            k(f'''
            v_cvt_pk_bf16_f32 v{acc}, v{acc}, v{acc+1}
            v_cvt_pk_bf16_f32 v{acc+1}, v{acc+2}, v{acc+3}
            buffer_store_dwordx2 v[{acc}:{acc+1}], v15, s[84:87], s13 offen offset:{1024*a}''')
    k('s_endpgm')


def epilogue_z2(k):
    k(f'''
    v_mul_u32_u24 v16, 80, v14         ; 4*(20q)
    v_lshlrev_b32 v17, 2, v13
    v_add_u32 v17, {CONST}, v17
    ''')
    for a in range(2):
        for r in range(4):
            g = GRAM + 4 * a + r
            k(f'ds_bpermute_b32 v{g}, v16, v{g} offset:{4*r}')
    for b in range(7):
        k(f'''
        ds_read_b32 v{28+2*b}, v17 offset:{64*b}
        ds_read_b32 v{42+2*b}, v17 offset:{512+64*b}''')
    k('s_waitcnt lgkmcnt(14)')
    for a in range(2):
        for r in range(4):
            g = GRAM + 4 * a + r
            s = SUM + 4 * a + r
            k(f'''
            v_mul_f32 v{s}, {f32(1.0/640)}, v{s}
            v_mov_b32 v18, {f32(1e-5)}
            v_fmac_f32 v18, {f32(1.0/640)}, v{g}
            v_fma_f32 v18, -v{s}, v{s}, v18
            v_max_f32 v18, {f32(1e-5)}, v18
            v_rsq_f32 v{g}, v18
            v_mul_f32 v{s}, v{s}, v{g}
            v_sub_f32 v{s}, 0, v{s}
            ''')
    k('s_waitcnt lgkmcnt(0)')
    for b in range(7):
        k(f'v_mov_b32 v{29+2*b}, v{28+2*b}\nv_mov_b32 v{43+2*b}, v{42+2*b}')
    for b in range(7):
        regs = []
        for a in range(2):
            acc = ACC + 4 * (7 * a + b)
            for p in range(2):
                x = acc + 2 * p
                g = GRAM + 4 * a + 2 * p
                s = SUM + 4 * a + 2 * p
                k(f'''
                v_pk_fma_f32 v[84:85], v[{28+2*b}:{29+2*b}], v[{s}:{s+1}], v[{42+2*b}:{43+2*b}]
                v_pk_fma_f32 v[{x}:{x+1}], v[{x}:{x+1}], v[{g}:{g+1}], v[84:85]''')
                regs.append(x)
        gelu_pairs(k, regs, 88)
    for a in range(2):
        for p in range(2):
            s1 = 56 + 4 * a + 2 * p
            s2 = 64 + 4 * a + 2 * p
            x = ACC + 4 * (7 * a + 2) + 2 * p
            k(f'''
            v_pk_add_f32 v[{s1}:{s1+1}], v[{x}:{x+1}], v[{x+4}:{x+5}]
            v_pk_mul_f32 v[{s2}:{s2+1}], v[{x}:{x+1}], v[{x}:{x+1}]''')
            for b in range(3, 7):
                x = ACC + 4 * (7 * a + b) + 2 * p
                if b > 3:
                    k(f'v_pk_add_f32 v[{s1}:{s1+1}], v[{s1}:{s1+1}], v[{x}:{x+1}]')
                k(f'v_pk_fma_f32 v[{s2}:{s2+1}], v[{x}:{x+1}], v[{x}:{x+1}], v[{s2}:{s2+1}]')
    k('''
    s_cmp_eq_u32 s7, 7
    s_cbranch_scc1 k3_skipdup
    ''')
    for a in range(2):
        for p in range(2):
            s1 = 56 + 4 * a + 2 * p
            s2 = 64 + 4 * a + 2 * p
            for b in range(2):
                x = ACC + 4 * (7 * a + b) + 2 * p
                k(f'''
                v_pk_add_f32 v[{s1}:{s1+1}], v[{s1}:{s1+1}], v[{x}:{x+1}]
                v_pk_fma_f32 v[{s2}:{s2+1}], v[{x}:{x+1}], v[{x}:{x+1}], v[{s2}:{s2+1}]''')
    k('k3_skipdup:')
    for n in (8, 4, 2, 1):
        for v in range(56, 72):
            k(f'v_add_f32_dpp v{v}, v{v}, v{v} row_ror:{n} row_mask:0xf bank_mask:0xf')
    for e in range(8):
        k(f'v_mov_b32 v{28+2*e}, v{56+e}\nv_mov_b32 v{29+2*e}, v{64+e}')
    k(f'''
    s_lshl_b32 s13, s9, 11             ; (4rb+w)*2048
    s_lshl_b32 s14, s7, 8
    s_add_u32 s14, s14, s13            ; + j*256
    v_lshlrev_b32 v15, 6, v14          ; 64q
    v_cmp_eq_u32 vcc, 0, v13
    s_and_saveexec_b64 s[92:93], vcc
    buffer_store_dwordx4 v[28:31], v15, s[88:91], s14 offen sc1
    buffer_store_dwordx4 v[32:35], v15, s[88:91], s14 offen offset:16 sc1
    buffer_store_dwordx4 v[36:39], v15, s[88:91], s14 offen offset:32 sc1
    buffer_store_dwordx4 v[40:43], v15, s[88:91], s14 offen offset:48 sc1
    s_mov_b64 exec, s[92:93]
    v_lshrrev_b32 v16, 1, v13
    v_lshl_add_u32 v16, v16, 8, v15
    v_and_b32 v17, 1, v13
    v_lshl_add_u32 v16, v17, 5, v16
    s_mov_b32 s15, 0
k3_poll:
    buffer_load_dwordx4 v[44:47], v16, s[88:91], s13 offen sc1
    buffer_load_dwordx4 v[48:51], v16, s[88:91], s13 offen offset:16 sc1
    s_waitcnt vmcnt(0)
    v_cmp_eq_u32 vcc, -1, v45
    v_cmp_eq_u32 s[92:93], -1, v47
    v_cmp_eq_u32 s[94:95], -1, v49
    v_cmp_eq_u32 s[96:97], -1, v51
    s_or_b64 s[92:93], s[92:93], vcc
    s_or_b64 s[94:95], s[94:95], s[96:97]
    s_or_b64 s[92:93], s[92:93], s[94:95]
    s_cmp_eq_u64 s[92:93], 0
    s_cbranch_scc1 k3_ready
    s_add_u32 s15, s15, 1
    s_cmp_lt_u32 s15, 20000
    s_cbranch_scc0 k3_ready
    s_sleep 2
    s_branch k3_poll
k3_ready:
    ''')
    for n in (8, 4, 2):
        for v in range(44, 52):
            k(f'v_add_f32_dpp v{v}, v{v}, v{v} row_ror:{n} row_mask:0xf bank_mask:0xf')
    for r in range(4):
        k(f'''
        v_mul_f32 v{44+2*r}, {f32(1.0/864)}, v{44+2*r}
        v_mov_b32 v18, {f32(1e-5)}
        v_fmac_f32 v18, {f32(1.0/864)}, v{45+2*r}
        v_fma_f32 v18, -v{44+2*r}, v{44+2*r}, v18
        v_max_f32 v18, {f32(1e-5)}, v18
        v_rsq_f32 v{52+r}, v18
        v_mul_f32 v{56+r}, v{44+2*r}, v{52+r}
        v_sub_f32 v{56+r}, 0, v{56+r}
        ''')
    k('v_cmp_eq_u32 vcc, 0, v17')
    for e in range(8):
        k(f'v_mov_b32_dpp v{60+e}, v{52+e} quad_perm:[1,0,3,2] row_mask:0xf bank_mask:0xf')
    for r in range(4):
        k(f'''
        v_cndmask_b32 v{GRAM+r}, v{60+r}, v{52+r}, vcc
        v_cndmask_b32 v{GRAM+4+r}, v{52+r}, v{60+r}, vcc
        v_cndmask_b32 v{SUM+r}, v{64+r}, v{56+r}, vcc
        v_cndmask_b32 v{SUM+4+r}, v{56+r}, v{64+r}, vcc
        ''')
    k(f'''
    s_mul_i32 s13, s9, 54
    s_add_u32 s13, s13, s8
    s_lshl_b32 s13, s13, 10
    ''')
    for b in range(7):
        o = 28 + 4 * b
        for a in range(2):
            acc = ACC + 4 * (7 * a + b)
            for p in range(2):
                x = acc + 2 * p
                g = GRAM + 4 * a + 2 * p
                s = SUM + 4 * a + 2 * p
                k(f'''
                v_pk_fma_f32 v[{x}:{x+1}], v[{x}:{x+1}], v[{g}:{g+1}], v[{s}:{s+1}]
                v_cvt_pk_bf16_f32 v{o+2*a+p}, v{x}, v{x+1}''')
        if b == 4:
            k('s_add_u32 s13, s13, 4096')
        k(f'buffer_store_dwordx4 v[{o}:{o+3}], v12, s[84:87], s13 offen offset:{1024*(b%4)}')
    k('s_endpgm')


def make_k3():
    k = Kern('gemm1_kernel', 256, 256, K3_LDS)
    k('''
    s_cmp_ge_u32 s2, 256
    s_cbranch_scc1 k3_exit
    ''')
    load_ptrs(k)
    k(f'''
    s_and_b32 s3, s2, 7
    s_lshr_b32 s4, s2, 3
    s_lshr_b32 s5, s3, 1
    s_lshl_b32 s5, s5, 2
    s_and_b32 s6, s4, 3
    s_add_u32 s5, s5, s6             ; rb
    s_lshr_b32 s7, s4, 2             ; j (0..7)
    s_and_b32 s3, s3, 1              ; half
    s_lshl_b32 s6, s3, 3
    s_add_u32 s6, s6, s7
    s_mul_i32 s8, s7, 7
    s_min_u32 s8, s8, 47             ; phi0
    v_and_b32 v1, 63, v0
    v_lshrrev_b32 v15, 6, v0
    v_lshlrev_b32 v12, 4, v1
    v_and_b32 v13, 15, v1
    v_lshrrev_b32 v14, 4, v1
    v_readfirstlane_b32 s4, v15      ; wave
    s_waitcnt lgkmcnt(0)
    ''')
    xo, xs = WS['X1T']
    srd(k, 56, 'ws', xs + 2048, xo - 2048)
    srd_ws(k, 60, 'WPF')
    srd_ws(k, 64, 'X1F')
    srd_ws(k, 76, 'CSP')
    srd_ws(k, 80, 'BIP')
    srd_ws(k, 88, 'STAT')
    k(f'''
    s_lshl_b32 s9, s5, 2
    s_add_u32 s9, s9, s4
    s_lshl_b32 s10, s4, 12
    s_lshl_b32 s11, s5, 8
    s_cmp_eq_u32 s3, 0
    s_cselect_b32 s13, 54, 0
    s_add_u32 s13, s13, s8
    s_lshl_b32 s12, s13, 10          ; B soffset
    v_and_b32 v16, 127, v0
    v_lshrrev_b32 v17, 4, v16
    v_min_u32 v17, 6, v17
    v_add_u32 v17, s13, v17          ; phi'
    v_lshrrev_b32 v18, 1, v17
    v_lshlrev_b32 v18, 5, v18        ; 32*beta
    v_and_b32 v17, 1, v17
    v_lshl_add_u32 v18, v17, 2, v18  ; +4h
    v_lshrrev_b32 v17, 2, v13
    v_lshl_add_u32 v18, v17, 3, v18  ; +8(i>>2)
    v_and_b32 v17, 3, v13
    v_add_u32 v18, v18, v17
    v_lshlrev_b32 v18, 2, v18        ; f*4
    s_mov_b32 s14, {1728*4}
    s_mov_b32 s15, {2*1728*4}
    s_mov_b32 s68, {3*1728*4}
    s_cmp_ge_u32 s4, 2
    s_cbranch_scc1 k3_cb
    buffer_load_dword v20, v18, s[76:79], 0 offen
    buffer_load_dword v21, v18, s[76:79], s14 offen
    buffer_load_dword v22, v18, s[76:79], s15 offen
    buffer_load_dword v23, v18, s[76:79], s68 offen
    s_branch k3_cj
k3_cb:
    buffer_load_dword v20, v18, s[80:83], 0 offen
    buffer_load_dword v21, v18, s[80:83], s14 offen
    buffer_load_dword v22, v18, s[80:83], s15 offen
    buffer_load_dword v23, v18, s[80:83], s68 offen
k3_cj:
    s_lshl_b32 s13, s4, 11
    v_add_u32 v2, s13, v12           ; B: 2048w + 16 lane
    ; A: (8w + (l>>4))*4096 + 16*((l&15) ^ (2(l>>4) + 8(w&1)))
    s_and_b32 s13, s4, 1
    s_lshl_b32 s13, s13, 3
    v_lshlrev_b32 v16, 1, v14
    v_add_u32 v16, s13, v16
    v_xor_b32 v16, v16, v13
    v_lshlrev_b32 v16, 4, v16
    v_lshl_add_u32 v3, v14, 12, v16
    s_lshl_b32 s13, s4, 15
    v_add_u32 v3, s13, v3
    v_add_u32 v4, {16384-1024}, v3
    ''')
    for st in range(NS):
        dma_stage(k, st)
    k(f'''
    ; x1f dump voffset: tau0*1024 + 16 lane
    s_lshl_b32 s13, s9, 11
    v_add_u32 v5, s13, v12
    ; tr-read addr: kq*4096 + 2048 + 256 rr + 16*((4w + (c>>1)) ^ (2rr + 8(kq&1))) + 8(c&1)
    v_bfe_u32 v16, v1, 2, 2          ; rr
    v_bfe_u32 v17, v1, 1, 1          ; c>>1
    s_lshl_b32 s13, s4, 2
    v_add_u32 v17, s13, v17          ; U (a=0)
    v_and_b32 v18, 1, v14
    v_lshlrev_b32 v18, 3, v18
    v_lshl_add_u32 v18, v16, 1, v18  ; f
    v_xor_b32 v17, v17, v18
    v_lshlrev_b32 v6, 4, v17
    v_lshl_add_u32 v6, v16, 8, v6
    v_lshl_add_u32 v6, v14, 12, v6
    v_and_b32 v18, 1, v1
    v_lshl_add_u32 v6, v18, 3, v6
    v_add_u32 v6, 2048, v6
    v_xor_b32 v7, 32, v6
    v_add_u32 v8, {3*SLOT}, v6
    v_add_u32 v9, {3*SLOT}, v7
    v_mov_b32 v10, v12
    v_add_u32 v11, {3*SLOT}, v12
    v_mov_b32 v{ONES}, 0x3f803f80
    v_mov_b32 v{ONES+1}, 0x3f803f80
    v_mov_b32 v{ONES+2}, 0x3f803f80
    v_mov_b32 v{ONES+3}, 0x3f803f80
    s_mov_b32 s70, {f32(C0)}
    s_mov_b32 s71, {f32(C0)}
    s_mov_b32 s72, {f32(C1)}
    s_mov_b32 s73, {f32(C1)}
    s_mov_b32 s74, 1.0
    s_mov_b32 s75, 1.0
    s_waitcnt vmcnt({4*NS})
    v_add_f32 v20, v20, v21
    v_add_f32 v22, v22, v23
    v_add_f32 v20, v20, v22
    v_lshlrev_b32 v16, 2, v0
    ds_write_b32 v16, v20 offset:{CONST % 65536}
    '''.replace(f'ds_write_b32 v16, v20 offset:{CONST % 65536}', f'v_add_u32 v16, {CONST}, v16\nds_write_b32 v16, v20'))
    k('''
    s_cmp_eq_u32 s3, 0
    s_cbranch_scc1 k3_z2
    ''')
    srd_ws(k, 84, 'Z1F')
    mainloop(k, 1)
    epilogue_z1(k)
    k('k3_z2:')
    srd_ws(k, 84, 'Z2F')
    mainloop(k, 2)
    epilogue_z2(k)
    k('k3_exit:\ns_endpgm')
    return k
```

```python
from asmlib import Kern
from layout import WS
from gen_k1 import f32, load_ptrs, srd, srd_ws

K4_LDS = 84 * 1024


def reg(file_base, n):
    f, b = file_base
    return f'{f}[{b+n}:{b+n+3}]'


SETS = [('v', 16), ('v', 104), ('a', 112)]


def pair_loads(kp):
    S = SETS[kp % 3]
    L = []
    for c in range(4):
        for h in range(2):
            L.append(f'buffer_load_dwordx4 {reg(S, 44*h+4*c)}, v{4+c}, s[56:59], s11 offen offset:{64*(2*kp+h)}')
    for h in range(2):
        for b in range(7):
            v = 2 if b < 4 else 3
            L.append(f'buffer_load_dwordx4 {reg(S, 44*h+16+4*b)}, v{v}, s[60:63], s{12+h} offen offset:{1024*(b%4)}')
    L.append(f's_add_u32 s12, s12, {2*54*1024}\ns_add_u32 s13, s13, {2*54*1024}')
    return L


def make_k4():
    k = Kern('gemm2_kernel', 256, 256, K4_LDS)
    k('''
    s_cmp_ge_u32 s2, 256
    s_cbranch_scc1 k4_exit
    ''')
    load_ptrs(k)
    k(f'''
    s_and_b32 s3, s2, 7
    s_lshr_b32 s4, s2, 3
    s_lshr_b32 s5, s3, 1
    s_lshl_b32 s5, s5, 3
    s_and_b32 s6, s4, 7
    s_add_u32 s5, s5, s6             ; g
    s_and_b32 s3, s3, 1
    s_lshl_b32 s3, s3, 2
    s_lshr_b32 s7, s4, 3
    s_add_u32 s7, s7, s3             ; j
    s_mul_i32 s8, s7, 7
    s_min_u32 s8, s8, 47             ; phi0
    v_and_b32 v1, 63, v0
    v_lshrrev_b32 v15, 6, v0
    v_lshlrev_b32 v2, 4, v1
    v_add_u32 v3, 4096, v2
    v_and_b32 v13, 15, v1            ; i
    v_lshrrev_b32 v14, 4, v1         ; q
    v_readfirstlane_b32 s4, v15      ; wave
    v_lshrrev_b32 v8, 2, v13
    v_lshlrev_b32 v8, 3, v8
    v_and_b32 v9, 3, v13
    v_add_u32 v8, v8, v9
    v_lshlrev_b32 v4, 12, v8
    v_lshl_add_u32 v4, v14, 4, v4
    v_add_u32 v5, {4*4096}, v4
    v_add_u32 v6, {32*4096}, v4
    v_add_u32 v7, {36*4096}, v4
    s_waitcnt lgkmcnt(0)
    ''')
    srd(k, 56, 'wsp', 2048 * 4096)
    srd_ws(k, 60, 'Z2F')
    srd_ws(k, 64, 'Z1F')
    srd_ws(k, 68, 'PF')
    srd(k, 72, 'bsp', 4096)
    k(f'''
    s_lshl_b32 s11, s5, 18           ; 64g*4096
    s_lshl_b32 s9, s4, 10            ; 64*16w
    s_add_u32 s11, s11, s9
    s_mul_i32 s12, s4, {16*54}
    s_add_u32 s12, s12, s8
    s_lshl_b32 s12, s12, 10
    s_add_u32 s13, s12, {54*1024}
    s_lshl_b32 s9, s5, 2
    s_add_u32 s9, s9, s4
    s_lshl_b32 s10, s9, 10
    v_add_u32 v10, s10, v2
    s_lshr_b32 s14, s4, 1
    s_lshl_b32 s14, s14, 5
    s_and_b32 s15, s4, 1
    s_lshl_b32 s15, s15, 2
    s_add_u32 s14, s14, s15
    s_lshl_b32 s15, s5, 6
    s_add_u32 s14, s14, s15
    s_lshl_b32 s14, s14, 1
    v_lshlrev_b32 v9, 1, v8
    buffer_load_ushort v206, v9, s[72:75], s14 offen
    ''')
    for b in range(7):
        k(f'''
        s_add_u32 s14, s8, {b}
        s_lshr_b32 s15, s14, 1
        s_lshl_b32 s15, s15, 17
        s_and_b32 s14, s14, 1
        s_lshl_b32 s14, s14, 3
        s_add_u32 s{76+b}, s14, s15
        buffer_load_dwordx2 v[{192+2*b}:{193+2*b}], v10, s[64:67], s{76+b} offen
        ''')
    for kp in range(2):
        for l in pair_loads(kp):
            k(l)
    for kp in range(8):
        S = SETS[kp % 3]
        nxt = pair_loads(kp + 2) if kp + 2 < 8 else []
        later = 22 if kp + 1 < 8 else 0
        cnt = 0
        for h in range(2):
            issued_now = len([x for x in nxt[:cnt] if x.startswith('buffer')])
            n = later + (7 if h == 0 else 0) + issued_now
            k(f's_waitcnt vmcnt({n})')
            m = 0
            for c in range(4):
                for b in range(7):
                    a = 4 * (7 * c + b)
                    cc = '0' if (kp == 0 and h == 0) else f'a[{a}:{a+3}]'
                    k(f'v_mfma_f32_16x16x32_bf16 a[{a}:{a+3}], {reg(S, 44*h+16+4*b)}, {reg(S, 44*h+4*c)}, {cc}')
                    m += 1
                    if m % 2 == 0 and cnt < len(nxt):
                        k(nxt[cnt])
                        cnt += 1
        while cnt < len(nxt):
            k(nxt[cnt])
            cnt += 1
    for w in range(4):
        k(f'''
        s_cmp_eq_u32 s4, {w}
        s_cbranch_scc0 k4_red_{w}''')
        for c in range(4):
            if c == w:
                continue
            src = (w - c - 1) % 4
            k(f'v_add_u32 v11, {(c*3+src)*7168}, v2')
            for b in range(7):
                a = 4 * (7 * c + b)
                k(f'ds_write_b128 v11, a[{a}:{a+3}] offset:{1024*b}')
        for n in range(28):
            k(f'v_accvgpr_read_b32 v{16+n}, a{28*w+n}')
        k(f'k4_red_{w}:')
    k(f'''
    s_mul_i32 s14, s4, {3*7168}
    v_add_u32 v11, s14, v2
    v_lshlrev_b32 v206, 16, v206
    v_mov_b32 v207, v206
    s_waitcnt lgkmcnt(0)
    s_barrier
    ''')
    for b in range(7):
        for s in range(3):
            r = 48 + 12 * b + 4 * s
            k(f'ds_read_b128 v[{r}:{r+3}], v11 offset:{s*7168+1024*b}')
    for b in range(7):
        k(f's_waitcnt lgkmcnt({min(15, 18-3*b)})')
        o = 16 + 4 * b
        r = 48 + 12 * b
        for p in range(2):
            k(f'''
            v_pk_add_f32 v[{o+2*p}:{o+2*p+1}], v[{o+2*p}:{o+2*p+1}], v[{r+2*p}:{r+2*p+1}]
            v_pk_add_f32 v[{r+4+2*p}:{r+4+2*p+1}], v[{r+4+2*p}:{r+4+2*p+1}], v[{r+8+2*p}:{r+8+2*p+1}]
            v_pk_add_f32 v[{o+2*p}:{o+2*p+1}], v[{o+2*p}:{o+2*p+1}], v[206:207]
            v_lshlrev_b32 v{r}, 16, v{192+2*b+p}
            v_and_b32 v{r+1}, 0xffff0000, v{192+2*b+p}
            v_pk_add_f32 v[{o+2*p}:{o+2*p+1}], v[{o+2*p}:{o+2*p+1}], v[{r+4+2*p}:{r+4+2*p+1}]
            v_pk_mul_f32 v[{o+2*p}:{o+2*p+1}], v[{o+2*p}:{o+2*p+1}], v[{r}:{r+1}]
            v_cvt_pk_bf16_f32 v{192+2*b+p}, v{o+2*p}, v{o+2*p+1}
            ''')
        k(f'buffer_store_dwordx2 v[{192+2*b}:{193+2*b}], v10, s[68:71], s{76+b} offen')
    k('k4_exit:\ns_endpgm')
    return k
```

```python
from asmlib import Kern
from layout import WS
from gen_k1 import f32, load_ptrs, srd, srd_ws

K5_LDS = 60 * 1024
SETS = [('v', 16), ('v', 52), ('v', 88), ('v', 124), ('v', 160), ('a', 80), ('a', 116)]


def reg(S, n):
    return f'{S[0]}[{S[1]+n}:{S[1]+n+3}]'


def kloads(ks):
    S = SETS[ks]
    L = []
    for c in range(4):
        L.append(f'buffer_load_dwordx4 {reg(S, 20+4*c)}, v2, s[60:63], s12 offen offset:{1024*c}')
    for b in range(5):
        v = 2 if b < 4 else 3
        L.append(f'buffer_load_dwordx4 {reg(S, 4*b)}, v{v}, s[56:59], s11 offen offset:{1024*(b%4)}')
    L.append(f's_add_u32 s11, s11, {40*1024}\ns_add_u32 s12, s12, {128*1024}')
    return L


def make_k5():
    k = Kern('gemm3_kernel', 256, 256, K5_LDS)
    k('''
    s_cmp_ge_u32 s2, 256
    s_cbranch_scc1 k5_exit
    ''')
    load_ptrs(k)
    k(f'''
    s_and_b32 s3, s2, 7
    s_lshr_b32 s4, s2, 3
    s_lshr_b32 s5, s3, 1
    s_lshl_b32 s5, s5, 3
    s_and_b32 s6, s4, 7
    s_add_u32 s5, s5, s6             ; g
    s_and_b32 s3, s3, 1
    s_lshl_b32 s3, s3, 2
    s_lshr_b32 s7, s4, 3
    s_add_u32 s7, s7, s3             ; e
    s_mul_i32 s8, s7, 5              ; delta0
    v_and_b32 v1, 63, v0
    v_lshrrev_b32 v15, 6, v0
    v_lshlrev_b32 v2, 4, v1
    v_add_u32 v3, 4096, v2
    v_and_b32 v13, 15, v1            ; i
    v_lshrrev_b32 v14, 4, v1         ; q
    v_readfirstlane_b32 s4, v15      ; wave
    v_lshrrev_b32 v8, 2, v13
    v_lshlrev_b32 v8, 3, v8
    v_and_b32 v9, 3, v13
    v_add_u32 v8, v8, v9             ; row_local
    v_mul_u32_u24 v4, 1280, v8
    v_lshl_add_u32 v4, v14, 4, v4
    v_lshlrev_b32 v5, 5, v14
    s_waitcnt lgkmcnt(0)
    ''')
    srd_ws(k, 56, 'WOF')
    srd_ws(k, 60, 'PF')
    srd_ws(k, 64, 'X1F')
    srd_ws(k, 68, 'MODF')
    srd(k, 72, 'out', 2048 * 1280)
    k(f'''
    s_mul_i32 s9, s4, 7              ; beta0
    s_mul_i32 s11, s9, 40
    s_add_u32 s11, s11, s8
    s_lshl_b32 s11, s11, 10
    s_lshl_b32 s12, s9, 7
    s_lshl_b32 s10, s5, 2
    s_add_u32 s12, s12, s10
    s_lshl_b32 s12, s12, 10
    ; tau = 4g+w
    s_add_u32 s10, s10, s4
    s_lshl_b32 s10, s10, 10
    v_add_u32 v10, s10, v2
    s_lshr_b32 s14, s4, 1
    s_lshl_b32 s14, s14, 5
    s_and_b32 s15, s4, 1
    s_lshl_b32 s15, s15, 2
    s_add_u32 s14, s14, s15
    s_lshl_b32 s15, s5, 6
    s_add_u32 s14, s14, s15
    s_mul_i32 s13, s14, 1280
    ''')
    for l in kloads(0):
        k(l)
    for b in range(5):
        k(f'''
        s_add_u32 s14, s8, {b}
        s_lshr_b32 s15, s14, 1           ; dblk
        s_and_b32 s14, s14, 1            ; h
        s_lshl_b32 s76, s15, 17
        s_lshl_b32 s77, s14, 3
        s_add_u32 s76, s76, s77
        buffer_load_dwordx2 v[{196+2*b}:{197+2*b}], v10, s[64:67], s76 offen
        s_lshl_b32 s76, s15, 6
        s_add_u32 s76, s76, s77
        s_add_u32 s{80+b}, s76, s13
        s_lshl_b32 s76, s76, 1
        s_add_u32 s76, s76, {5*640*4}
        buffer_load_dwordx4 v[{208+4*b}:{211+4*b}], v5, s[68:71], s76 offen
        ''')
    for ks in range(1, 5):
        for l in kloads(ks):
            k(l)
    for ks in range(7):
        S = SETS[ks]
        if ks == 0:
            n = 10 + 36
        else:
            issued_ksteps = min(5 + ks, 7)
            n = 9 * (issued_ksteps - 1 - ks)
        k(f's_waitcnt vmcnt({n})')
        nxt = kloads(ks + 5) if ks + 5 < 7 else []
        cnt = 0
        m = 0
        for c in range(4):
            for b in range(5):
                a = 4 * (5 * c + b)
                cc = '0' if ks == 0 else f'a[{a}:{a+3}]'
                k(f'v_mfma_f32_16x16x32_bf16 a[{a}:{a+3}], {reg(S, 4*b)}, {reg(S, 20+4*c)}, {cc}')
                m += 1
                if m % 2 == 0 and cnt < len(nxt):
                    k(nxt[cnt])
                    cnt += 1
    for w in range(4):
        k(f'''
        s_cmp_eq_u32 s4, {w}
        s_cbranch_scc0 k5_red_{w}''')
        for c in range(4):
            if c == w:
                continue
            src = (w - c - 1) % 4
            for b in range(5):
                a = 4 * (5 * c + b)
                k(f'ds_write_b128 v2, a[{a}:{a+3}] offset:{(c*3+src)*5120+1024*b}')
        for n in range(20):
            k(f'v_accvgpr_read_b32 v{16+n}, a{20*w+n}')
        k(f'k5_red_{w}:')
    k(f'''
    s_mul_i32 s14, s4, {3*5120}
    v_add_u32 v11, s14, v2
    s_waitcnt lgkmcnt(0)
    s_barrier
    ''')
    for b in range(5):
        for s in range(3):
            r = 48 + 12 * b + 4 * s
            k(f'ds_read_b128 v[{r}:{r+3}], v11 offset:{s*5120+1024*b}')
    for b in range(5):
        k(f's_waitcnt lgkmcnt({12-3*b})')
        o = 16 + 4 * b
        r = 48 + 12 * b
        for p in range(2):
            k(f'''
            v_pk_add_f32 v[{o+2*p}:{o+2*p+1}], v[{o+2*p}:{o+2*p+1}], v[{r+2*p}:{r+2*p+1}]
            v_pk_add_f32 v[{r+4+2*p}:{r+4+2*p+1}], v[{r+4+2*p}:{r+4+2*p+1}], v[{r+8+2*p}:{r+8+2*p+1}]
            v_lshlrev_b32 v{r}, 16, v{196+2*b+p}
            v_and_b32 v{r+1}, 0xffff0000, v{196+2*b+p}
            v_pk_add_f32 v[{o+2*p}:{o+2*p+1}], v[{o+2*p}:{o+2*p+1}], v[{r+4+2*p}:{r+4+2*p+1}]
            v_pk_fma_f32 v[{o+2*p}:{o+2*p+1}], v[{o+2*p}:{o+2*p+1}], v[{208+4*b+2*p}:{209+4*b+2*p}], v[{r}:{r+1}]
            v_cvt_pk_bf16_f32 v{196+2*b+p}, v{o+2*p}, v{o+2*p+1}
            ''')
        k(f'buffer_store_dwordx2 v[{196+2*b}:{197+2*b}], v4, s[72:75], s{80+b} offen')
    k('k5_exit:\ns_endpgm')
    return k
```

```python
L, D, N, F, FH = 2048, 640, 128, 1728, 864


def _al(x, a=4096):
    return (x + a - 1) // a * a


_off = 0
WS = {}


def _add(name, size):
    global _off
    WS[name] = (_off, size)
    _off = _al(_off + size)


KR_STRIDE = 4128

_add('MODP', 4 * 3840 * 4)
_add('MODF', 3840 * 4)
_add('XT', D * L * 2)
_add('XNT', D * L * 2)
_add('KR', D * KR_STRIDE)
_add('WOF', 27 * 40 * 1024)
_add('WPF', 20 * 108 * 1024)
_add('CSP', 4 * F * 4)
_add('BIP', 4 * F * 4)
_add('X1T', D * L * 2)
_add('X1F', 20 * 128 * 1024)
_add('Z1F', 27 * 128 * 1024)
_add('Z2F', 64 * 54 * 1024)
_add('PF', 27 * 128 * 1024)
_add('STAT', 16 * 4 * 8 * 32 * 8)
WS_END = _off
```

```python
import sys
sys.path.insert(0, 'dev')
from asmlib import assemble_file
import gen_k1
NAME = 'adaLN_cond__ssm_conv_s4__mixer_gmlp__prompt'
def header():
    ref = open('cdna_kernels/%s.s.ref' % NAME).read().split('\n')
    h = []
    for l in ref:
        if l.startswith('; Override launch'):
            break
        h.append(l)
    return '\n'.join(h) + '\n'
def build(out, which=None):
    ks = [gen_k1.make_k1()]
    try:
        import gen_k2; ks.append(gen_k2.make_k2())
        import gen_k3; ks.append(gen_k3.make_k3())
        import gen_k4; ks.append(gen_k4.make_k4())
        import gen_k5; ks.append(gen_k5.make_k5())
    except ImportError as e:
        print('partial build:', e)
    if which: ks = ks[:which]
    txt = assemble_file(ks, header())
    open(out, 'w').write(txt)
    for k in ks:
        print(k.name, 'vgpr/agpr/sgpr/ninst', k.stats, 'grid', k.grid, 'lds', k.lds)
if __name__ == '__main__':
    out = sys.argv[1] if len(sys.argv) > 1 else 'cdna_kernels/%s.s' % NAME
    build(out, int(sys.argv[2]) if len(sys.argv) > 2 else None)
```

```python
import re

REG_RE = re.compile(r'\b([vas])(\d+)\b|\b([vas])\[(\d+):(\d+)\]|\b(vcc|exec|m0|scc)\b')

TRANS = ('v_exp_f32', 'v_log_f32', 'v_rcp_f32', 'v_rsq_f32', 'v_sqrt_f32', 'v_sin_f32', 'v_cos_f32',
         'v_rcp_iflag_f32', 'v_exp_f16', 'v_log_f16', 'v_rcp_f16', 'v_rsq_f16', 'v_sqrt_f16')


def regs_of(tok):
    out = []
    for m in REG_RE.finditer(tok):
        if m.group(1):
            out.append((m.group(1), int(m.group(2))))
        elif m.group(3):
            for i in range(int(m.group(4)), int(m.group(5)) + 1):
                out.append((m.group(3), i))
        else:
            n = m.group(6)
            if n == 'vcc':
                out += [('vcc', 0)]
            elif n == 'exec':
                out += [('exec', 0)]
            else:
                out += [(n, 0)]
    return out


def split_ops(s):
    ops, depth, cur = [], 0, ''
    for ch in s:
        if ch == '[':
            depth += 1
        elif ch == ']':
            depth -= 1
        if ch == ',' and depth == 0:
            ops.append(cur.strip())
            cur = ''
        else:
            cur += ch
    if cur.strip():
        ops.append(cur.strip())
    return ops


class Inst:
    __slots__ = ('text', 'mn', 'reads', 'writes', 'kind', 'passes', 'srcc', 'srcab', 'dpp', 'is_label', 'label',
                 'target', 'nops', 'sdata', 'opsel', 'lanesel', 'cond')

    def __init__(self, text):
        self.text = text
        t = text.split(';')[0].strip()
        self.is_label = t.endswith(':')
        self.label = t[:-1] if self.is_label else None
        self.reads, self.writes = [], []
        self.kind = 'other'
        self.passes = 0
        self.srcc, self.srcab, self.sdata, self.lanesel = [], [], [], []
        self.dpp = False
        self.opsel = False
        self.target = None
        self.cond = False
        self.nops = 1
        self.mn = ''
        if self.is_label or not t or t.startswith('.'):
            self.kind = 'none'
            self.nops = 0
            return
        parts = t.split(None, 1)
        mn = parts[0]
        self.mn = mn
        rest = parts[1] if len(parts) > 1 else ''
        ops = split_ops(rest)
        R = lambda i: regs_of(ops[i]) if i < len(ops) else []
        allr = lambda a: [r for o in ops[a:] for r in regs_of(o.split(' ')[0] if False else o)]
        if mn == 's_nop':
            self.kind = 'nop'
            self.nops = int(ops[0], 0) + 1
        elif mn in ('s_branch',) or mn.startswith('s_cbranch'):
            self.kind = 'branch'
            self.target = ops[0]
            self.cond = mn != 's_branch'
            if 'vcc' in mn:
                self.reads = [('vcc', 0)]
        elif mn == 's_endpgm':
            self.kind = 'end'
        elif mn.startswith('v_mfma'):
            self.kind = 'mfma'
            self.writes = R(0)
            self.srcab = R(1) + R(2)
            self.srcc = regs_of(ops[3].split(' ')[0])
            self.reads = self.srcab + self.srcc
            if '16x16x32' in mn or '16x16x16' in mn:
                self.passes = 4
            elif '32x32x16' in mn or '32x32x8' in mn:
                self.passes = 8
            else:
                raise ValueError('unknown mfma ' + mn)
        elif mn.startswith('v_'):
            self.kind = 'valu'
            if mn.replace('_e32', '').replace('_e64', '') in TRANS:
                self.kind = 'trans'
            self.dpp = '_dpp' in mn or 'row_' in rest or 'quad_perm' in rest or 'wave_' in rest
            self.opsel = '_sdwa' in mn or ('op_sel' in rest and not mn.startswith('v_pk_'))
            if mn.startswith('v_cmp'):
                self.writes = R(0)
                self.reads = allr(1)
                if mn.startswith('v_cmpx'):
                    raise ValueError('v_cmpx not supported by hazard pass')
            elif mn.startswith('v_readfirstlane') or mn.startswith('v_readlane'):
                self.kind = 'readlane'
                self.writes = R(0)
                self.reads = allr(1)
                self.lanesel = R(2)
            elif mn.startswith('v_writelane'):
                self.writes = R(0)
                self.reads = allr(1) + R(0)
                self.lanesel = R(2)
            elif mn.startswith('v_permlane') or mn.startswith('v_swap'):
                self.kind = 'permlane'
                self.writes = R(0) + R(1)
                self.reads = R(0) + R(1)
            elif re.match(r'v_(add|sub|subrev)_co_u32|v_(addc|subb|subbrev)_co_u32|v_mad_u64_u32|v_div_scale', mn):
                self.writes = R(0) + R(1)
                self.reads = allr(2)
            else:
                self.writes = R(0)
                self.reads = allr(1)
                if re.match(r'v_(fmac|pk_fmac|dot2c|mac|fmamk|dot4c)', mn) or self.dpp or '_sdwa' in mn:
                    self.reads = self.reads + R(0)
        elif mn.startswith('buffer_') or mn.startswith('global_') or mn.startswith('flat_'):
            self.kind = 'vmem'
            isl = ' lds' in (' ' + rest) or 'load_lds' in mn
            if mn in ('buffer_inv', 'buffer_wbl2'):
                pass
            elif 'load' in mn and not isl:
                self.writes = R(0)
                self.reads = allr(1)
                if 'd16' in mn:
                    self.reads = self.reads + R(0)
            elif isl:
                self.reads = allr(0) + [('m0', 0)]
                self.kind = 'ldsdma'
            elif 'store' in mn:
                self.reads = allr(0)
                d = R(0) if mn.startswith('buffer_') else R(1)
                if 'x3' in mn or 'x4' in mn:
                    self.sdata = d
            elif 'atomic' in mn:
                self.reads = allr(0)
                if 'sc0' in rest:
                    self.writes = R(0)
            else:
                raise ValueError('unknown vmem ' + text)
        elif mn.startswith('ds_'):
            self.kind = 'ds'
            if mn.startswith('ds_read') or mn.startswith('ds_bpermute') or mn.startswith('ds_permute') or mn.startswith('ds_swizzle'):
                self.writes = R(0)
                self.reads = allr(1)
                if 'd16' in mn:
                    self.reads = self.reads + R(0)
            else:
                self.reads = allr(0)
        elif mn.startswith('s_'):
            self.kind = 'salu'
            if mn.startswith('s_cmp') or mn in ('s_waitcnt', 's_barrier', 's_sleep', 's_setprio', 's_bitcmp0_b32', 's_bitcmp1_b32'):
                self.reads = allr(0)
            elif mn.startswith('s_load') or mn.startswith('s_buffer_load') or mn.startswith('s_memtime') or mn.startswith('s_memrealtime'):
                self.kind = 'smem'
                self.writes = R(0)
                self.reads = allr(1)
            elif 'saveexec' in mn:
                self.writes = R(0) + [('exec', 0)]
                self.reads = allr(1) + [('exec', 0)]
            else:
                self.writes = R(0)
                self.reads = allr(1)
        else:
            raise ValueError('unknown instr: ' + text)


BIG = 64


def required_gap(hist, ins):
    need = 0

    def chk(key, req):
        nonlocal need
        a = hist.get(key)
        if a is not None and a < req:
            need = max(need, req - a)

    k = ins.kind
    isvalu = k in ('valu', 'trans', 'readlane', 'permlane')
    vr = [r for r in ins.reads if r[0] in 'va']
    vw = [r for r in ins.writes if r[0] in 'va']
    sr = [r for r in ins.reads if r[0] in ('s', 'vcc')]
    if k == 'mfma':
        for r in ins.reads:
            chk(('valu_w', r), 2)
        for r in ins.srcab:
            chk(('mfma4_w', r), 8)
            chk(('mfma8_w', r), 12)
        sig = (ins.passes, tuple(ins.srcc))
        for r in ins.srcc:
            for p, req in ((4, 6), (8, 10)):
                a = hist.get(('mfma%d_w' % p, r))
                if a is not None and a < req:
                    if hist.get(('mfma_sig', r)) == sig and a is not None:
                        continue
                    need = max(need, req - a)
        chk(('valu_exec', 0), 4)
    if isvalu or k in ('vmem', 'ds', 'ldsdma'):
        for r in vr:
            chk(('mfma4_w', r), 8)
            chk(('mfma8_w', r), 12)
        for r in vw:
            chk(('mfma4_w', r), 8)
            chk(('mfma8_w', r), 12)
    if isvalu:
        for r in vw:
            chk(('mfma4_c', r), 3)
            chk(('mfma8_c', r), 7)
            chk(('store_d', r), 2)
        if k != 'trans':
            for r in vr:
                chk(('trans_w', r), 1)
        for r in vr + vw:
            chk(('opsel_w', r), 1)
        for r in sr:
            chk(('valu_sw', r), 2)
        for r in ins.lanesel:
            chk(('valu_sw', r), 4)
        if ins.dpp:
            for r in vr:
                chk(('valu_w', r), 2)
        if k == 'permlane':
            for r in vr:
                chk(('valu_w', r), 2)
        if k == 'readlane':
            for r in vr:
                chk(('valu_w', r), 1)
    if k in ('vmem', 'ds', 'ldsdma'):
        for r in vw:
            chk(('store_d', r), 1)
    if k in ('vmem', 'ldsdma'):
        for r in sr:
            chk(('valu_sw', r), 5)
    if k == 'ldsdma':
        chk(('salu_m0', 0), 1)
    if k in ('salu', 'smem', 'branch'):
        for r in sr:
            chk(('valu_sw', r), 1)
    return need


def step(hist, ins):
    n = ins.nops
    h = {}
    for key, a in hist.items():
        if key[0] == 'mfma_sig':
            h[key] = a
            continue
        a2 = a + n
        if a2 < 24:
            h[key] = a2
    k = ins.kind
    isvalu = k in ('valu', 'trans', 'readlane', 'permlane')
    if isvalu:
        for r in ins.writes:
            if r[0] in 'va':
                h[('valu_w', r)] = 0
                h.pop(('mfma_sig', r), None)
                if k == 'trans':
                    h[('trans_w', r)] = 0
                if ins.opsel:
                    h[('opsel_w', r)] = 0
            elif r[0] in ('s', 'vcc'):
                h[('valu_sw', r)] = 0
            elif r[0] == 'exec':
                h[('valu_exec', 0)] = 0
    if k == 'mfma':
        sig = (ins.passes, tuple(ins.writes))
        for r in ins.writes:
            h[('mfma%d_w' % ins.passes, r)] = 0
            h[('mfma_sig', r)] = sig
        for r in ins.srcc:
            h[('mfma%d_c' % ins.passes, r)] = 0
    if ins.sdata:
        for r in ins.sdata:
            h[('store_d', r)] = 0
    if k == 'salu':
        for r in ins.writes:
            if r[0] == 'm0':
                h[('salu_m0', 0)] = 0
            h.pop(('valu_sw', r), None)
    for key in [x for x in h if x[0] == 'mfma_sig']:
        r = key[1]
        if ('mfma4_w', r) not in h and ('mfma8_w', r) not in h:
            del h[key]
    return h


def merge(h1, h2):
    if h1 is None:
        return dict(h2), True
    changed = False
    out = dict(h1)
    for k, v in h2.items():
        if k[0] == 'mfma_sig':
            if k in out and out[k] != v:
                out[k] = None
                changed = True
            elif k not in out:
                out[k] = v
                changed = True
            continue
        if k not in out or v < out[k]:
            out[k] = v
            changed = True
    return out, changed


def fix_hazards(lines):
    insts = [Inst(l) for l in lines]
    for _ in range(50):
        labels = {i.label: n for n, i in enumerate(insts) if i.is_label}
        state = [None] * (len(insts) + 1)
        state[0] = {}
        work = [0]
        while work:
            n = work.pop()
            h = state[n]
            while n < len(insts):
                ins = insts[n]
                if ins.kind == 'end':
                    break
                need = required_gap(h, ins) if ins.kind != 'none' else 0
                hh = h
                if need:
                    hh = {k: (v if k[0] == 'mfma_sig' else v + need) for k, v in h.items()}
                h2 = step(hh, ins) if ins.kind != 'none' else hh
                if ins.kind == 'branch':
                    t = labels[ins.target]
                    m, ch = merge(state[t], h2)
                    if ch:
                        state[t] = m
                        work.append(t)
                    if not ins.cond:
                        break
                nxt = n + 1
                if nxt < len(insts) and insts[nxt].is_label:
                    m, ch = merge(state[nxt], h2)
                    if ch:
                        state[nxt] = m
                        work.append(nxt)
                    break
                state[nxt] = h2
                h = h2
                n = nxt
        out, changed = [], False
        for n, ins in enumerate(insts):
            if ins.kind not in ('none',) and state[n] is not None:
                need = required_gap(state[n], ins)
                while need > 0:
                    k = min(need, 16)
                    out.append(Inst('    s_nop %d' % (k - 1)))
                    need -= k
                    changed = True
            out.append(ins)
        insts = out
        if not changed:
            break
    return [i.text for i in insts]


class Kern:
    def __init__(self, name, grid, block, lds, vgpr=256, agpr=0, sgpr=96):
        self.name, self.grid, self.block, self.lds = name, grid, block, lds
        self.vgpr, self.agpr, self.sgpr = vgpr, agpr, sgpr
        self.L = []
        self._lab = 0
        self.stamp_v = 252
        self.stamp_s = None
        import os
        self.store_flag = os.environ.get('STORE_FLAG', '')

    def __call__(self, s):
        for line in s.strip('\n').split('\n'):
            t = line.strip()
            if not t or t.startswith(';'):
                continue
            if t.startswith('buffer_store') and self.store_flag and 'sc1' not in t:
                t = t.split(';')[0].rstrip() + ' ' + self.store_flag
            if t.endswith(':'):
                self.L.append(t)
            else:
                self.L.append('    ' + t)

    def stamp(self, idx, vreg=None):
        import os
        if not os.environ.get('STAMP'):
            return
        if self.stamp_s is not None:
            self(f'''
            s_memtime s[100:101]
            s_waitcnt lgkmcnt(0)
            s_mov_b32 s{self.stamp_s+idx}, s100''')
            return
        v = vreg if vreg is not None else self.stamp_v
        self(f'''
        s_memtime s[100:101]
        s_waitcnt lgkmcnt(0)
        v_writelane_b32 v{v}, s100, {idx}''')

    def stamp_flush(self, kidx, ws_ptr=52, vreg=None):
        import os
        if not os.environ.get('STAMP'):
            return
        from layout import WS
        v = vreg if vreg is not None else self.stamp_v
        off, size = WS['DBG']
        if self.stamp_s is not None:
            self('s_mov_b64 exec, -1')
            for i in range(6):
                self(f'v_writelane_b32 v{v}, s{self.stamp_s+i}, {i}')
        self(f'''
        s_add_u32 s96, s{ws_ptr}, {off}
        s_addc_u32 s97, s{ws_ptr+1}, 0
        s_mov_b32 s98, {size}
        s_mov_b32 s99, 0x00020000
        v_lshrrev_b32 v{v-1}, 6, v0
        v_lshlrev_b32 v{v-1}, 6, v{v-1}
        v_and_b32 v{v-2}, 63, v0
        v_lshl_add_u32 v{v-1}, v{v-2}, 2, v{v-1}
        s_lshl_b32 s100, s2, 8
        s_add_u32 s100, s100, {kidx*1100*256}
        v_cmp_gt_u32 vcc, 16, v{v-2}
        s_and_saveexec_b64 s[94:95], vcc
        buffer_store_dword v{v}, v{v-1}, s[96:99], s100 offen
        s_mov_b64 exec, s[94:95]''')

    def label(self, base):
        self._lab += 1
        return '%s_%s_%d' % (self.name[:8], base, self._lab)

    def body(self):
        return fix_hazards(self.L)

    def text(self):
        body = self.body()
        maxv = maxa = maxs = -1
        for l in body:
            t = l.split(';')[0]
            for r in regs_of(t):
                if r[0] == 'v':
                    maxv = max(maxv, r[1])
                elif r[0] == 'a':
                    maxa = max(maxa, r[1])
                elif r[0] == 's':
                    maxs = max(maxs, r[1])
        acc_off = max(4, (maxv + 1 + 3) // 4 * 4)
        nfv = acc_off + (maxa + 1) if maxa >= 0 else maxv + 1
        assert maxv < 256 and maxa < 256 and maxs < 102, (maxv, maxa, maxs)
        self.stats = (maxv + 1, maxa + 1, maxs + 1, len(body))
        s = '.globl %s\n.p2align 8\n.type %s,@function\n%s:\n' % (self.name, self.name, self.name)
        s += '\n'.join(body) + '\n'
        kd = '''.amdhsa_kernel %s
  .amdhsa_next_free_vgpr %d
  .amdhsa_next_free_sgpr %d
  .amdhsa_accum_offset %d
  .amdhsa_group_segment_fixed_size 0
  .amdhsa_kernarg_size 152
  .amdhsa_user_sgpr_count 2
  .amdhsa_user_sgpr_kernarg_segment_ptr 1
  .amdhsa_system_sgpr_workgroup_id_x 1
  .amdhsa_float_denorm_mode_32 3
.end_amdhsa_kernel
''' % (self.name, nfv, max(maxs + 1, 16), acc_off)
        return s, kd


def assemble_file(kerns, header):
    out = header
    for k in kerns:
        out += '; @launch kernel=%s grid=(%d,1,1) block=(%d,1,1) lds=%d\n' % (k.name, k.grid, k.block, k.lds)
    out += '.amdgcn_target "amdgcn-amd-amdhsa--gfx950"\n.text\n'
    kds = []
    for k in kerns:
        s, kd = k.text()
        out += s
        kds.append(kd)
    out += '.section .rodata,"a"\n'
    for kd in kds:
        out += '.p2align 6\n' + kd
    return out
```

```python
from asmlib import Kern
from layout import WS, KR_STRIDE, XS, LBS
import struct


def f32(x):
    return '0x%08x' % struct.unpack('<I', struct.pack('<f', x))[0]


PTR = {n: 16 + 2 * i for i, n in enumerate(
    ['u', 'Are', 'Aim', 'Bre', 'Bim', 'Cre', 'Cim', 'logdt', 'Dskip', 'Bx', 'win', 'wsp', 'bsp', 'wout', 'c', 'wmod',
     'out', 'dbg', 'ws'])}

LOG2E = 1.4426950408889634
INV2PI = 0.15915494309189535


def load_ptrs(k):
    k('''
    s_load_dwordx16 s[16:31], s[0:1], 0
    s_load_dwordx16 s[32:47], s[0:1], 64
    s_load_dwordx4 s[48:51], s[0:1], 128
    s_load_dwordx2 s[52:53], s[0:1], 144
    ''')


def srd(k, d, ptr, size, off=0):
    p = PTR[ptr]
    if off:
        k(f'''
        s_add_u32 s{d}, s{p}, {off}
        s_addc_u32 s{d+1}, s{p+1}, 0''')
    else:
        k(f'''
        s_mov_b32 s{d}, s{p}
        s_mov_b32 s{d+1}, s{p+1}''')
    k(f'''
    s_mov_b32 s{d+2}, {size}
    s_mov_b32 s{d+3}, 0x00020000''')


def srd_ws(k, d, name):
    off, size = WS[name]
    srd(k, d, 'ws', size, off)


def dpp_sum16(k, v):
    for n in (8, 4, 2, 1):
        k(f'v_add_f32_dpp v{v}, v{v}, v{v} row_ror:{n} row_mask:0xf bank_mask:0xf')


N_LN1, N_MOD, N_WOF, N_KG = 128, 240, 54, 640
B_LN1 = N_KG
B_MOD = B_LN1 + N_LN1
B_WOF = B_MOD + N_MOD
K1_LDS = 32768


def role_ln1(k):
    RS = 1344
    srd(k, 56, 'u', 2048 * 1280)
    srd_ws(k, 60, 'XT')
    srd_ws(k, 64, 'XNT')
    k(f'''
    v_and_b32 v1, 15, v0
    v_lshrrev_b32 v2, 4, v0
    s_sub_u32 s9, s2, {B_LN1}
    s_mul_i32 s3, s9, {16*1280}
    v_mul_u32_u24 v3, 1280, v2
    v_lshl_add_u32 v3, v1, 4, v3
    ''')
    for i in range(5):
        k(f'buffer_load_dwordx4 v[{8+4*i}:{11+4*i}], v3, s[56:59], s3 offen offset:{256*i}')
    k(f'''
    v_mul_u32_u24 v4, {RS}, v2
    v_lshl_add_u32 v4, v1, 4, v4
    v_and_b32 v88, 63, v0            ; lane
    v_lshrrev_b32 v89, 6, v0         ; wave
    v_lshrrev_b32 v90, 4, v88        ; g
    v_bfe_u32 v91, v88, 2, 2         ; rr
    v_and_b32 v92, 3, v88            ; c
    v_lshrrev_b32 v93, 1, v90        ; g>>1
    v_and_b32 v94, 1, v90            ; g&1
    v_lshl_add_u32 v5, v93, 3, v91
    v_mul_u32_u24 v5, {RS}, v5
    v_lshl_add_u32 v5, v94, 5, v5
    v_lshl_add_u32 v5, v92, 3, v5
    v_lshl_add_u32 v5, v89, 6, v5
    v_and_b32 v6, 15, v88            ; i
    v_lshl_add_u32 v6, v94, 4, v6
    v_lshl_add_u32 v6, v89, 5, v6    ; d_local = 32w + 16(g&1) + i
    v_lshlrev_b32 v6, 5, v6
    v_lshl_add_u32 v6, v93, 4, v6
    s_mul_i32 s4, s9, {LBS}
    ''')
    for it in range(1, 5):
        k(f's_add_u32 s{4+it}, s4, {128*32*it}')
    for i in range(5):
        k(f'''s_waitcnt vmcnt({4-i})
        ds_write_b128 v4, v[{8+4*i}:{11+4*i}] offset:{256*i}''')
    k('''
    s_waitcnt lgkmcnt(0)
    s_barrier
    ''')

    def transpose(srdn, base):
        for it in range(5):
            k(f'''
            ds_read_b64_tr_b16 v[{base+4*it}:{base+4*it+1}], v5 offset:{256*it}
            ds_read_b64_tr_b16 v[{base+4*it+2}:{base+4*it+3}], v5 offset:{256*it+4*RS}''')
        for it in range(5):
            k(f'''
            s_waitcnt lgkmcnt({8-2*it})
            buffer_store_dwordx4 v[{base+4*it}:{base+4*it+3}], v6, s[{srdn}:{srdn+3}], s{4+it} offen''')

    k.stamp(1)
    transpose(60, 68)
    k.stamp(2)
    for j in range(20):
        k(f'''
        v_lshlrev_b32 v{28+2*j}, 16, v{8+j}
        v_and_b32 v{29+2*j}, 0xffff0000, v{8+j}''')
    k('v_pk_add_f32 v[8:9], v[28:29], v[30:31]')
    k('v_pk_add_f32 v[10:11], v[32:33], v[34:35]')
    for j in range(4, 20):
        a = 8 + 2 * (j & 1)
        k(f'v_pk_add_f32 v[{a}:{a+1}], v[{a}:{a+1}], v[{28+2*j}:{29+2*j}]')
    k('''
    v_pk_add_f32 v[8:9], v[8:9], v[10:11]
    v_add_f32 v8, v8, v9''')
    dpp_sum16(k, 8)
    k(f'''
    v_mul_f32 v10, {f32(-1.0/640)}, v8
    v_mov_b32 v11, v10''')
    for j in range(20):
        k(f'v_pk_add_f32 v[{28+2*j}:{29+2*j}], v[{28+2*j}:{29+2*j}], v[10:11]')
    k('v_pk_mul_f32 v[8:9], v[28:29], v[28:29]')
    k('v_pk_mul_f32 v[12:13], v[30:31], v[30:31]')
    for j in range(2, 20):
        a = 8 + 4 * (j & 1)
        k(f'v_pk_fma_f32 v[{a}:{a+1}], v[{28+2*j}:{29+2*j}], v[{28+2*j}:{29+2*j}], v[{a}:{a+1}]')
    k('''
    v_pk_add_f32 v[8:9], v[8:9], v[12:13]
    v_add_f32 v8, v8, v9''')
    dpp_sum16(k, 8)
    k(f'''
    v_mov_b32 v9, {f32(1e-5)}
    v_fmac_f32 v9, {f32(1.0/640)}, v8
    v_rsq_f32 v10, v9
    s_nop 0
    v_mov_b32 v11, v10''')
    for j in range(20):
        k(f'v_pk_mul_f32 v[{28+2*j}:{29+2*j}], v[{28+2*j}:{29+2*j}], v[10:11]')
    for j in range(20):
        k(f'v_cvt_pk_bf16_f32 v{8+j}, v{28+2*j}, v{29+2*j}')
    k('s_barrier')
    for i in range(5):
        k(f'ds_write_b128 v4, v[{8+4*i}:{11+4*i}] offset:{256*i}')
    k('''
    s_waitcnt lgkmcnt(0)
    s_barrier
    ''')
    k.stamp(3)
    transpose(64, 28)
    k.stamp(4)
    k('s_waitcnt vmcnt(0)')
    k.stamp(5)
    k.stamp_flush(0)
    k('s_endpgm')


def role_mod(k):
    srd(k, 56, 'wmod', 640 * 7680)
    srd(k, 60, 'c', 1280)
    srd_ws(k, 64, 'MODP')
    k(f'''
    s_sub_u32 s3, s2, {B_MOD}
    s_mul_i32 s4, s3, 1093
    s_lshr_b32 s4, s4, 16            ; ks
    s_mul_i32 s5, s4, 60
    s_sub_u32 s5, s3, s5             ; cb
    v_and_b32 v1, 7, v0
    v_lshrrev_b32 v2, 3, v0          ; rg
    v_mul_u32_u24 v3, 7680, v2
    v_lshl_add_u32 v3, v1, 4, v3
    s_mul_i32 s6, s4, {160*7680}
    s_lshl_b32 s7, s5, 7
    s_add_u32 s6, s6, s7
    v_lshlrev_b32 v4, 1, v2
    s_mul_i32 s12, s4, 320
    ''')
    for i in range(1, 5):
        k(f's_add_u32 s{6+i}, s6, {32*7680*i}')
    for i in range(5):
        k(f'buffer_load_ushort v{28+i}, v4, s[60:63], s12 offen offset:{64*i}')
    for i in range(5):
        k(f'buffer_load_dwordx4 v[{8+4*i}:{11+4*i}], v3, s[56:59], s{6+i} offen')
    k('s_waitcnt vmcnt(5)')
    k.stamp(1)
    for i in range(5):
        c = 28 + i
        k(f'''
        v_lshlrev_b32 v{c}, 16, v{c}
        v_mul_f32 v5, {f32(-LOG2E)}, v{c}
        v_exp_f32 v5, v5
        s_nop 0
        v_add_f32 v5, 1.0, v5
        v_rcp_f32 v5, v5
        s_nop 0
        v_mul_f32 v5, v{c}, v5
        v_cvt_pk_bf16_f32 v5, v5, v5
        v_lshlrev_b32 v{34+2*i}, 16, v5
        v_lshlrev_b32 v{35+2*i}, 16, v5
        ''')
    for i in range(5):
        k(f's_waitcnt vmcnt({4-i})')
        for j in range(4):
            r = 8 + 4 * i + j
            k(f'''
            v_lshlrev_b32 v52, 16, v{r}
            v_and_b32 v53, 0xffff0000, v{r}''')
            if i == 0:
                k(f'v_pk_mul_f32 v[{44+2*j}:{45+2*j}], v[52:53], v[34:35]')
            else:
                k(f'v_pk_fma_f32 v[{44+2*j}:{45+2*j}], v[52:53], v[{34+2*i}:{35+2*i}], v[{44+2*j}:{45+2*j}]')
    k.stamp(2)
    for j in range(8):
        k(f'v_add_f32_dpp v{44+j}, v{44+j}, v{44+j} row_ror:8 row_mask:0xf bank_mask:0xf')
    k(f'''
    v_lshrrev_b32 v5, 4, v0
    v_lshlrev_b32 v5, 8, v5
    v_lshl_add_u32 v5, v1, 5, v5
    ds_write_b128 v5, v[44:47]
    ds_write_b128 v5, v[48:51] offset:16
    s_waitcnt lgkmcnt(0)
    s_barrier
    v_cmp_gt_u32 vcc, 64, v0
    s_and_saveexec_b64 s[14:15], vcc
    s_cbranch_execz k1_mod_end
    v_lshlrev_b32 v6, 2, v0
    ''')
    for i in range(16):
        k(f'ds_read_b32 v{8+i}, v6 offset:{256*i}')
    k('s_waitcnt lgkmcnt(0)')
    for s in (8, 4, 2, 1):
        for i in range(s):
            k(f'v_add_f32 v{8+i}, v{8+i}, v{8+i+s}')
    k(f'''
    s_mul_i32 s6, s4, {3840*4}
    s_lshl_b32 s7, s5, 8
    s_add_u32 s6, s6, s7
    buffer_store_dword v8, v6, s[64:67], s6 offen
k1_mod_end:
    ''')
    k.stamp(4)
    k('s_waitcnt vmcnt(0)')
    k.stamp(5)
    k.stamp_flush(0)
    k('s_endpgm')


def role_wof(k):
    RS = 704
    srd(k, 56, 'wout', 864 * 1280)
    srd_ws(k, 60, 'WOF')
    k(f'''
    s_sub_u32 s3, s2, {B_WOF}
    s_lshr_b32 s4, s3, 1             ; beta
    s_and_b32 s5, s3, 1              ; half
    v_and_b32 v1, 7, v0
    v_lshrrev_b32 v2, 3, v0          ; row 0..31
    v_mul_u32_u24 v3, 1280, v2
    v_lshl_add_u32 v3, v1, 4, v3
    s_mul_i32 s6, s4, {32*1280}
    s_mul_i32 s7, s5, 640
    s_add_u32 s6, s6, s7
    ''')
    for i in range(5):
        k(f'buffer_load_dwordx4 v[{8+4*i}:{11+4*i}], v3, s[56:59], s6 offen offset:{128*i}')
    k(f'''
    v_mul_u32_u24 v4, {RS}, v2
    v_lshl_add_u32 v4, v1, 4, v4
    v_and_b32 v40, 63, v0            ; lane
    v_lshrrev_b32 v41, 6, v0         ; wave
    v_lshrrev_b32 v42, 4, v40        ; kq
    v_bfe_u32 v43, v40, 2, 2         ; rr
    v_and_b32 v44, 3, v40            ; c
    v_lshl_add_u32 v5, v42, 3, v43
    v_mul_u32_u24 v5, {RS}, v5
    v_lshl_add_u32 v5, v44, 4, v5    ; +16c
    v_lshlrev_b32 v6, 4, v40
    v_readfirstlane_b32 s8, v41
    ''')
    for i in range(5):
        k(f'''s_waitcnt vmcnt({4-i})
        ds_write_b128 v4, v[{8+4*i}:{11+4*i}] offset:{128*i}''')
    k(f'''
    s_mul_i32 s8, s8, 5              ; dl0
    s_mul_i32 s9, s4, 40
    s_mul_i32 s10, s5, 20
    s_add_u32 s9, s9, s10
    s_add_u32 s9, s9, s8
    s_lshl_b32 s9, s9, 10
    s_waitcnt lgkmcnt(0)
    s_barrier
    ''')
    for j in range(5):
        k(f'''
        s_add_u32 s10, s8, {j}
        s_lshr_b32 s11, s10, 1
        s_lshl_b32 s11, s11, 6
        s_and_b32 s10, s10, 1
        s_lshl_b32 s10, s10, 3
        s_add_u32 s10, s10, s11
        v_add_u32 v7, s10, v5
        ds_read_b64_tr_b16 v[{8+4*j}:{9+4*j}], v7
        ds_read_b64_tr_b16 v[{10+4*j}:{11+4*j}], v7 offset:{4*RS}
        ''')
    for j in range(5):
        k(f'''
        s_waitcnt lgkmcnt({8-2*j})
        buffer_store_dwordx4 v[{8+4*j}:{11+4*j}], v6, s[60:63], s9 offen offset:{1024*j if j < 4 else 0}''' if j < 4 else f'''
        s_waitcnt lgkmcnt(0)
        s_add_u32 s9, s9, 4096
        buffer_store_dwordx4 v[{8+4*j}:{11+4*j}], v6, s[60:63], s9 offen''')
    k('s_endpgm')


KG_RS = 544
KG_UL = 0
KG_VL = 41 * KG_RS
KG_T = KG_VL + 16 * KG_RS


def role_kgen(k):
    for n, (name) in enumerate(['Are', 'Aim', 'Bre', 'Bim', 'Cre', 'Cim']):
        srd(k, 56 + 4 * n, name, 640 * 256)
    srd(k, 80, 'logdt', 1280)
    srd_ws(k, 84, 'KR')
    k(f'''
    s_mov_b32 s3, s2   ; d
    v_and_b32 v1, 127, v0            ; n
    v_lshlrev_b32 v2, 1, v1
    s_lshl_b32 s4, s3, 8
    s_lshl_b32 s5, s3, 1
    v_mov_b32 v3, 0
    buffer_load_ushort v16, v3, s[80:83], s5 offen
    ''')
    for n in range(6):
        k(f'buffer_load_ushort v{10+n}, v2, s[{56+4*n}:{59+4*n}], s4 offen')
    k(f'''
    v_lshrrev_b32 v4, 6, v0
    v_lshlrev_b32 v5, 2, v1
    v_readfirstlane_b32 s6, v4
    s_waitcnt vmcnt(0)
    ''')
    k.stamp(1)
    for n in range(7):
        k(f'v_lshlrev_b32 v{10+n}, 16, v{10+n}')
    k(f'''
    v_mul_f32 v16, {f32(LOG2E)}, v16
    v_exp_f32 v16, v16
    s_nop 0
    v_cvt_pk_bf16_f32 v16, v16, v16
    v_lshlrev_b32 v16, 16, v16       ; dt
    v_mul_f32 v10, v16, v10
    v_mul_f32 v10, {f32(LOG2E)}, v10  ; a2
    v_mul_f32 v11, v16, v11
    v_mul_f32 v11, {f32(INV2PI)}, v11 ; w (rev/step)
    v_mul_f32 v12, v16, v12          ; dBr
    v_mul_f32 v13, v16, v13          ; dBi
    v_mul_f32 v18, v14, v12
    v_fma_f32 v18, -v15, v13, v18    ; Wr
    v_mul_f32 v19, v14, v13
    v_fma_f32 v19, v15, v12, v19     ; Wi
    v_mul_f32 v6, v18, v18
    v_fma_f32 v6, v19, v19, v6
    v_max_f32 v6, {f32(1e-36)}, v6
    v_log_f32 v6, v6
    s_nop 0
    v_mul_f32 v7, 0.25, v6
    v_exp_f32 v8, v7                 ; sv = |W|^(1/2)
    v_exp_f32 v7, -v7                ; 1/sv
    s_nop 0
    v_mul_f32 v18, v18, v7
    v_mul_f32 v19, v19, v7           ; W' = W/sv in v[18:19]
    '''.replace('0.25', f32(0.25)))

    def pw(dst, e):
        k(f'''
        v_mul_f32 v6, {f32(float(e))}, v10
        v_mul_f32 v7, {f32(float(e))}, v11
        v_exp_f32 v6, v6
        v_fract_f32 v7, v7
        v_cos_f32 v{dst}, v7
        v_sin_f32 v{dst+1}, v7
        s_nop 0
        v_mul_f32 v{dst}, v{dst}, v6
        v_mul_f32 v{dst+1}, v{dst+1}, v6
        ''')

    def cmul(d, x, y):
        k(f'''
        v_pk_mul_f32 v[{d}:{d+1}], v[{x}:{x+1}], v[{y}:{y+1}] op_sel:[0,0] op_sel_hi:[0,1]
        v_pk_fma_f32 v[{d}:{d+1}], v[{x}:{x+1}], v[{y}:{y+1}], v[{d}:{d+1}] op_sel:[1,1,0] op_sel_hi:[1,0,1] neg_lo:[0,1,0]
        ''')

    tmpc = [0]

    def outU(row, x):
        t = 60 + (tmpc[0] % 8)
        tmpc[0] += 1
        k(f'''
        v_cvt_pk_f16_f32 v{t}, v{x}, -v{x+1}
        ds_write_b32 v5, v{t} offset:{KG_UL + row*KG_RS}''')

    def outV(row, x):
        t = 60 + (tmpc[0] % 8)
        tmpc[0] += 1
        k(f'''
        v_cvt_pk_f16_f32 v{t}, v{x}, v{x+1}
        ds_write_b32 v5, v{t} offset:{KG_VL + row*KG_RS}''')

    k('''
    s_cmp_ge_u32 s6, 2
    s_cbranch_scc1 k1_kg_g1
    ''')
    pw(20, 1)
    pw(22, 128)
    pw(24, 256)
    pw(26, 8)
    k('v_mov_b32 v28, v18\nv_mov_b32 v29, v19')
    outU(0, 28)
    k('v_mov_b32 v48, v8\nv_mov_b32 v49, 0')
    outV(0, 48)
    for r in range(1, 8):
        cmul(28 + 2 * r, 28 + 2 * (r - 1), 20)
        outU(r, 28 + 2 * r)
        a, b = (48, 50) if r % 2 else (50, 48)
        cmul(b, a, 26)
        outV(r, b)
    for r in range(8):
        t = 44 + 2 * (r & 1)
        cmul(t, 28 + 2 * r, 22)
        outU(8 + r, t)
        if r % 2 == 0:
            cmul(52, t, 24)
            outU(20 + r // 2, 52)
            cmul(54, 28 + 2 * r, 24)
            outU(16 + r // 2, 54)
    k('s_branch k1_kg_join')
    k('k1_kg_g1:')
    pw(20, 4)
    pw(22, 128)
    pw(24, 1024)
    pw(26, 8)
    pw(28, 64)
    k('v_mul_f32 v48, v28, v8\nv_mul_f32 v49, v29, v8')
    outV(8, 48)
    cur = 18
    for a in range(8):
        if a > 0:
            nxt = 30 + 2 * (a & 1)
            cmul(nxt, cur, 22)
            cur = nxt
            va, vb = (48, 50) if a % 2 else (50, 48)
            cmul(vb, va, 26)
            outV(8 + a, vb)
        t = 36 + 2 * (a & 1)
        cmul(t, cur, 24)
        outU(32 + a, t)
        if a == 0:
            cmul(40, t, 24)
            outU(40, 40)
        if a >= 4:
            outU(24 + 2 * (a - 4), cur)
            cmul(42, cur, 20)
            outU(24 + 2 * (a - 4) + 1, 42)
    k('k1_kg_join:')
    k.stamp(2)
    k(f'''
    v_and_b32 v6, 63, v0             ; lane
    v_and_b32 v7, 15, v6             ; i
    v_lshrrev_b32 v9, 4, v6          ; q
    v_mul_u32_u24 v10, {KG_RS}, v7
    v_lshl_add_u32 v10, v9, 4, v10   ; i*RS + 16q
    s_mul_i32 s7, s6, {16*KG_RS}
    v_add_u32 v11, s7, v10           ; A addr
    s_waitcnt lgkmcnt(0)
    s_barrier
    s_cmp_ge_u32 s6, 3
    s_cbranch_scc1 k1_kg_gather
    ''')
    for s in range(8):
        k(f'''
        ds_read_b128 v[{16+8*s}:{19+8*s}], v11 offset:{KG_UL+64*s}
        ds_read_b128 v[{20+8*s}:{23+8*s}], v10 offset:{KG_VL+64*s}''')
    k('''
    s_cmp_eq_u32 s6, 1
    s_cbranch_scc1 k1_kg_w1
    s_cmp_eq_u32 s6, 2
    s_cbranch_scc1 k1_kg_w2
    v_lshrrev_b32 v12, 1, v9
    v_lshlrev_b32 v12, 7, v12
    v_and_b32 v13, 1, v9
    v_lshl_add_u32 v12, v13, 2, v12
    v_lshl_add_u32 v12, v7, 3, v12
    v_add_u32 v13, 1, v12
    v_add_u32 v14, 2, v12
    v_add_u32 v15, 3, v12
    s_branch k1_kg_wj
k1_kg_w1:
    ; q<2: 256+64q+4i+r ; q>=2: 384+64(q-2)+2i+{0,1,32,33}
    v_lshlrev_b32 v12, 6, v9
    v_add_u32 v12, 256, v12
    v_lshl_add_u32 v13, v7, 2, v12
    v_lshl_add_u32 v14, v7, 1, v12
    v_cmp_gt_u32 vcc, 2, v9
    s_nop 1
    v_cndmask_b32 v12, v14, v13, vcc
    v_mov_b32 v14, 32
    v_cndmask_b32 v14, v14, 2, vcc
    v_add_u32 v13, 1, v12
    v_add_u32 v14, v14, v12
    v_add_u32 v15, 1, v14
    s_branch k1_kg_wj
k1_kg_w2:
    v_lshlrev_b32 v12, 6, v9
    v_add_u32 v12, 512, v12
    v_add_u32 v12, v12, v7
    v_add_u32 v13, 16, v12
    v_add_u32 v14, 32, v12
    v_add_u32 v15, 48, v12
k1_kg_wj:
    '''.replace('v_cndmask_b32 v14, v14, 2, vcc', 'v_cndmask_b32_e64 v14, v14, 2, vcc'))
    for r in range(4):
        k(f'v_lshlrev_b32 v{12+r}, 1, v{12+r}')
    for s in range(8):
        k(f's_waitcnt lgkmcnt({14-2*s})')
        c = '0' if s == 0 else 'v[80:83]'
        k(f'v_mfma_f32_16x16x32_f16 v[80:83], v[{16+8*s}:{19+8*s}], v[{20+8*s}:{23+8*s}], {c}')
    k(f'''
    v_cvt_pk_bf16_f32 v84, v80, v81
    v_cvt_pk_bf16_f32 v85, v82, v83
    ds_write_b16 v12, v84 offset:{KG_T}
    ds_write_b16_d16_hi v13, v84 offset:{KG_T}
    ds_write_b16 v14, v85 offset:{KG_T}
    ds_write_b16_d16_hi v15, v85 offset:{KG_T}
k1_kg_gather:
    ; l_e = 2047 - 8*tid - e
    v_lshlrev_b32 v6, 3, v0
    v_sub_u32 v6, 2047, v6
    ''')
    for e in range(8):
        k(f'''
        v_subrev_u32 v{16+e}, {e}, v6
        v_cvt_f32_u32 v{24+e}, v{16+e}''')
    for e in range(0, 8, 2):
        k(f'v_cvt_pk_bf16_f32 v{32+e//2}, v{24+e}, v{25+e}')
    for e in range(8):
        if e % 2 == 0:
            k(f'v_and_b32 v{24+e}, 0xffff, v{32+e//2}')
        else:
            k(f'v_lshrrev_b32 v{24+e}, 16, v{32+e//2}')
        k(f'''
        v_subrev_u32 v{24+e}, {0x4300-128}, v{24+e}
        v_cmp_gt_u32 vcc, 128, v{16+e}
        v_cndmask_b32 v{24+e}, v{24+e}, v{16+e}, vcc
        v_lshlrev_b32 v{24+e}, 1, v{24+e}
        ''')
    k('''
    s_waitcnt lgkmcnt(0)
    s_barrier
    ''')
    k.stamp(3)
    for e in range(8):
        k(f'ds_read_u16 v{44+e}, v{24+e} offset:{KG_T}')
    k(f'''
    s_mul_i32 s7, s3, {KR_STRIDE}
    v_lshlrev_b32 v6, 4, v0
    v_mov_b32 v40, 0
    v_mov_b32 v41, 0
    v_mov_b32 v42, 0
    v_mov_b32 v43, 0
    s_waitcnt lgkmcnt(0)
    v_lshl_or_b32 v36, v45, 16, v44
    v_lshl_or_b32 v37, v47, 16, v46
    v_lshl_or_b32 v38, v49, 16, v48
    v_lshl_or_b32 v39, v51, 16, v50
    buffer_store_dwordx4 v[36:39], v6, s[84:87], s7 offen
    v_cmp_gt_u32 vcc, 2, v0
    s_and_saveexec_b64 s[14:15], vcc
    s_cbranch_execz k1_kg_end
    s_add_u32 s7, s7, 4096
    buffer_store_dwordx4 v[40:43], v6, s[84:87], s7 offen
k1_kg_end:
    ''')
    k.stamp(4)
    k('s_waitcnt vmcnt(0)')
    k.stamp(5)
    k.stamp_flush(0)
    k('s_endpgm')


def make_k1():
    total = N_LN1 + N_MOD + N_WOF + N_KG
    k = Kern('prep_kernel', total, 256, K1_LDS)
    k(f'''
    s_cmp_ge_u32 s2, {total}
    s_cbranch_scc1 k1_exit
    ''')
    k.stamp_s = 88
    k.stamp_v = 20
    k.stamp(0)
    load_ptrs(k)
    k(f'''
    s_waitcnt lgkmcnt(0)
    s_cmp_ge_u32 s2, {B_WOF}
    s_cbranch_scc1 k1_wof
    s_cmp_ge_u32 s2, {B_MOD}
    s_cbranch_scc1 k1_mod
    s_cmp_ge_u32 s2, {B_LN1}
    s_cbranch_scc1 k1_ln1
    ''')
    role_kgen(k)
    k('k1_ln1:')
    role_ln1(k)
    k('k1_mod:')
    role_mod(k)
    k('k1_wof:')
    role_wof(k)
    k('k1_exit:\ns_endpgm')
    return k
```

```python
from asmlib import Kern
from layout import WS, KR_STRIDE, XS, LBS
from gen_k1 import f32, load_ptrs, srd, srd_ws

N_WP, N_MISC, N_CONV, N_WSF = 108, 32, 640, 128
B_WP = N_CONV
B_WSF = B_WP + N_WP
B_MISC = B_WSF + N_WSF
CS = 4160
HOFF = 8 * CS
K2_LDS = 38912


def quad_sum(k, v):
    k(f'''
    v_add_f32_dpp v{v}, v{v}, v{v} quad_perm:[1,0,3,2] row_mask:0xf bank_mask:0xf
    v_add_f32_dpp v{v}, v{v}, v{v} quad_perm:[2,3,0,1] row_mask:0xf bank_mask:0xf
    ''')


def role_wp(k):
    RS = 192
    RED = 160 * RS
    srd(k, 56, 'win', 640 * 3456)
    srd_ws(k, 60, 'MODP')
    srd_ws(k, 64, 'WPF')
    srd_ws(k, 68, 'CSP')
    srd_ws(k, 72, 'BIP')
    k(f'''
    s_sub_u32 s3, s2, {B_WP}
    s_mul_i32 s4, s3, 2428
    s_lshr_b32 s4, s4, 16            ; dq
    s_mul_i32 s5, s4, 27
    s_sub_u32 s5, s3, s5             ; fb
    v_and_b32 v1, 7, v0              ; c8
    v_lshrrev_b32 v2, 3, v0          ; rg
    v_mul_u32_u24 v3, 3456, v2
    v_lshl_add_u32 v3, v1, 4, v3
    s_mul_i32 s6, s4, {160*3456}
    s_lshl_b32 s7, s5, 7
    s_add_u32 s6, s6, s7
    v_and_b32 v4, 3, v1
    v_mul_u32_u24 v4, 15360, v4
    v_lshrrev_b32 v5, 2, v1
    v_mul_u32_u24 v5, 2560, v5
    v_add_u32 v4, v4, v5
    v_lshl_add_u32 v4, v2, 2, v4
    s_mul_i32 s12, s4, 640
    s_add_u32 s12, s12, {3*2560}
    ''')
    for i in range(1, 5):
        k(f's_add_u32 s{6+i}, s6, {32*3456*i}')
    for i in range(5):
        k(f'buffer_load_dword v{28+i}, v4, s[60:63], s12 offen offset:{128*i}')
    for i in range(5):
        k(f'buffer_load_dwordx4 v[{8+4*i}:{11+4*i}], v3, s[56:59], s{6+i} offen')
    k(f'''
    v_mul_u32_u24 v6, {RS}, v2
    v_lshl_add_u32 v6, v1, 4, v6
    v_cmp_gt_u32 vcc, 4, v1
    s_waitcnt vmcnt(5)
    ''')
    for i in range(5):
        v = 28 + i
        quad_sum(k, v)
        k(f'''
        v_cvt_pk_bf16_f32 v{v}, v{v}, v{v}
        v_lshlrev_b32 v{v}, 16, v{v}
        v_mov_b32_dpp v5, v{v} row_half_mirror row_mask:0xf bank_mask:0xf
        v_cndmask_b32 v{34+4*i}, v{v}, v5, vcc      ; cb
        v_cndmask_b32 v{36+4*i}, v5, v{v}, vcc      ; sb
        v_add_f32 v{34+4*i}, 1.0, v{34+4*i}
        v_mov_b32 v{35+4*i}, v{34+4*i}
        v_mov_b32 v{37+4*i}, v{36+4*i}
        ''')
    for i in range(5):
        k(f's_waitcnt vmcnt({4-i})')
        for j in range(4):
            r = 8 + 4 * i + j
            k(f'''
            v_lshlrev_b32 v72, 16, v{r}
            v_and_b32 v73, 0xffff0000, v{r}
            v_pk_mul_f32 v[74:75], v[72:73], v[{34+4*i}:{35+4*i}]
            ''')
            if i == 0:
                k(f'v_pk_mul_f32 v[{64+2*j}:{65+2*j}], v[72:73], v[{36+4*i}:{37+4*i}]')
            else:
                k(f'v_pk_fma_f32 v[{64+2*j}:{65+2*j}], v[72:73], v[{36+4*i}:{37+4*i}], v[{64+2*j}:{65+2*j}]')
            k(f'v_cvt_pk_bf16_f32 v{r}, v74, v75')
            if i == 0:
                k(f'''
                v_lshlrev_b32 v{56+2*j}, 16, v{r}
                v_and_b32 v{57+2*j}, 0xffff0000, v{r}''')
            else:
                k(f'''
                v_lshlrev_b32 v76, 16, v{r}
                v_and_b32 v77, 0xffff0000, v{r}
                v_pk_add_f32 v[{56+2*j}:{57+2*j}], v[{56+2*j}:{57+2*j}], v[76:77]''')
        k(f'ds_write_b128 v6, v[{8+4*i}:{11+4*i}] offset:{32*RS*i}')
    for j in range(16):
        k(f'v_add_f32_dpp v{56+j}, v{56+j}, v{56+j} row_ror:8 row_mask:0xf bank_mask:0xf')
    k(f'''
    v_lshrrev_b32 v5, 4, v0
    v_lshlrev_b32 v5, 8, v5
    v_lshl_add_u32 v5, v1, 5, v5
    ds_write_b128 v5, v[56:59] offset:{RED}
    ds_write_b128 v5, v[60:63] offset:{RED+16}
    ds_write_b128 v5, v[64:67] offset:{RED+4096}
    ds_write_b128 v5, v[68:71] offset:{RED+4096+16}
    v_and_b32 v40, 63, v0            ; lane
    v_lshrrev_b32 v41, 6, v0
    v_lshrrev_b32 v42, 4, v40        ; kq
    v_bfe_u32 v43, v40, 2, 2         ; rr
    v_and_b32 v44, 3, v40            ; c
    v_lshl_add_u32 v7, v42, 3, v43
    v_mul_u32_u24 v7, {RS}, v7
    v_lshl_add_u32 v7, v44, 4, v7    ; + 16c
    v_lshrrev_b32 v45, 1, v41
    v_lshl_add_u32 v7, v45, 6, v7    ; + 64 blk
    v_and_b32 v45, 1, v41
    v_lshl_add_u32 v7, v45, 3, v7    ; + 8a
    v_lshlrev_b32 v46, 4, v40
    v_lshl_add_u32 v46, v41, 10, v46
    s_mul_i32 s6, s4, {5*108}
    s_lshl_b32 s7, s5, 2
    s_add_u32 s6, s6, s7
    s_lshl_b32 s6, s6, 10
    s_waitcnt lgkmcnt(0)
    s_barrier
    ''')
    for j in range(5):
        k(f'''
        ds_read_b64_tr_b16 v[{8+4*j}:{9+4*j}], v7 offset:{32*RS*j}
        ds_read_b64_tr_b16 v[{10+4*j}:{11+4*j}], v7 offset:{32*RS*j+4*RS}''')
    for j in range(5):
        k(f'''
        s_waitcnt lgkmcnt({8-2*j})
        buffer_store_dwordx4 v[{8+4*j}:{11+4*j}], v46, s[64:67], s6 offen
        s_add_u32 s6, s6, {108*1024}''')
    k(f'''
    v_cmp_gt_u32 vcc, 128, v0
    s_and_saveexec_b64 s[14:15], vcc
    s_cbranch_execz k2_wp_end
    v_lshlrev_b32 v6, 2, v40
    v_lshl_add_u32 v5, v41, 12, v6
    ''')
    for i in range(16):
        k(f'ds_read_b32 v{48+i}, v5 offset:{RED+256*i}')
    k('s_waitcnt lgkmcnt(0)')
    for s in (8, 4, 2, 1):
        for i in range(s):
            k(f'v_add_f32 v{48+i}, v{48+i}, v{48+i+s}')
    k(f'''
    s_mul_i32 s6, s4, {1728*4}
    s_lshl_b32 s7, s5, 8
    s_add_u32 s6, s6, s7
    v_readfirstlane_b32 s8, v41
    s_cmp_eq_u32 s8, 0
    s_cbranch_scc0 k2_wp_b
    buffer_store_dword v48, v6, s[68:71], s6 offen
    s_endpgm
k2_wp_b:
    buffer_store_dword v48, v6, s[72:75], s6 offen
k2_wp_end:
    s_endpgm
    ''')


def role_misc(k):
    srd_ws(k, 56, 'STAT')
    srd_ws(k, 60, 'MODP')
    srd_ws(k, 64, 'MODF')
    k(f'''
    s_sub_u32 s3, s2, {B_MISC}
    s_lshl_b32 s4, s3, 12
    v_lshlrev_b32 v1, 4, v0
    v_mov_b32 v4, -1
    v_mov_b32 v5, -1
    v_mov_b32 v6, -1
    v_mov_b32 v7, -1
    buffer_store_dwordx4 v[4:7], v1, s[56:59], s4 offen
    s_cmp_ge_u32 s3, 15
    s_cbranch_scc1 k2_misc_end
    v_lshlrev_b32 v2, 2, v0
    s_lshl_b32 s5, s3, 10
    s_add_u32 s6, s5, 15360
    s_add_u32 s7, s5, 30720
    s_add_u32 s8, s5, 46080
    buffer_load_dword v8, v2, s[60:63], s5 offen
    buffer_load_dword v9, v2, s[60:63], s6 offen
    buffer_load_dword v10, v2, s[60:63], s7 offen
    buffer_load_dword v11, v2, s[60:63], s8 offen
    s_waitcnt vmcnt(0)
    v_add_f32 v8, v8, v9
    v_add_f32 v10, v10, v11
    v_add_f32 v8, v8, v10
    v_cvt_pk_bf16_f32 v8, v8, v8
    v_lshlrev_b32 v8, 16, v8
    buffer_store_dword v8, v2, s[64:67], s5 offen
k2_misc_end:
    s_endpgm
    ''')


def role_wsf(k):
    srd(k, 56, 'wsp', 2048 * 4096)
    k(f"""
    s_sub_u32 s3, s2, {B_WSF}
    s_lshl_b32 s3, s3, 16
    v_lshlrev_b32 v1, 4, v0
    """)
    for j in range(16):
        k(f"""
        buffer_load_dwordx4 v[{4+4*j}:{7+4*j}], v1, s[56:59], s3 offen
        s_add_u32 s3, s3, 4096""")
    k('s_waitcnt vmcnt(0)\ns_endpgm')


def role_conv(k):
    srd_ws(k, 56, 'KR')
    srd_ws(k, 60, 'XNT')
    srd_ws(k, 64, 'XT')
    srd_ws(k, 68, 'MODP')
    srd(k, 72, 'Dskip', 1280)
    srd_ws(k, 76, 'X1T')
    FB = 8
    ACC = 72
    XR = 4
    k(f"""
    s_and_b32 s3, s2, 7
    s_lshl_b32 s3, s3, 2
    s_lshr_b32 s4, s2, 3
    s_and_b32 s5, s4, 3
    s_add_u32 s3, s3, s5
    s_lshr_b32 s4, s4, 2
    s_lshl_b32 s4, s4, 5
    s_add_u32 s3, s3, s4             ; d = 32(k>>2) + 4xcd + (k&3)
    v_and_b32 v1, 63, v0             ; lane
    v_lshrrev_b32 v8, 6, v0
    v_lshlrev_b32 v11, 4, v0
    v_readfirstlane_b32 s4, v8       ; wave
    s_mul_i32 s5, s3, {KR_STRIDE}
    s_mul_i32 s6, s3, {XS}
    buffer_load_dwordx4 v[40:43], v11, s[56:59], s5 offen
    buffer_load_dwordx4 v[44:47], v11, s[56:59], s5 offen offset:16
    v_and_b32 v16, 3, v1
    v_mul_u32_u24 v16, 15360, v16
    v_bfe_u32 v17, v1, 2, 2
    v_min_u32 v17, 2, v17
    v_mul_u32_u24 v17, 2560, v17
    v_add_u32 v16, v16, v17
    s_lshl_b32 s10, s3, 2
    buffer_load_dword v18, v16, s[68:71], s10 offen
    v_lshrrev_b32 v9, 1, v0
    v_mul_u32_u24 v9, {LBS}, v9
    v_and_b32 v10, 1, v0
    v_lshl_add_u32 v9, v10, 4, v9
    s_lshl_b32 s7, s3, 5
    buffer_load_dwordx4 v[12:15], v9, s[60:63], s7 offen
    v_mov_b32 v19, 0
    s_lshl_b32 s11, s3, 1
    buffer_load_ushort v20, v19, s[72:75], s11 offen
    v_and_b32 v21, 15, v1            ; n / b
    v_lshrrev_b32 v22, 4, v1         ; q / kq
    v_mul_u32_u24 v23, {LBS}, v21
    v_lshl_add_u32 v23, v22, 3, v23  ; n*20480 + 8q
    s_mul_i32 s8, s4, {32*LBS}
    s_add_u32 s8, s8, s7
    s_add_u32 s9, s8, {16*LBS}
    buffer_load_dwordx2 v[4:5], v23, s[64:67], s8 offen
    buffer_load_dwordx2 v[6:7], v23, s[64:67], s9 offen
    s_lshl_b32 s12, s4, 10
    s_add_u32 s13, s6, s12
    v_mov_b32 v24, 0
    v_mov_b32 v25, 0
    v_mov_b32 v26, 0
    v_mov_b32 v27, 0
    v_and_b32 v28, 7, v0
    v_mul_u32_u24 v28, {CS}, v28
    ds_write_b128 v28, v[24:27] offset:4096
    v_min_u32 v29, 29, v1
    v_lshlrev_b32 v29, 4, v29
    ds_write_b128 v29, v[24:27] offset:{HOFF}
    v_sub_u32 v30, 15, v21           ; b'
    v_and_b32 v31, 7, v30
    v_mul_u32_u24 v2, {CS}, v31
    v_lshrrev_b32 v30, 3, v30
    v_add_u32 v30, v30, v22
    v_lshl_add_u32 v2, v30, 4, v2
    s_lshl_b32 s14, s4, 7
    s_sub_u32 s14, 384, s14          ; 448 - 128w - 64
    v_add_u32 v2, s14, v2
    v_lshlrev_b32 v3, 5, v21
    v_lshl_add_u32 v3, v22, 4, v3
    s_add_u32 s15, s14, {HOFF}
    v_add_u32 v3, s15, v3
    s_waitcnt vmcnt(5)
    """)
    k.stamp(1)
    k(f"""
    ds_write_b128 v11, v[40:43] offset:{0*CS}
    ds_write_b128 v11, v[42:45] offset:{4*CS}
    """)
    for j in range(6):
        k(f'v_mov_b32 v{48+j}, v{41+j}')
    k(f"""
    ds_write_b128 v11, v[48:51] offset:{2*CS}
    ds_write_b128 v11, v[50:53] offset:{6*CS}
    """)
    for j in range(6):
        k(f'v_alignbit_b32 v{56+j}, v{41+j}, v{40+j}, 16')
    k(f"""
    ds_write_b128 v11, v[56:59] offset:{1*CS}
    ds_write_b128 v11, v[58:61] offset:{5*CS}
    """)
    for j in range(6):
        k(f'v_alignbit_b32 v{64+j}, v{42+j}, v{41+j}, 16')
    k(f"""
    ds_write_b128 v11, v[64:67] offset:{3*CS}
    ds_write_b128 v11, v[66:69] offset:{7*CS}
    s_waitcnt vmcnt(4)
    """)
    quad_sum(k, 18)
    k(f"""
    v_cvt_pk_bf16_f32 v18, v18, v18
    v_lshlrev_b32 v18, 16, v18
    s_nop 0
    v_readlane_b32 s80, v18, 0       ; sa
    v_readlane_b32 s81, v18, 4       ; ca
    v_readlane_b32 s82, v18, 8       ; ga
    s_nop 1
    v_mov_b32 v32, s81
    v_add_f32 v32, 1.0, v32
    v_mov_b32 v33, v32
    v_mov_b32 v34, s80
    v_mov_b32 v35, s80
    s_waitcnt vmcnt(3)
    """)
    for j in range(4):
        k(f"""
        v_lshlrev_b32 v36, 16, v{12+j}
        v_and_b32 v37, 0xffff0000, v{12+j}
        v_pk_fma_f32 v[36:37], v[36:37], v[32:33], v[34:35]
        v_cvt_pk_bf16_f32 v{12+j}, v36, v37""")
    k(f"""
    ds_write_b128 v11, v[12:15] offset:{HOFF+480}
    s_waitcnt vmcnt(2)
    v_lshlrev_b32 v20, 16, v20
    s_nop 0
    v_readfirstlane_b32 s83, v20     ; Dskip
    s_waitcnt lgkmcnt(0)
    s_barrier
    """)
    k.stamp(2)
    first = [True] * 8

    def rd_f(p, rr):
        return f'ds_read_b128 v[{FB+4*p}:{FB+3+4*p}], v2 offset:{3584-512*p+64*(1-rr)}'

    def rd_g(q, rr):
        return f'ds_read_b128 v[{FB+32+4*q}:{FB+35+4*q}], v3 offset:{512*q+64*(1-rr)}'

    def mf(p, q):
        i = p + q
        a = ACC + 4 * i
        c = '0' if first[i] else f'v[{a}:{a+3}]'
        first[i] = False
        k(f'v_mfma_f32_16x16x32_bf16 v[{a}:{a+3}], v[{FB+4*p}:{FB+3+4*p}], v[{FB+32+4*q}:{FB+35+4*q}], {c}')

    for m in range(8):
        k(rd_g(m, 0))
        k(rd_f(7 - m, 0))
    issued_after = 0
    for st in range(8):
        p = 7 - st
        k(f's_waitcnt lgkmcnt({min(15, 16-(2*st+2)+issued_after)})')
        for q in range(st + 1):
            mf(p, q)
        k(rd_f(p, 1))
        issued_after += 1
    for q in range(8):
        k(rd_g(q, 1))
    for q in range(8):
        k(f's_waitcnt lgkmcnt({7-q})')
        for p in range(7 - q, -1, -1):
            mf(p, q)
    k.stamp(3)
    k(f"""
    v_lshlrev_b32 v8, 4, v1          ; lane*16
    s_barrier
    """)
    for w in range(4):
        k(f"""
        s_cmp_eq_u32 s4, {w}
        s_cbranch_scc0 k2_red_{w}""")
        for i in range(8):
            o = i >> 1
            if o == w:
                continue
            src = (w - o - 1) % 4
            k(f'ds_write_b128 v8, v[{ACC+4*i}:{ACC+4*i+3}] offset:{(i*3+src)*1024}')
        for j in range(8):
            k(f'v_mov_b32 v{40+j}, v{ACC+8*w+j}')
        k(f'k2_red_{w}:')
    k(f'''
    s_mul_i32 s12, s4, 6144
    v_add_u32 v9, s12, v8
    v_and_b32 v21, 15, v1
    v_lshrrev_b32 v22, 4, v1
    v_lshlrev_b32 v23, 5, v21
    v_lshl_add_u32 v23, v22, 3, v23
    s_lshl_b32 s12, s4, 10
    v_add_u32 v10, s12, v23
    v_lshrrev_b32 v11, 1, v21
    v_lshlrev_b32 v11, 6, v11
    v_and_b32 v12, 1, v22
    v_lshl_add_u32 v11, v12, 5, v11
    v_and_b32 v12, 1, v21
    v_lshl_add_u32 v11, v12, 4, v11
    v_lshrrev_b32 v12, 1, v22
    v_lshl_add_u32 v11, v12, 3, v11
    s_waitcnt lgkmcnt(0)
    s_barrier
    ds_read_b64 v[12:13], v10 offset:{HOFF+480}
    ds_read_b64 v[14:15], v10 offset:{HOFF+480+512}
    ''')
    for j in range(6):
        k(f'ds_read_b128 v[{48+4*j}:{51+4*j}], v9 offset:{1024*j}')
    k(f'''
    v_mov_b32 v16, s83
    v_mov_b32 v17, s83
    v_mov_b32 v18, s82
    v_mov_b32 v19, s82
    s_waitcnt lgkmcnt(0) vmcnt(0)
    ''')
    for t in range(2):
        o = 40 + 4 * t
        for j in range(3):
            s = 48 + 12 * t + 4 * j
            k(f'''
            v_pk_add_f32 v[{o}:{o+1}], v[{o}:{o+1}], v[{s}:{s+1}]
            v_pk_add_f32 v[{o+2}:{o+3}], v[{o+2}:{o+3}], v[{s+2}:{s+3}]''')
        for hh in range(2):
            hv = 12 + 2 * t + hh
            xv = XR + 2 * t + hh
            y = o + 2 * hh
            k(f'''
            v_lshlrev_b32 v20, 16, v{hv}
            v_and_b32 v21, 0xffff0000, v{hv}
            v_pk_fma_f32 v[{y}:{y+1}], v[20:21], v[16:17], v[{y}:{y+1}]
            v_lshlrev_b32 v22, 16, v{xv}
            v_and_b32 v23, 0xffff0000, v{xv}
            v_pk_fma_f32 v[{y}:{y+1}], v[{y}:{y+1}], v[18:19], v[22:23]
            v_cvt_pk_bf16_f32 v{24+2*t+hh}, v{y}, v{y+1}
            ''')
        k(f'buffer_store_dwordx2 v[{24+2*t}:{25+2*t}], v11, s[76:79], s13 offen offset:{512*t}')
    k.stamp(4)
    k('s_waitcnt vmcnt(0)')
    k.stamp(5)
    k.stamp_flush(1)
    k('s_endpgm')


def make_k2():
    total = N_WP + N_MISC + N_CONV + N_WSF
    k = Kern('conv_kernel', total, 256, K2_LDS)
    k(f"""
    s_cmp_ge_u32 s2, {total}
    s_cbranch_scc1 k2_exit
    """)
    k.stamp_s = 88
    k.stamp_v = 100
    k.stamp(0)
    load_ptrs(k)
    k(f"""
    s_waitcnt lgkmcnt(0)
    s_cmp_ge_u32 s2, {B_MISC}
    s_cbranch_scc1 k2_misc
    s_cmp_ge_u32 s2, {B_WSF}
    s_cbranch_scc1 k2_wsf
    s_cmp_ge_u32 s2, {B_WP}
    s_cbranch_scc1 k2_wp
    """)
    role_conv(k)
    k('k2_wp:')
    role_wp(k)
    k('k2_wsf:')
    role_wsf(k)
    k('k2_misc:')
    role_misc(k)
    k('k2_exit:\ns_endpgm')
    return k
```

```python
from asmlib import Kern
from layout import WS, XS
from gen_k1 import f32, load_ptrs, srd, srd_ws, PTR, dpp_sum16

NS = 6
SLOT = 16384
CONST = NS * SLOT
K3_LDS = CONST + 1024
NK = 20

ACC = 100
GRAM = 156
SUM = 164
ONES = 172
FRG = [28, 64]

C0 = -2.0 * 0.7978845608028654 * 1.4426950408889634
C1 = C0 * 0.044715


def gelu_pairs(k, regs, t0):
    for n in range(0, len(regs), 2):
        grp = regs[n:n + 2]
        T = [t0 + 4 * g for g in range(len(grp))]
        for x, t in zip(grp, T):
            k(f'v_pk_mul_f32 v[{t}:{t+1}], v[{x}:{x+1}], v[{x}:{x+1}]')
        for x, t in zip(grp, T):
            k(f'v_pk_mul_f32 v[{t}:{t+1}], v[{t}:{t+1}], s[72:73]')
        for x, t in zip(grp, T):
            k(f'v_pk_add_f32 v[{t}:{t+1}], v[{t}:{t+1}], s[70:71]')
        for x, t in zip(grp, T):
            k(f'v_pk_mul_f32 v[{t}:{t+1}], v[{t}:{t+1}], v[{x}:{x+1}]')
        for x, t in zip(grp, T):
            k(f'v_exp_f32 v{t}, v{t}\nv_exp_f32 v{t+1}, v{t+1}')
        for x, t in zip(grp, T):
            k(f'v_pk_add_f32 v[{t}:{t+1}], v[{t}:{t+1}], s[74:75]')
        for x, t in zip(grp, T):
            k(f'v_rcp_f32 v{t}, v{t}\nv_rcp_f32 v{t+1}, v{t+1}')
        for x, t in zip(grp, T):
            k(f'v_pk_mul_f32 v[{x}:{x+1}], v[{x}:{x+1}], v[{t}:{t+1}]')


def dma_list(st):
    slot = st % NS
    return [f'''s_add_u32 m0, s10, {slot*SLOT}
    buffer_load_dwordx4 v2, s[60:63], s12 offen lds''',
            'buffer_load_dwordx4 v2, s[60:63], s12 offen offset:1024 lds',
            'buffer_load_dwordx4 v3, s[56:59], s11 offen offset:2048 lds',
            f'''buffer_load_dwordx4 v4, s[56:59], s11 offen offset:3072 lds
    s_add_u32 s11, s11, {32*XS}
    s_add_u32 s12, s12, {108*1024}''']


def dma_stage(k, st):
    for l in dma_list(st):
        k(l)


def frag_list(st):
    slot = st % NS
    hi = slot >= 3
    base = (slot - 3 if hi else slot) * SLOT
    F = FRG[st & 1]
    va = (8, 9) if hi else (6, 7)
    vb = 11 if hi else 10
    L = []
    for a in range(2):
        L.append(f'ds_read_b64_tr_b16 v[{F+4*a}:{F+4*a+1}], v{va[a]} offset:{base}')
        L.append(f'ds_read_b64_tr_b16 v[{F+4*a+2}:{F+4*a+3}], v{va[a]} offset:{base+1024}')
    for b in range(7):
        L.append(f'ds_read_b128 v[{F+8+4*b}:{F+11+4*b}], v{vb} offset:{base+(b>>1)*4096+(b&1)*1024}')
    return L


def mainloop(k, typ):
    k.stamp(1)
    k(f'''
    s_waitcnt vmcnt({4*(NS-1)})
    s_barrier
    ''')
    k.stamp(2)
    for l in frag_list(0):
        k(l)
    for kk in range(NK):
        F = FRG[kk & 1]
        if kk in (5, 10, 15):
            k.stamp(2 + kk // 5)
        fill = []
        if kk + 1 < NK:
            n = 4 * (min(kk + NS - 1, NK - 1) - (kk + 1))
            k(f'''
            s_waitcnt vmcnt({n}) lgkmcnt(0)
            s_barrier''')
            fill = frag_list(kk + 1)
            if kk + NS < NK:
                fill = fill + dma_list(kk + NS)
        else:
            k('s_waitcnt lgkmcnt(0)')
        z = kk == 0
        M = []
        for a in range(2):
            x = f'v[{F+4*a}:{F+4*a+3}]'
            for b in range(7):
                w = f'v[{F+8+4*b}:{F+11+4*b}]'
                acc = ACC + 4 * (7 * a + b)
                c = '0' if z else f'v[{acc}:{acc+3}]'
                if typ == 1:
                    M.append(f'v_mfma_f32_16x16x32_bf16 v[{acc}:{acc+3}], {w}, {x}, {c}')
                else:
                    M.append(f'v_mfma_f32_16x16x32_bf16 v[{acc}:{acc+3}], {x}, {w}, {c}')
            g = GRAM + 4 * a
            s = SUM + 4 * a
            M.append(f'v_mfma_f32_16x16x32_bf16 v[{g}:{g+3}], {x}, {x}, ' + ('0' if z else f'v[{g}:{g+3}]'))
            o = f'v[{ONES}:{ONES+3}]'
            if typ == 1:
                M.append(f'v_mfma_f32_16x16x32_bf16 v[{s}:{s+3}], {o}, {x}, ' + ('0' if z else f'v[{s}:{s+3}]'))
            else:
                M.append(f'v_mfma_f32_16x16x32_bf16 v[{s}:{s+3}], {x}, {o}, ' + ('0' if z else f'v[{s}:{s+3}]'))
        for n, mm in enumerate(M):
            k(mm)
            if n < len(fill):
                k(fill[n])
        lab = k.label('nodump')
        k(f'''
        s_cmp_eq_u32 s6, {kk & 15}
        s_cbranch_scc0 {lab}
        s_mov_b32 s13, {kk*128*1024}
        buffer_store_dwordx4 v[{F}:{F+3}], v5, s[64:67], s13 offen
        buffer_store_dwordx4 v[{F+4}:{F+7}], v5, s[64:67], s13 offen offset:1024
{lab}:
        ''')


def epilogue_z1(k):
    k.stamp(6)
    k(f'''
    v_and_b32 v15, 3, v13
    v_lshrrev_b32 v16, 2, v13
    v_lshl_add_u32 v16, v16, 4, v13
    v_lshlrev_b32 v16, 2, v16
    v_cmp_eq_u32 s[92:93], 1, v15
    v_cmp_eq_u32 s[94:95], 2, v15
    v_cmp_eq_u32 s[96:97], 3, v15
    v_lshlrev_b32 v17, 4, v14
    v_add_u32 v17, {CONST}, v17
    ''')
    for a in range(2):
        g = GRAM + 4 * a
        k(f'''
        v_cndmask_b32 v{18+a}, v{g}, v{g+1}, s[92:93]
        v_cndmask_b32 v{18+a}, v{18+a}, v{g+2}, s[94:95]
        v_cndmask_b32 v{18+a}, v{18+a}, v{g+3}, s[96:97]
        ds_bpermute_b32 v{18+a}, v16, v{18+a}
        ''')
    for b in range(7):
        k(f'''
        ds_read_b128 v[{28+4*b}:{31+4*b}], v17 offset:{64*b}
        ds_read_b128 v[{56+4*b}:{59+4*b}], v17 offset:{512+64*b}''')
    k('s_waitcnt lgkmcnt(14)')
    for a in range(2):
        s = SUM + 4 * a
        r = 20 + 4 * a
        k(f'''
        v_mul_f32 v{s}, {f32(1.0/640)}, v{s}            ; mean
        v_mov_b32 v{r}, {f32(1e-5)}
        v_fmac_f32 v{r}, {f32(1.0/640)}, v{18+a}
        v_fma_f32 v{r}, -v{s}, v{s}, v{r}
        v_max_f32 v{r}, {f32(1e-5)}, v{r}
        v_rsq_f32 v{r}, v{r}
        v_mov_b32 v{r+1}, v{r}
        v_mul_f32 v{r+2}, v{s}, v{r}
        v_sub_f32 v{r+2}, 0, v{r+2}
        v_mov_b32 v{r+3}, v{r+2}
        ''')
    k('s_waitcnt lgkmcnt(0)')
    k(f'''
    s_lshl_b32 s13, s9, 11
    v_add_u32 v15, s13, v12
    ''')
    for b in range(7):
        regs = []
        for a in range(2):
            acc = ACC + 4 * (7 * a + b)
            r = 20 + 4 * a
            for p in range(2):
                x = acc + 2 * p
                k(f'''
                v_pk_fma_f32 v[84:85], v[{28+4*b+2*p}:{29+4*b+2*p}], v[{r+2}:{r+3}], v[{56+4*b+2*p}:{57+4*b+2*p}]
                v_pk_fma_f32 v[{x}:{x+1}], v[{x}:{x+1}], v[{r}:{r+1}], v[84:85]''')
                regs.append(x)
        gelu_pairs(k, regs, 88)
        k(f'''
        s_add_u32 s13, s8, {b}
        s_lshr_b32 s14, s13, 1
        s_lshl_b32 s14, s14, 17
        s_and_b32 s13, s13, 1
        s_lshl_b32 s13, s13, 3
        s_add_u32 s13, s13, s14
        ''')
        for a in range(2):
            acc = ACC + 4 * (7 * a + b)
            k(f'''
            v_cvt_pk_bf16_f32 v{acc}, v{acc}, v{acc+1}
            v_cvt_pk_bf16_f32 v{acc+1}, v{acc+2}, v{acc+3}
            buffer_store_dwordx2 v[{acc}:{acc+1}], v15, s[84:87], s13 offen offset:{1024*a}''')
    k.stamp(10)
    k('s_waitcnt vmcnt(0)')
    k.stamp(11)
    k.stamp_flush(2)
    k('s_endpgm')


def epilogue_z2(k):
    k.stamp(6)
    k(f'''
    v_mul_u32_u24 v16, 80, v14         ; 4*(20q)
    v_lshlrev_b32 v17, 2, v13
    v_add_u32 v17, {CONST}, v17
    ''')
    for a in range(2):
        for r in range(4):
            g = GRAM + 4 * a + r
            k(f'ds_bpermute_b32 v{g}, v16, v{g} offset:{4*r}')
    for b in range(7):
        k(f'''
        ds_read_b32 v{28+2*b}, v17 offset:{64*b}
        ds_read_b32 v{42+2*b}, v17 offset:{512+64*b}''')
    k('s_waitcnt lgkmcnt(14)')
    for a in range(2):
        for r in range(4):
            g = GRAM + 4 * a + r
            s = SUM + 4 * a + r
            k(f'''
            v_mul_f32 v{s}, {f32(1.0/640)}, v{s}
            v_mov_b32 v18, {f32(1e-5)}
            v_fmac_f32 v18, {f32(1.0/640)}, v{g}
            v_fma_f32 v18, -v{s}, v{s}, v18
            v_max_f32 v18, {f32(1e-5)}, v18
            v_rsq_f32 v{g}, v18
            v_mul_f32 v{s}, v{s}, v{g}
            v_sub_f32 v{s}, 0, v{s}
            ''')
    k('s_waitcnt lgkmcnt(0)')
    for b in range(7):
        k(f'v_mov_b32 v{29+2*b}, v{28+2*b}\nv_mov_b32 v{43+2*b}, v{42+2*b}')
    for b in range(7):
        regs = []
        for a in range(2):
            acc = ACC + 4 * (7 * a + b)
            for p in range(2):
                x = acc + 2 * p
                g = GRAM + 4 * a + 2 * p
                s = SUM + 4 * a + 2 * p
                k(f'''
                v_pk_fma_f32 v[84:85], v[{28+2*b}:{29+2*b}], v[{s}:{s+1}], v[{42+2*b}:{43+2*b}]
                v_pk_fma_f32 v[{x}:{x+1}], v[{x}:{x+1}], v[{g}:{g+1}], v[84:85]''')
                regs.append(x)
        gelu_pairs(k, regs, 88)
    k.stamp(7)
    for a in range(2):
        for p in range(2):
            s1 = 56 + 4 * a + 2 * p
            s2 = 64 + 4 * a + 2 * p
            x = ACC + 4 * (7 * a + 2) + 2 * p
            k(f'''
            v_pk_add_f32 v[{s1}:{s1+1}], v[{x}:{x+1}], v[{x+4}:{x+5}]
            v_pk_mul_f32 v[{s2}:{s2+1}], v[{x}:{x+1}], v[{x}:{x+1}]''')
            for b in range(3, 7):
                x = ACC + 4 * (7 * a + b) + 2 * p
                if b > 3:
                    k(f'v_pk_add_f32 v[{s1}:{s1+1}], v[{s1}:{s1+1}], v[{x}:{x+1}]')
                k(f'v_pk_fma_f32 v[{s2}:{s2+1}], v[{x}:{x+1}], v[{x}:{x+1}], v[{s2}:{s2+1}]')
    k('''
    s_cmp_eq_u32 s7, 7
    s_cbranch_scc1 k3_skipdup
    ''')
    for a in range(2):
        for p in range(2):
            s1 = 56 + 4 * a + 2 * p
            s2 = 64 + 4 * a + 2 * p
            for b in range(2):
                x = ACC + 4 * (7 * a + b) + 2 * p
                k(f'''
                v_pk_add_f32 v[{s1}:{s1+1}], v[{s1}:{s1+1}], v[{x}:{x+1}]
                v_pk_fma_f32 v[{s2}:{s2+1}], v[{x}:{x+1}], v[{x}:{x+1}], v[{s2}:{s2+1}]''')
    k('k3_skipdup:')
    for n in (8, 4, 2, 1):
        for v in range(56, 72):
            k(f'v_add_f32_dpp v{v}, v{v}, v{v} row_ror:{n} row_mask:0xf bank_mask:0xf')
    for e in range(8):
        k(f'v_mov_b32 v{28+2*e}, v{56+e}\nv_mov_b32 v{29+2*e}, v{64+e}')
    k(f'''
    s_lshl_b32 s13, s9, 11             ; (4rb+w)*2048
    s_lshl_b32 s14, s7, 8
    s_add_u32 s14, s14, s13            ; + j*256
    v_lshlrev_b32 v15, 6, v14          ; 64q
    v_cmp_eq_u32 vcc, 0, v13
    s_and_saveexec_b64 s[92:93], vcc
    buffer_store_dwordx4 v[28:31], v15, s[88:91], s14 offen sc1
    buffer_store_dwordx4 v[32:35], v15, s[88:91], s14 offen offset:16 sc1
    buffer_store_dwordx4 v[36:39], v15, s[88:91], s14 offen offset:32 sc1
    buffer_store_dwordx4 v[40:43], v15, s[88:91], s14 offen offset:48 sc1
    s_mov_b64 exec, s[92:93]
    v_lshrrev_b32 v16, 1, v13
    v_lshl_add_u32 v16, v16, 8, v15
    v_and_b32 v17, 1, v13
    v_lshl_add_u32 v16, v17, 5, v16
    s_mov_b32 s15, 0
    ''')
    k.stamp(8)
    k('''
k3_poll:
    buffer_load_dwordx4 v[44:47], v16, s[88:91], s13 offen sc1
    buffer_load_dwordx4 v[48:51], v16, s[88:91], s13 offen offset:16 sc1
    s_waitcnt vmcnt(0)
    v_cmp_eq_u32 vcc, -1, v45
    v_cmp_eq_u32 s[92:93], -1, v47
    v_cmp_eq_u32 s[94:95], -1, v49
    v_cmp_eq_u32 s[96:97], -1, v51
    s_or_b64 s[92:93], s[92:93], vcc
    s_or_b64 s[94:95], s[94:95], s[96:97]
    s_or_b64 s[92:93], s[92:93], s[94:95]
    s_cmp_eq_u64 s[92:93], 0
    s_cbranch_scc1 k3_ready
    s_add_u32 s15, s15, 1
    s_cmp_lt_u32 s15, 20000
    s_cbranch_scc0 k3_ready
    s_sleep 2
    s_branch k3_poll
k3_ready:
    ''')
    k.stamp(9)
    for n in (8, 4, 2):
        for v in range(44, 52):
            k(f'v_add_f32_dpp v{v}, v{v}, v{v} row_ror:{n} row_mask:0xf bank_mask:0xf')
    for r in range(4):
        k(f'''
        v_mul_f32 v{44+2*r}, {f32(1.0/864)}, v{44+2*r}
        v_mov_b32 v18, {f32(1e-5)}
        v_fmac_f32 v18, {f32(1.0/864)}, v{45+2*r}
        v_fma_f32 v18, -v{44+2*r}, v{44+2*r}, v18
        v_max_f32 v18, {f32(1e-5)}, v18
        v_rsq_f32 v{52+r}, v18
        v_mul_f32 v{56+r}, v{44+2*r}, v{52+r}
        v_sub_f32 v{56+r}, 0, v{56+r}
        ''')
    k('v_cmp_eq_u32 vcc, 0, v17')
    for e in range(8):
        k(f'v_mov_b32_dpp v{60+e}, v{52+e} quad_perm:[1,0,3,2] row_mask:0xf bank_mask:0xf')
    for r in range(4):
        k(f'''
        v_cndmask_b32 v{GRAM+r}, v{60+r}, v{52+r}, vcc
        v_cndmask_b32 v{GRAM+4+r}, v{52+r}, v{60+r}, vcc
        v_cndmask_b32 v{SUM+r}, v{64+r}, v{56+r}, vcc
        v_cndmask_b32 v{SUM+4+r}, v{56+r}, v{64+r}, vcc
        ''')
    k(f'''
    s_mul_i32 s13, s9, 54
    s_add_u32 s13, s13, s8
    s_lshl_b32 s13, s13, 10
    ''')
    for b in range(7):
        o = 28 + 4 * b
        for a in range(2):
            acc = ACC + 4 * (7 * a + b)
            for p in range(2):
                x = acc + 2 * p
                g = GRAM + 4 * a + 2 * p
                s = SUM + 4 * a + 2 * p
                k(f'''
                v_pk_fma_f32 v[{x}:{x+1}], v[{x}:{x+1}], v[{g}:{g+1}], v[{s}:{s+1}]
                v_cvt_pk_bf16_f32 v{o+2*a+p}, v{x}, v{x+1}''')
        if b == 4:
            k('s_add_u32 s13, s13, 4096')
        k(f'buffer_store_dwordx4 v[{o}:{o+3}], v12, s[84:87], s13 offen offset:{1024*(b%4)}')
    k.stamp(10)
    k('s_waitcnt vmcnt(0)')
    k.stamp(11)
    k.stamp_flush(2)
    k('s_endpgm')


def make_k3():
    k = Kern('gemm1_kernel', 256, 256, K3_LDS)
    k('''
    s_cmp_ge_u32 s2, 256
    s_cbranch_scc1 k3_exit
    ''')
    k.stamp(0)
    load_ptrs(k)
    k(f'''
    s_and_b32 s3, s2, 7
    s_lshr_b32 s4, s2, 3
    s_lshr_b32 s5, s3, 1
    s_lshl_b32 s5, s5, 2
    s_and_b32 s6, s4, 3
    s_add_u32 s5, s5, s6             ; rb
    s_lshr_b32 s7, s4, 2             ; j (0..7)
    s_and_b32 s3, s3, 1              ; half
    s_lshl_b32 s6, s3, 3
    s_add_u32 s6, s6, s7
    s_mul_i32 s8, s7, 7
    s_min_u32 s8, s8, 47             ; phi0
    v_and_b32 v1, 63, v0
    v_lshrrev_b32 v15, 6, v0
    v_lshlrev_b32 v12, 4, v1
    v_and_b32 v13, 15, v1
    v_lshrrev_b32 v14, 4, v1
    v_readfirstlane_b32 s4, v15      ; wave
    s_waitcnt lgkmcnt(0)
    ''')
    xo, xs = WS['X1T']
    srd(k, 56, 'ws', xs + 2048, xo - 2048)
    srd_ws(k, 60, 'WPF')
    srd_ws(k, 64, 'X1F')
    srd_ws(k, 76, 'CSP')
    srd_ws(k, 80, 'BIP')
    srd_ws(k, 88, 'STAT')
    k(f'''
    s_lshl_b32 s9, s5, 2
    s_add_u32 s9, s9, s4
    s_lshl_b32 s10, s4, 12
    s_lshl_b32 s11, s5, 8
    s_cmp_eq_u32 s3, 0
    s_cselect_b32 s13, 54, 0
    s_add_u32 s13, s13, s8
    s_lshl_b32 s12, s13, 10          ; B soffset
    v_and_b32 v16, 127, v0
    v_lshrrev_b32 v17, 4, v16
    v_min_u32 v17, 6, v17
    v_add_u32 v17, s13, v17          ; phi'
    v_lshrrev_b32 v18, 1, v17
    v_lshlrev_b32 v18, 5, v18        ; 32*beta
    v_and_b32 v17, 1, v17
    v_lshl_add_u32 v18, v17, 2, v18  ; +4h
    v_lshrrev_b32 v17, 2, v13
    v_lshl_add_u32 v18, v17, 3, v18  ; +8(i>>2)
    v_and_b32 v17, 3, v13
    v_add_u32 v18, v18, v17
    v_lshlrev_b32 v18, 2, v18        ; f*4
    s_mov_b32 s14, {1728*4}
    s_mov_b32 s15, {2*1728*4}
    s_mov_b32 s68, {3*1728*4}
    s_cmp_ge_u32 s4, 2
    s_cbranch_scc1 k3_cb
    buffer_load_dword v20, v18, s[76:79], 0 offen
    buffer_load_dword v21, v18, s[76:79], s14 offen
    buffer_load_dword v22, v18, s[76:79], s15 offen
    buffer_load_dword v23, v18, s[76:79], s68 offen
    s_branch k3_cj
k3_cb:
    buffer_load_dword v20, v18, s[80:83], 0 offen
    buffer_load_dword v21, v18, s[80:83], s14 offen
    buffer_load_dword v22, v18, s[80:83], s15 offen
    buffer_load_dword v23, v18, s[80:83], s68 offen
k3_cj:
    s_lshl_b32 s13, s4, 11
    v_add_u32 v2, s13, v12           ; B: 2048w + 16 lane
    ; A: (8w + (l>>4))*4096 + 16*((l&15) ^ (2(l>>4) + 8(w&1)))
    s_and_b32 s13, s4, 1
    s_lshl_b32 s13, s13, 3
    v_lshlrev_b32 v16, 1, v14
    v_add_u32 v16, s13, v16
    v_xor_b32 v16, v16, v13
    v_lshlrev_b32 v16, 4, v16
    v_mul_u32_u24 v3, {XS}, v14
    v_add_u32 v3, v3, v16
    s_mul_i32 s13, s4, {8*XS}
    v_add_u32 v3, s13, v3
    v_add_u32 v4, {4*XS-1024}, v3
    ''')
    for st in range(NS):
        dma_stage(k, st)
    k(f'''
    ; x1f dump voffset: tau0*1024 + 16 lane
    s_lshl_b32 s13, s9, 11
    v_add_u32 v5, s13, v12
    ; tr-read addr: kq*4096 + 2048 + 256 rr + 16*((4w + (c>>1)) ^ (2rr + 8(kq&1))) + 8(c&1)
    v_bfe_u32 v16, v1, 2, 2          ; rr
    v_bfe_u32 v17, v1, 1, 1          ; c>>1
    s_lshl_b32 s13, s4, 2
    v_add_u32 v17, s13, v17          ; U (a=0)
    v_and_b32 v18, 1, v14
    v_lshlrev_b32 v18, 3, v18
    v_lshl_add_u32 v18, v16, 1, v18  ; f
    v_xor_b32 v17, v17, v18
    v_lshlrev_b32 v6, 4, v17
    v_lshl_add_u32 v6, v16, 8, v6
    v_lshl_add_u32 v6, v14, 12, v6
    v_and_b32 v18, 1, v1
    v_lshl_add_u32 v6, v18, 3, v6
    v_add_u32 v6, 2048, v6
    v_xor_b32 v7, 32, v6
    v_add_u32 v8, {3*SLOT}, v6
    v_add_u32 v9, {3*SLOT}, v7
    v_mov_b32 v10, v12
    v_add_u32 v11, {3*SLOT}, v12
    v_mov_b32 v{ONES}, 0x3f803f80
    v_mov_b32 v{ONES+1}, 0x3f803f80
    v_mov_b32 v{ONES+2}, 0x3f803f80
    v_mov_b32 v{ONES+3}, 0x3f803f80
    s_mov_b32 s70, {f32(C0)}
    s_mov_b32 s71, {f32(C0)}
    s_mov_b32 s72, {f32(C1)}
    s_mov_b32 s73, {f32(C1)}
    s_mov_b32 s74, 1.0
    s_mov_b32 s75, 1.0
    s_waitcnt vmcnt({4*NS})
    v_add_f32 v20, v20, v21
    v_add_f32 v22, v22, v23
    v_add_f32 v20, v20, v22
    v_lshlrev_b32 v16, 2, v0
    ds_write_b32 v16, v20 offset:{CONST % 65536}
    '''.replace(f'ds_write_b32 v16, v20 offset:{CONST % 65536}', f'v_add_u32 v16, {CONST}, v16\nds_write_b32 v16, v20'))
    k('''
    s_cmp_eq_u32 s3, 0
    s_cbranch_scc1 k3_z2
    ''')
    srd_ws(k, 84, 'Z1F')
    mainloop(k, 1)
    epilogue_z1(k)
    k('k3_z2:')
    srd_ws(k, 84, 'Z2F')
    mainloop(k, 2)
    epilogue_z2(k)
    k('k3_exit:\ns_endpgm')
    return k
```

```python
import os
from asmlib import Kern
from layout import WS
from gen_k1 import f32, load_ptrs, srd, srd_ws

WSLOT = 8192
NWS = 3
K4_LDS = 4 * NWS * WSLOT

NSET = 4
ZB = [48 + 28 * n for n in range(NSET)]
WB = [16, 32]
DIST = 3


def zloads(ks):
    Z = ZB[ks % NSET]
    L = []
    for b in range(7):
        v = 2 if b < 4 else 3
        L.append(f'buffer_load_dwordx4 v[{Z+4*b}:{Z+4*b+3}], v{v}, s[60:63], s12 offen offset:{1024*(b%4)}')
    L[-1] += f'\ns_add_u32 s12, s12, {54*1024}'
    return L


def wdma(P):
    slot = P % NWS
    L = []
    for m in range(8):
        c = m >> 1
        rowc = 32 * (c >> 1) + 4 * (c & 1)
        L.append(f'''s_add_u32 m0, s10, {slot*WSLOT+1024*m}
    s_add_u32 s14, s11, {rowc*4096 + 128*P}
    buffer_load_dwordx4 v{4+(m&1)}, s[56:59], s14 offen lds''')
    return L


def wreads(ks):
    slot = (ks >> 1) % NWS
    W = WB[ks & 1]
    return [f'ds_read_b128 v[{W+4*c}:{W+4*c+3}], v{6+(ks&1)} offset:{slot*WSLOT+2048*c}' for c in range(4)]


def make_k4():
    k = Kern('gemm2_kernel', 256, 256, K4_LDS)
    k('''
    s_cmp_ge_u32 s2, 256
    s_cbranch_scc1 k4_exit
    ''')
    k.stamp(0)
    load_ptrs(k)
    k(f'''
    s_and_b32 s3, s2, 7
    s_lshr_b32 s4, s2, 3
    s_lshr_b32 s5, s3, 1
    s_lshl_b32 s5, s5, 3
    s_and_b32 s6, s4, 7
    s_add_u32 s5, s5, s6             ; g
    s_and_b32 s3, s3, 1
    s_lshl_b32 s3, s3, 2
    s_lshr_b32 s7, s4, 3
    s_add_u32 s7, s7, s3             ; j
    s_mul_i32 s8, s7, 7
    s_min_u32 s8, s8, 47             ; phi0
    v_and_b32 v1, 63, v0
    v_lshrrev_b32 v15, 6, v0
    v_lshlrev_b32 v2, 4, v1
    v_add_u32 v3, 4096, v2
    v_and_b32 v13, 15, v1            ; i
    v_lshrrev_b32 v14, 4, v1         ; q
    v_readfirstlane_b32 s4, v15      ; wave
    v_lshrrev_b32 v8, 2, v13
    v_lshlrev_b32 v8, 3, v8
    v_and_b32 v9, 3, v13
    v_add_u32 v8, v8, v9
    v_lshrrev_b32 v11, 3, v1
    v_lshrrev_b32 v12, 2, v11
    v_lshlrev_b32 v12, 3, v12
    v_and_b32 v11, 3, v11
    v_add_u32 v12, v12, v11
    v_lshlrev_b32 v12, 12, v12
    v_and_b32 v11, 7, v1
    v_xor_b32 v11, v11, v14
    v_lshl_add_u32 v4, v11, 4, v12
    v_xor_b32 v5, 64, v4
    v_add_u32 v5, {16*4096}, v5
    v_lshrrev_b32 v11, 1, v13
    v_xor_b32 v11, v11, v14
    v_lshlrev_b32 v11, 4, v11
    v_lshl_add_u32 v6, v13, 7, v11
    s_mul_i32 s10, s4, {NWS*WSLOT}
    v_add_u32 v6, s10, v6
    v_xor_b32 v7, 64, v6
    s_waitcnt lgkmcnt(0)
    ''')
    srd(k, 56, 'wsp', 2048 * 4096)
    srd_ws(k, 60, 'Z2F')
    srd_ws(k, 64, 'Z1F')
    srd_ws(k, 68, 'PF')
    srd(k, 72, 'bsp', 4096)
    k(f'''
    s_lshl_b32 s11, s5, 18           ; 64g*4096
    s_lshl_b32 s9, s4, 10
    s_add_u32 s11, s11, s9
    s_mul_i32 s12, s4, {16*54}
    s_add_u32 s12, s12, s8
    s_lshl_b32 s12, s12, 10
    ''')
    issued = []

    def emit(l, tag):
        k(l)
        issued.append(tag)

    for l in wdma(0):
        emit(l, ('w', 0))
    for l in zloads(0):
        emit(l, ('z', 0))
    for l in zloads(1):
        emit(l, ('z', 1))
    for l in wdma(1):
        emit(l, ('w', 1))
    k(f'''
    s_lshl_b32 s9, s5, 2
    s_add_u32 s9, s9, s4
    s_lshl_b32 s13, s9, 10
    v_add_u32 v10, s13, v2
    s_lshr_b32 s13, s4, 1
    s_lshl_b32 s13, s13, 5
    s_and_b32 s15, s4, 1
    s_lshl_b32 s15, s15, 2
    s_add_u32 s13, s13, s15
    s_lshl_b32 s15, s5, 6
    s_add_u32 s13, s13, s15
    s_lshl_b32 s13, s13, 1
    v_lshlrev_b32 v9, 1, v8
    ''')
    emit('buffer_load_ushort v206, v9, s[72:75], s13 offen', ('e', 0))
    for b in range(7):
        k(f'''
        s_add_u32 s13, s8, {b}
        s_lshr_b32 s15, s13, 1
        s_lshl_b32 s15, s15, 17
        s_and_b32 s13, s13, 1
        s_lshl_b32 s13, s13, 3
        s_add_u32 s{76+b}, s13, s15''')
        emit(f'buffer_load_dwordx2 v[{192+2*b}:{193+2*b}], v10, s[64:67], s{76+b} offen', ('e', 0))

    def wait_for(tags, extra=''):
        last = max(i for i, t in enumerate(issued) if t in tags)
        k(f's_waitcnt vmcnt({len(issued) - 1 - last}) {extra}')

    k.stamp(1)
    wait_for([('w', 0)])
    for l in wreads(0):
        k(l)
    nz = 2
    for ks in range(16):
        Z = ZB[ks % NSET]
        W = WB[ks & 1]
        if ks in (1, 4, 8, 12):
            k.stamp({1: 2, 4: 3, 8: 4, 12: 5}[ks])
        need = [('z', ks)]
        if ks + 1 < 16:
            need.append(('w', (ks + 1) >> 1))
        wait_for(need, 'lgkmcnt(0)')
        todo = []
        if ks + 1 < 16:
            todo += [(None, l) for l in wreads(ks + 1)]
        while nz <= min(ks + DIST, 15):
            todo += [(('z', nz), l) for l in zloads(nz)]
            nz += 1
        if ks % 2 == 0 and (ks >> 1) + 2 < 8:
            P = (ks >> 1) + 2
            todo += [(('w', P), l) for l in wdma(P)]
        per = 1 if len(todo) > 14 else 2
        m = cnt = 0
        for c in range(4):
            for b in range(7):
                a = 4 * (7 * c + b)
                cc = '0' if ks == 0 else f'a[{a}:{a+3}]'
                k(f'v_mfma_f32_16x16x32_bf16 a[{a}:{a+3}], v[{Z+4*b}:{Z+4*b+3}], v[{W+4*c}:{W+4*c+3}], {cc}')
                m += 1
                if m % per == 0 and cnt < len(todo):
                    t, l = todo[cnt]
                    k(l)
                    if t:
                        issued.append(t)
                    cnt += 1
        assert cnt == len(todo), (ks, len(todo))
    k.stamp(6)
    k('s_barrier')
    for w in range(4):
        k(f'''
        s_cmp_eq_u32 s4, {w}
        s_cbranch_scc0 k4_red_{w}''')
        for c in range(4):
            if c == w:
                continue
            src = (w - c - 1) % 4
            k(f'v_add_u32 v11, {(c*3+src)*7168}, v2')
            for b in range(7):
                a = 4 * (7 * c + b)
                k(f'ds_write_b128 v11, a[{a}:{a+3}] offset:{1024*b}')
        for n in range(28):
            k(f'v_accvgpr_read_b32 v{16+n}, a{28*w+n}')
        k(f'k4_red_{w}:')
    k(f'''
    s_mul_i32 s14, s4, {3*7168}
    v_add_u32 v11, s14, v2
    v_lshlrev_b32 v206, 16, v206
    v_mov_b32 v207, v206
    s_waitcnt lgkmcnt(0)
    s_barrier
    ''')
    k.stamp(7)
    for b in range(7):
        for s in range(3):
            r = 48 + 12 * b + 4 * s
            k(f'ds_read_b128 v[{r}:{r+3}], v11 offset:{s*7168+1024*b}')
    for b in range(7):
        k(f's_waitcnt lgkmcnt({min(15, 18-3*b)})')
        o = 16 + 4 * b
        r = 48 + 12 * b
        for p in range(2):
            k(f'''
            v_pk_add_f32 v[{o+2*p}:{o+2*p+1}], v[{o+2*p}:{o+2*p+1}], v[{r+2*p}:{r+2*p+1}]
            v_pk_add_f32 v[{r+4+2*p}:{r+4+2*p+1}], v[{r+4+2*p}:{r+4+2*p+1}], v[{r+8+2*p}:{r+8+2*p+1}]
            v_pk_add_f32 v[{o+2*p}:{o+2*p+1}], v[{o+2*p}:{o+2*p+1}], v[206:207]
            v_lshlrev_b32 v{r}, 16, v{192+2*b+p}
            v_and_b32 v{r+1}, 0xffff0000, v{192+2*b+p}
            v_pk_add_f32 v[{o+2*p}:{o+2*p+1}], v[{o+2*p}:{o+2*p+1}], v[{r+4+2*p}:{r+4+2*p+1}]
            v_pk_mul_f32 v[{o+2*p}:{o+2*p+1}], v[{o+2*p}:{o+2*p+1}], v[{r}:{r+1}]
            v_cvt_pk_bf16_f32 v{192+2*b+p}, v{o+2*p}, v{o+2*p+1}
            ''')
        k(f'buffer_store_dwordx2 v[{192+2*b}:{193+2*b}], v10, s[68:71], s{76+b} offen')
    k.stamp(8)
    if os.environ.get('STAMP'):
        k('s_waitcnt vmcnt(0)')
    k.stamp(9)
    k.stamp_flush(3)
    k('k4_exit:\ns_endpgm')
    return k
```

```python
from asmlib import Kern
from layout import WS
from gen_k1 import f32, load_ptrs, srd, srd_ws

K5_LDS = 60 * 1024
NSET = 4
SETS = [('v', 16 + 36 * n) for n in range(NSET)]
DIST = 3


def reg(S, n):
    return f'{S[0]}[{S[1]+n}:{S[1]+n+3}]'


def kloads(ks):
    S = SETS[ks % NSET]
    L = []
    for c in range(4):
        L.append(f'buffer_load_dwordx4 {reg(S, 20+4*c)}, v2, s[60:63], s12 offen offset:{1024*c}')
    for b in range(5):
        v = 2 if b < 4 else 3
        L.append(f'buffer_load_dwordx4 {reg(S, 4*b)}, v{v}, s[56:59], s11 offen offset:{1024*(b%4)}')
    L.append(f's_add_u32 s11, s11, {40*1024}\ns_add_u32 s12, s12, {128*1024}')
    return L


def make_k5():
    k = Kern('gemm3_kernel', 256, 256, K5_LDS)
    k('''
    s_cmp_ge_u32 s2, 256
    s_cbranch_scc1 k5_exit
    ''')
    k.stamp(0)
    load_ptrs(k)
    k(f'''
    s_and_b32 s3, s2, 7
    s_lshr_b32 s4, s2, 3
    s_lshr_b32 s5, s3, 1
    s_lshl_b32 s5, s5, 3
    s_and_b32 s6, s4, 7
    s_add_u32 s5, s5, s6             ; g
    s_and_b32 s3, s3, 1
    s_lshl_b32 s3, s3, 2
    s_lshr_b32 s7, s4, 3
    s_add_u32 s7, s7, s3             ; e
    s_mul_i32 s8, s7, 5              ; delta0
    v_and_b32 v1, 63, v0
    v_lshrrev_b32 v15, 6, v0
    v_lshlrev_b32 v2, 4, v1
    v_add_u32 v3, 4096, v2
    v_and_b32 v13, 15, v1            ; i
    v_lshrrev_b32 v14, 4, v1         ; q
    v_readfirstlane_b32 s4, v15      ; wave
    v_lshrrev_b32 v8, 2, v13
    v_lshlrev_b32 v8, 3, v8
    v_and_b32 v9, 3, v13
    v_add_u32 v8, v8, v9             ; row_local
    v_mul_u32_u24 v4, 1280, v8
    v_lshl_add_u32 v4, v14, 4, v4
    v_lshlrev_b32 v5, 5, v14
    s_waitcnt lgkmcnt(0)
    ''')
    k.stamp(9)
    srd_ws(k, 56, 'WOF')
    srd_ws(k, 60, 'PF')
    srd_ws(k, 64, 'X1F')
    srd_ws(k, 68, 'MODF')
    srd(k, 72, 'out', 2048 * 1280)
    k(f'''
    s_mul_i32 s9, s4, 7              ; beta0
    s_mul_i32 s11, s9, 40
    s_add_u32 s11, s11, s8
    s_lshl_b32 s11, s11, 10
    s_lshl_b32 s12, s9, 7
    s_lshl_b32 s10, s5, 2
    s_add_u32 s12, s12, s10
    s_lshl_b32 s12, s12, 10
    ; tau = 4g+w
    s_add_u32 s10, s10, s4
    s_lshl_b32 s10, s10, 10
    v_add_u32 v10, s10, v2
    s_lshr_b32 s14, s4, 1
    s_lshl_b32 s14, s14, 5
    s_and_b32 s15, s4, 1
    s_lshl_b32 s15, s15, 2
    s_add_u32 s14, s14, s15
    s_lshl_b32 s15, s5, 6
    s_add_u32 s14, s14, s15
    s_mul_i32 s13, s14, 1280
    ''')
    for ks in range(2):
        for l in kloads(ks):
            k(l)
    for b in range(5):
        k(f'''
        s_add_u32 s14, s8, {b}
        s_lshr_b32 s15, s14, 1           ; dblk
        s_and_b32 s14, s14, 1            ; h
        s_lshl_b32 s76, s15, 17
        s_lshl_b32 s77, s14, 3
        s_add_u32 s76, s76, s77
        buffer_load_dwordx2 v[{196+2*b}:{197+2*b}], v10, s[64:67], s76 offen
        s_lshl_b32 s76, s15, 6
        s_add_u32 s76, s76, s77
        s_add_u32 s{80+b}, s76, s13
        s_lshl_b32 s76, s76, 1
        s_add_u32 s76, s76, {5*640*4}
        buffer_load_dwordx4 v[{208+4*b}:{211+4*b}], v5, s[68:71], s76 offen
        ''')
    k.stamp(1)
    issued = [0] * 9 + [1] * 9 + [-1] * 10
    nxt_ks = 2
    for ks in range(7):
        S = SETS[ks % NSET]
        last = max(i for i, t in enumerate(issued) if t == ks)
        k(f's_waitcnt vmcnt({len(issued) - 1 - last})')
        if ks in (0, 1, 3):
            k.stamp({0: 2, 1: 3, 3: 4}[ks])
        todo = []
        while nxt_ks <= min(ks + DIST, 6):
            todo += [(nxt_ks, l) for l in kloads(nxt_ks)]
            nxt_ks += 1
        per = 1 if len(todo) > 10 else 2
        m = 0
        cnt = 0
        for c in range(4):
            for b in range(5):
                a = 4 * (5 * c + b)
                cc = '0' if ks == 0 else f'a[{a}:{a+3}]'
                k(f'v_mfma_f32_16x16x32_bf16 a[{a}:{a+3}], {reg(S, 4*b)}, {reg(S, 20+4*c)}, {cc}')
                m += 1
                if m % per == 0 and cnt < len(todo):
                    t, l = todo[cnt]
                    k(l)
                    if l.startswith('buffer'):
                        issued.append(t)
                    cnt += 1
        assert cnt == len(todo)
    k('s_waitcnt vmcnt(0)')
    k.stamp(5)
    for w in range(4):
        k(f'''
        s_cmp_eq_u32 s4, {w}
        s_cbranch_scc0 k5_red_{w}''')
        for c in range(4):
            if c == w:
                continue
            src = (w - c - 1) % 4
            for b in range(5):
                a = 4 * (5 * c + b)
                k(f'ds_write_b128 v2, a[{a}:{a+3}] offset:{(c*3+src)*5120+1024*b}')
        for n in range(20):
            k(f'v_accvgpr_read_b32 v{16+n}, a{20*w+n}')
        k(f'k5_red_{w}:')
    k(f'''
    s_mul_i32 s14, s4, {3*5120}
    v_add_u32 v11, s14, v2
    s_waitcnt lgkmcnt(0)
    s_barrier
    ''')
    k.stamp(6)
    for b in range(5):
        for s in range(3):
            r = 48 + 12 * b + 4 * s
            k(f'ds_read_b128 v[{r}:{r+3}], v11 offset:{s*5120+1024*b}')
    for b in range(5):
        k(f's_waitcnt lgkmcnt({12-3*b})')
        o = 16 + 4 * b
        r = 48 + 12 * b
        for p in range(2):
            k(f'''
            v_pk_add_f32 v[{o+2*p}:{o+2*p+1}], v[{o+2*p}:{o+2*p+1}], v[{r+2*p}:{r+2*p+1}]
            v_pk_add_f32 v[{r+4+2*p}:{r+4+2*p+1}], v[{r+4+2*p}:{r+4+2*p+1}], v[{r+8+2*p}:{r+8+2*p+1}]
            v_lshlrev_b32 v{r}, 16, v{196+2*b+p}
            v_and_b32 v{r+1}, 0xffff0000, v{196+2*b+p}
            v_pk_add_f32 v[{o+2*p}:{o+2*p+1}], v[{o+2*p}:{o+2*p+1}], v[{r+4+2*p}:{r+4+2*p+1}]
            v_pk_fma_f32 v[{o+2*p}:{o+2*p+1}], v[{o+2*p}:{o+2*p+1}], v[{208+4*b+2*p}:{209+4*b+2*p}], v[{r}:{r+1}]
            v_cvt_pk_bf16_f32 v{196+2*b+p}, v{o+2*p}, v{o+2*p+1}
            ''')
        k(f'buffer_store_dwordx2 v[{196+2*b}:{197+2*b}], v4, s[72:75], s{80+b} offen')
    k.stamp(7)
    k('s_waitcnt vmcnt(0)')
    k.stamp(8)
    k.stamp_flush(4)
    k('k5_exit:\ns_endpgm')
    return k
```

```python
L, D, N, F, FH = 2048, 640, 128, 1728, 864


def _al(x, a=4096):
    return (x + a - 1) // a * a


_off = 0
WS = {}


def _add(name, size):
    global _off
    WS[name] = (_off, size)
    _off = _al(_off + size)


import os
XS = int(os.environ.get('XS', 4224))
LBS = int(os.environ.get('LBS', 20608))
KR_STRIDE = 4128

_add('MODP', 4 * 3840 * 4)
_add('MODF', 3840 * 4)
_add('XT', 128 * LBS)
_add('XNT', 128 * LBS)
_add('KR', D * KR_STRIDE)
_add('WOF', 27 * 40 * 1024)
_add('WPF', 20 * 108 * 1024)
_add('CSP', 4 * F * 4)
_add('BIP', 4 * F * 4)
_add('X1T', D * XS)
_add('X1F', 20 * 128 * 1024)
_add('Z1F', 27 * 128 * 1024)
_add('Z2F', 64 * 54 * 1024)
_add('PF', 27 * 128 * 1024)
_add('STAT', 2048 * 8)
_add('FLG', 12288)
_add('GO', 1152 * 64)
_add('DBG', 5 * 1100 * 4 * 64)
WS_END = _off
```

```python
from asmlib import Kern
from layout import WS, KR_STRIDE, XS, LBS
from gen_k1 import f32, load_ptrs, srd, srd_ws

N_WP, N_MISC, N_CONV, N_WSF = 108, 32, 640, 128
B_WP = N_CONV
B_WSF = B_WP + N_WP
B_MISC = B_WSF + N_WSF
CS = 4160
HOFF = 8 * CS
K2_LDS = 38912


def quad_sum(k, v):
    k(f'''
    v_add_f32_dpp v{v}, v{v}, v{v} quad_perm:[1,0,3,2] row_mask:0xf bank_mask:0xf
    v_add_f32_dpp v{v}, v{v}, v{v} quad_perm:[2,3,0,1] row_mask:0xf bank_mask:0xf
    ''')


def role_wp(k):
    RS = 192
    RED = 160 * RS
    srd(k, 56, 'win', 640 * 3456)
    srd_ws(k, 60, 'MODP')
    srd_ws(k, 64, 'WPF')
    srd_ws(k, 68, 'CSP')
    srd_ws(k, 72, 'BIP')
    k(f'''
    s_sub_u32 s3, s2, {B_WP}
    s_mul_i32 s4, s3, 2428
    s_lshr_b32 s4, s4, 16            ; dq
    s_mul_i32 s5, s4, 27
    s_sub_u32 s5, s3, s5             ; fb
    v_and_b32 v1, 7, v0              ; c8
    v_lshrrev_b32 v2, 3, v0          ; rg
    v_mul_u32_u24 v3, 3456, v2
    v_lshl_add_u32 v3, v1, 4, v3
    s_mul_i32 s6, s4, {160*3456}
    s_lshl_b32 s7, s5, 7
    s_add_u32 s6, s6, s7
    v_and_b32 v4, 3, v1
    v_mul_u32_u24 v4, 15360, v4
    v_lshrrev_b32 v5, 2, v1
    v_mul_u32_u24 v5, 2560, v5
    v_add_u32 v4, v4, v5
    v_lshl_add_u32 v4, v2, 2, v4
    s_mul_i32 s12, s4, 640
    s_add_u32 s12, s12, {3*2560}
    ''')
    for i in range(1, 5):
        k(f's_add_u32 s{6+i}, s6, {32*3456*i}')
    for i in range(5):
        k(f'buffer_load_dword v{28+i}, v4, s[60:63], s12 offen offset:{128*i}')
    for i in range(5):
        k(f'buffer_load_dwordx4 v[{8+4*i}:{11+4*i}], v3, s[56:59], s{6+i} offen')
    k(f'''
    v_mul_u32_u24 v6, {RS}, v2
    v_lshl_add_u32 v6, v1, 4, v6
    v_cmp_gt_u32 vcc, 4, v1
    s_waitcnt vmcnt(5)
    ''')
    for i in range(5):
        v = 28 + i
        quad_sum(k, v)
        k(f'''
        v_cvt_pk_bf16_f32 v{v}, v{v}, v{v}
        v_lshlrev_b32 v{v}, 16, v{v}
        v_mov_b32_dpp v5, v{v} row_half_mirror row_mask:0xf bank_mask:0xf
        v_cndmask_b32 v{34+4*i}, v{v}, v5, vcc      ; cb
        v_cndmask_b32 v{36+4*i}, v5, v{v}, vcc      ; sb
        v_add_f32 v{34+4*i}, 1.0, v{34+4*i}
        v_mov_b32 v{35+4*i}, v{34+4*i}
        v_mov_b32 v{37+4*i}, v{36+4*i}
        ''')
    for i in range(5):
        k(f's_waitcnt vmcnt({4-i})')
        for j in range(4):
            r = 8 + 4 * i + j
            k(f'''
            v_lshlrev_b32 v72, 16, v{r}
            v_and_b32 v73, 0xffff0000, v{r}
            v_pk_mul_f32 v[74:75], v[72:73], v[{34+4*i}:{35+4*i}]
            ''')
            if i == 0:
                k(f'v_pk_mul_f32 v[{64+2*j}:{65+2*j}], v[72:73], v[{36+4*i}:{37+4*i}]')
            else:
                k(f'v_pk_fma_f32 v[{64+2*j}:{65+2*j}], v[72:73], v[{36+4*i}:{37+4*i}], v[{64+2*j}:{65+2*j}]')
            k(f'v_cvt_pk_bf16_f32 v{r}, v74, v75')
            if i == 0:
                k(f'''
                v_lshlrev_b32 v{56+2*j}, 16, v{r}
                v_and_b32 v{57+2*j}, 0xffff0000, v{r}''')
            else:
                k(f'''
                v_lshlrev_b32 v76, 16, v{r}
                v_and_b32 v77, 0xffff0000, v{r}
                v_pk_add_f32 v[{56+2*j}:{57+2*j}], v[{56+2*j}:{57+2*j}], v[76:77]''')
        k(f'ds_write_b128 v6, v[{8+4*i}:{11+4*i}] offset:{32*RS*i}')
    for j in range(16):
        k(f'v_add_f32_dpp v{56+j}, v{56+j}, v{56+j} row_ror:8 row_mask:0xf bank_mask:0xf')
    k(f'''
    v_lshrrev_b32 v5, 4, v0
    v_lshlrev_b32 v5, 8, v5
    v_lshl_add_u32 v5, v1, 5, v5
    ds_write_b128 v5, v[56:59] offset:{RED}
    ds_write_b128 v5, v[60:63] offset:{RED+16}
    ds_write_b128 v5, v[64:67] offset:{RED+4096}
    ds_write_b128 v5, v[68:71] offset:{RED+4096+16}
    v_and_b32 v40, 63, v0            ; lane
    v_lshrrev_b32 v41, 6, v0
    v_lshrrev_b32 v42, 4, v40        ; kq
    v_bfe_u32 v43, v40, 2, 2         ; rr
    v_and_b32 v44, 3, v40            ; c
    v_lshl_add_u32 v7, v42, 3, v43
    v_mul_u32_u24 v7, {RS}, v7
    v_lshl_add_u32 v7, v44, 4, v7    ; + 16c
    v_lshrrev_b32 v45, 1, v41
    v_lshl_add_u32 v7, v45, 6, v7    ; + 64 blk
    v_and_b32 v45, 1, v41
    v_lshl_add_u32 v7, v45, 3, v7    ; + 8a
    v_lshlrev_b32 v46, 4, v40
    v_lshl_add_u32 v46, v41, 10, v46
    s_mul_i32 s6, s4, {5*108}
    s_lshl_b32 s7, s5, 2
    s_add_u32 s6, s6, s7
    s_lshl_b32 s6, s6, 10
    s_waitcnt lgkmcnt(0)
    s_barrier
    ''')
    for j in range(5):
        k(f'''
        ds_read_b64_tr_b16 v[{8+4*j}:{9+4*j}], v7 offset:{32*RS*j}
        ds_read_b64_tr_b16 v[{10+4*j}:{11+4*j}], v7 offset:{32*RS*j+4*RS}''')
    for j in range(5):
        k(f'''
        s_waitcnt lgkmcnt({8-2*j})
        buffer_store_dwordx4 v[{8+4*j}:{11+4*j}], v46, s[64:67], s6 offen
        s_add_u32 s6, s6, {108*1024}''')
    k(f'''
    v_cmp_gt_u32 vcc, 128, v0
    s_and_saveexec_b64 s[14:15], vcc
    s_cbranch_execz k2_wp_end
    v_lshlrev_b32 v6, 2, v40
    v_lshl_add_u32 v5, v41, 12, v6
    ''')
    for i in range(16):
        k(f'ds_read_b32 v{48+i}, v5 offset:{RED+256*i}')
    k('s_waitcnt lgkmcnt(0)')
    for s in (8, 4, 2, 1):
        for i in range(s):
            k(f'v_add_f32 v{48+i}, v{48+i}, v{48+i+s}')
    k(f'''
    s_mul_i32 s6, s4, {1728*4}
    s_lshl_b32 s7, s5, 8
    s_add_u32 s6, s6, s7
    v_readfirstlane_b32 s8, v41
    s_cmp_eq_u32 s8, 0
    s_cbranch_scc0 k2_wp_b
    buffer_store_dword v48, v6, s[68:71], s6 offen
    s_endpgm
k2_wp_b:
    buffer_store_dword v48, v6, s[72:75], s6 offen
k2_wp_end:
    s_endpgm
    ''')


def role_misc(k):
    srd_ws(k, 56, 'STAT')
    srd_ws(k, 60, 'MODP')
    srd_ws(k, 64, 'MODF')
    srd_ws(k, 68, 'FLG')
    k(f"""
    s_sub_u32 s3, s2, {B_MISC}
    s_lshl_b32 s4, s3, 13
    s_add_u32 s9, s4, 4096
    v_lshlrev_b32 v1, 4, v0
    v_mov_b32 v4, -1
    v_mov_b32 v5, -1
    v_mov_b32 v6, -1
    v_mov_b32 v7, -1
    buffer_store_dwordx4 v[4:7], v1, s[56:59], s4 offen
    buffer_store_dwordx4 v[4:7], v1, s[56:59], s9 offen
    s_cmp_lt_u32 s3, 30
    s_cbranch_scc1 k2_misc_a
    v_mov_b32 v12, 0
    v_mov_b32 v13, 0
    v_mov_b32 v14, 0
    v_mov_b32 v15, 0
    s_sub_u32 s5, s3, 30
    s_lshl_b32 s5, s5, 12
    buffer_store_dwordx4 v[12:15], v1, s[68:71], s5 offen
k2_misc_a:
    s_cmp_ge_u32 s3, 15
    s_cbranch_scc1 k2_misc_end
    v_lshlrev_b32 v2, 2, v0
    s_lshl_b32 s5, s3, 10
    s_add_u32 s6, s5, 15360
    s_add_u32 s7, s5, 30720
    s_add_u32 s8, s5, 46080
    buffer_load_dword v8, v2, s[60:63], s5 offen
    buffer_load_dword v9, v2, s[60:63], s6 offen
    buffer_load_dword v10, v2, s[60:63], s7 offen
    buffer_load_dword v11, v2, s[60:63], s8 offen
    s_waitcnt vmcnt(0)
    v_add_f32 v8, v8, v9
    v_add_f32 v10, v10, v11
    v_add_f32 v8, v8, v10
    v_cvt_pk_bf16_f32 v8, v8, v8
    v_lshlrev_b32 v8, 16, v8
    buffer_store_dword v8, v2, s[64:67], s5 offen
k2_misc_end:
    s_endpgm
    """)


def role_wsf(k):
    srd(k, 56, 'wsp', 2048 * 4096)
    k(f"""
    s_sub_u32 s3, s2, {B_WSF}
    s_lshl_b32 s3, s3, 16
    v_lshlrev_b32 v1, 4, v0
    """)
    for j in range(16):
        k(f"""
        buffer_load_dwordx4 v[{4+4*j}:{7+4*j}], v1, s[56:59], s3 offen
        s_add_u32 s3, s3, 4096""")
    k('s_waitcnt vmcnt(0)\ns_endpgm')


def role_conv(k):
    srd_ws(k, 56, 'KR')
    srd_ws(k, 60, 'XNT')
    srd_ws(k, 64, 'XT')
    srd_ws(k, 68, 'MODP')
    srd(k, 72, 'Dskip', 1280)
    srd_ws(k, 76, 'X1T')
    FB = 8
    ACC = 72
    XR = 4
    k(f"""
    s_and_b32 s3, s2, 7
    s_lshl_b32 s3, s3, 2
    s_lshr_b32 s4, s2, 3
    s_and_b32 s5, s4, 3
    s_add_u32 s3, s3, s5
    s_lshr_b32 s4, s4, 2
    s_lshl_b32 s4, s4, 5
    s_add_u32 s3, s3, s4             ; d = 32(k>>2) + 4xcd + (k&3)
    v_and_b32 v1, 63, v0             ; lane
    v_lshrrev_b32 v8, 6, v0
    v_lshlrev_b32 v11, 4, v0
    v_readfirstlane_b32 s4, v8       ; wave
    s_mul_i32 s5, s3, {KR_STRIDE}
    s_mul_i32 s6, s3, {XS}
    buffer_load_dwordx4 v[40:43], v11, s[56:59], s5 offen
    buffer_load_dwordx4 v[44:47], v11, s[56:59], s5 offen offset:16
    v_and_b32 v16, 3, v1
    v_mul_u32_u24 v16, 15360, v16
    v_bfe_u32 v17, v1, 2, 2
    v_min_u32 v17, 2, v17
    v_mul_u32_u24 v17, 2560, v17
    v_add_u32 v16, v16, v17
    s_lshl_b32 s10, s3, 2
    buffer_load_dword v18, v16, s[68:71], s10 offen
    v_lshrrev_b32 v9, 1, v0
    v_mul_u32_u24 v9, {LBS}, v9
    v_and_b32 v10, 1, v0
    v_lshl_add_u32 v9, v10, 4, v9
    s_lshl_b32 s7, s3, 5
    buffer_load_dwordx4 v[12:15], v9, s[60:63], s7 offen
    v_mov_b32 v19, 0
    s_lshl_b32 s11, s3, 1
    buffer_load_ushort v20, v19, s[72:75], s11 offen
    v_and_b32 v21, 15, v1            ; n / b
    v_lshrrev_b32 v22, 4, v1         ; q / kq
    v_mul_u32_u24 v23, {LBS}, v21
    v_lshl_add_u32 v23, v22, 3, v23  ; n*20480 + 8q
    s_mul_i32 s8, s4, {32*LBS}
    s_add_u32 s8, s8, s7
    s_add_u32 s9, s8, {16*LBS}
    buffer_load_dwordx2 v[4:5], v23, s[64:67], s8 offen
    buffer_load_dwordx2 v[6:7], v23, s[64:67], s9 offen
    s_lshl_b32 s12, s4, 10
    s_add_u32 s13, s6, s12
    v_mov_b32 v24, 0
    v_mov_b32 v25, 0
    v_mov_b32 v26, 0
    v_mov_b32 v27, 0
    v_and_b32 v28, 7, v0
    v_mul_u32_u24 v28, {CS}, v28
    ds_write_b128 v28, v[24:27] offset:4096
    v_min_u32 v29, 29, v1
    v_lshlrev_b32 v29, 4, v29
    ds_write_b128 v29, v[24:27] offset:{HOFF}
    v_sub_u32 v30, 15, v21           ; b'
    v_and_b32 v31, 7, v30
    v_mul_u32_u24 v2, {CS}, v31
    v_lshrrev_b32 v30, 3, v30
    v_add_u32 v30, v30, v22
    v_lshl_add_u32 v2, v30, 4, v2
    s_lshl_b32 s14, s4, 7
    s_sub_u32 s14, 384, s14          ; 448 - 128w - 64
    v_add_u32 v2, s14, v2
    v_lshlrev_b32 v3, 5, v21
    v_lshl_add_u32 v3, v22, 4, v3
    s_add_u32 s15, s14, {HOFF}
    v_add_u32 v3, s15, v3
    s_waitcnt vmcnt(5)
    """)
    k.stamp(1)
    k(f"""
    ds_write_b128 v11, v[40:43] offset:{0*CS}
    ds_write_b128 v11, v[42:45] offset:{4*CS}
    """)
    for j in range(6):
        k(f'v_mov_b32 v{48+j}, v{41+j}')
    k(f"""
    ds_write_b128 v11, v[48:51] offset:{2*CS}
    ds_write_b128 v11, v[50:53] offset:{6*CS}
    """)
    for j in range(6):
        k(f'v_alignbit_b32 v{56+j}, v{41+j}, v{40+j}, 16')
    k(f"""
    ds_write_b128 v11, v[56:59] offset:{1*CS}
    ds_write_b128 v11, v[58:61] offset:{5*CS}
    """)
    for j in range(6):
        k(f'v_alignbit_b32 v{64+j}, v{42+j}, v{41+j}, 16')
    k(f"""
    ds_write_b128 v11, v[64:67] offset:{3*CS}
    ds_write_b128 v11, v[66:69] offset:{7*CS}
    s_waitcnt vmcnt(4)
    """)
    quad_sum(k, 18)
    k(f"""
    v_cvt_pk_bf16_f32 v18, v18, v18
    v_lshlrev_b32 v18, 16, v18
    s_nop 0
    v_readlane_b32 s80, v18, 0       ; sa
    v_readlane_b32 s81, v18, 4       ; ca
    v_readlane_b32 s82, v18, 8       ; ga
    s_nop 1
    v_mov_b32 v32, s81
    v_add_f32 v32, 1.0, v32
    v_mov_b32 v33, v32
    v_mov_b32 v34, s80
    v_mov_b32 v35, s80
    s_waitcnt vmcnt(3)
    """)
    for j in range(4):
        k(f"""
        v_lshlrev_b32 v36, 16, v{12+j}
        v_and_b32 v37, 0xffff0000, v{12+j}
        v_pk_fma_f32 v[36:37], v[36:37], v[32:33], v[34:35]
        v_cvt_pk_bf16_f32 v{12+j}, v36, v37""")
    k(f"""
    ds_write_b128 v11, v[12:15] offset:{HOFF+480}
    s_waitcnt vmcnt(2)
    v_lshlrev_b32 v20, 16, v20
    s_nop 0
    v_readfirstlane_b32 s83, v20     ; Dskip
    s_waitcnt lgkmcnt(0)
    s_barrier
    """)
    k.stamp(2)
    first = [True] * 8

    def rd_f(p, rr):
        return f'ds_read_b128 v[{FB+4*p}:{FB+3+4*p}], v2 offset:{3584-512*p+64*(1-rr)}'

    def rd_g(q, rr):
        return f'ds_read_b128 v[{FB+32+4*q}:{FB+35+4*q}], v3 offset:{512*q+64*(1-rr)}'

    def mf(p, q):
        i = p + q
        a = ACC + 4 * i
        c = '0' if first[i] else f'v[{a}:{a+3}]'
        first[i] = False
        k(f'v_mfma_f32_16x16x32_bf16 v[{a}:{a+3}], v[{FB+4*p}:{FB+3+4*p}], v[{FB+32+4*q}:{FB+35+4*q}], {c}')

    for m in range(8):
        k(rd_g(m, 0))
        k(rd_f(7 - m, 0))
    issued_after = 0
    for st in range(8):
        p = 7 - st
        k(f's_waitcnt lgkmcnt({min(15, 16-(2*st+2)+issued_after)})')
        for q in range(st + 1):
            mf(p, q)
        k(rd_f(p, 1))
        issued_after += 1
    for q in range(8):
        k(rd_g(q, 1))
    for q in range(8):
        k(f's_waitcnt lgkmcnt({7-q})')
        for p in range(7 - q, -1, -1):
            mf(p, q)
    k.stamp(3)
    k(f"""
    v_lshlrev_b32 v8, 4, v1          ; lane*16
    s_barrier
    """)
    for w in range(4):
        k(f"""
        s_cmp_eq_u32 s4, {w}
        s_cbranch_scc0 k2_red_{w}""")
        for i in range(8):
            o = i >> 1
            if o == w:
                continue
            src = (w - o - 1) % 4
            k(f'ds_write_b128 v8, v[{ACC+4*i}:{ACC+4*i+3}] offset:{(i*3+src)*1024}')
        for j in range(8):
            k(f'v_mov_b32 v{40+j}, v{ACC+8*w+j}')
        k(f'k2_red_{w}:')
    k(f'''
    s_mul_i32 s12, s4, 6144
    v_add_u32 v9, s12, v8
    v_and_b32 v21, 15, v1
    v_lshrrev_b32 v22, 4, v1
    v_lshlrev_b32 v23, 5, v21
    v_lshl_add_u32 v23, v22, 3, v23
    s_lshl_b32 s12, s4, 10
    v_add_u32 v10, s12, v23
    v_lshrrev_b32 v11, 1, v21
    v_lshlrev_b32 v11, 6, v11
    v_and_b32 v12, 1, v22
    v_lshl_add_u32 v11, v12, 5, v11
    v_and_b32 v12, 1, v21
    v_lshl_add_u32 v11, v12, 4, v11
    v_lshrrev_b32 v12, 1, v22
    v_lshl_add_u32 v11, v12, 3, v11
    s_waitcnt lgkmcnt(0)
    s_barrier
    ds_read_b64 v[12:13], v10 offset:{HOFF+480}
    ds_read_b64 v[14:15], v10 offset:{HOFF+480+512}
    ''')
    for j in range(6):
        k(f'ds_read_b128 v[{48+4*j}:{51+4*j}], v9 offset:{1024*j}')
    k(f'''
    v_mov_b32 v16, s83
    v_mov_b32 v17, s83
    v_mov_b32 v18, s82
    v_mov_b32 v19, s82
    s_waitcnt lgkmcnt(0) vmcnt(0)
    ''')
    for t in range(2):
        o = 40 + 4 * t
        for j in range(3):
            s = 48 + 12 * t + 4 * j
            k(f'''
            v_pk_add_f32 v[{o}:{o+1}], v[{o}:{o+1}], v[{s}:{s+1}]
            v_pk_add_f32 v[{o+2}:{o+3}], v[{o+2}:{o+3}], v[{s+2}:{s+3}]''')
        for hh in range(2):
            hv = 12 + 2 * t + hh
            xv = XR + 2 * t + hh
            y = o + 2 * hh
            k(f'''
            v_lshlrev_b32 v20, 16, v{hv}
            v_and_b32 v21, 0xffff0000, v{hv}
            v_pk_fma_f32 v[{y}:{y+1}], v[20:21], v[16:17], v[{y}:{y+1}]
            v_lshlrev_b32 v22, 16, v{xv}
            v_and_b32 v23, 0xffff0000, v{xv}
            v_pk_fma_f32 v[{y}:{y+1}], v[{y}:{y+1}], v[18:19], v[22:23]
            v_cvt_pk_bf16_f32 v{24+2*t+hh}, v{y}, v{y+1}
            ''')
        k(f'buffer_store_dwordx2 v[{24+2*t}:{25+2*t}], v11, s[76:79], s13 offen offset:{512*t}')
    k.stamp(4)
    k('s_waitcnt vmcnt(0)')
    k.stamp(5)
    k.stamp_flush(1)
    k('s_endpgm')


def make_k2():
    total = N_WP + N_MISC + N_CONV + N_WSF
    k = Kern('conv_kernel', total, 256, K2_LDS)
    k(f"""
    s_cmp_ge_u32 s2, {total}
    s_cbranch_scc1 k2_exit
    """)
    k.stamp_s = 88
    k.stamp_v = 100
    k.stamp(0)
    load_ptrs(k)
    k(f"""
    s_waitcnt lgkmcnt(0)
    s_cmp_ge_u32 s2, {B_MISC}
    s_cbranch_scc1 k2_misc
    s_cmp_ge_u32 s2, {B_WSF}
    s_cbranch_scc1 k2_wsf
    s_cmp_ge_u32 s2, {B_WP}
    s_cbranch_scc1 k2_wp
    """)
    role_conv(k)
    k('k2_wp:')
    role_wp(k)
    k('k2_wsf:')
    role_wsf(k)
    k('k2_misc:')
    role_misc(k)
    k('k2_exit:\ns_endpgm')
    return k
```

```python
import os
from asmlib import Kern
from layout import WS, XS
from gen_k1 import f32, load_ptrs, srd, srd_ws

SC = 'sc1'
SPIN_MAX = 100000


NS = 6
SLOT = 16384
CONST = NS * SLOT
KG_LDS = CONST + 1024
NK = 20
ACC = 100
GRAM = 156
SUM = 164
ONES = 172
FRG = [28, 64]
C0 = -2.0 * 0.7978845608028654 * 1.4426950408889634
C1 = C0 * 0.044715


def gelu_pairs(k, regs, t0):
    for n in range(0, len(regs), 2):
        grp = regs[n:n + 2]
        T = [t0 + 2 * g for g in range(len(grp))]
        for x, t in zip(grp, T):
            k(f'v_pk_mul_f32 v[{t}:{t+1}], v[{x}:{x+1}], v[{x}:{x+1}]')
        for x, t in zip(grp, T):
            k(f'v_pk_fma_f32 v[{t}:{t+1}], v[{t}:{t+1}], s[72:73], v[176:177]')
        for x, t in zip(grp, T):
            k(f'v_pk_mul_f32 v[{t}:{t+1}], v[{t}:{t+1}], v[{x}:{x+1}]')
        for x, t in zip(grp, T):
            k(f'v_exp_f32 v{t}, v{t}\nv_exp_f32 v{t+1}, v{t+1}')
        for x, t in zip(grp, T):
            k(f'v_pk_add_f32 v[{t}:{t+1}], v[{t}:{t+1}], s[74:75]')
        for x, t in zip(grp, T):
            k(f'v_rcp_f32 v{t}, v{t}\nv_rcp_f32 v{t+1}, v{t+1}')
        for x, t in zip(grp, T):
            k(f'v_pk_mul_f32 v[{x}:{x+1}], v[{x}:{x+1}], v[{t}:{t+1}]')


def a_dma():
    return ['buffer_load_dwordx4 v12, s[60:63], s12 offen lds',
            'buffer_load_dwordx4 v12, s[60:63], s13 offen offset:1024 lds',
            'buffer_load_dwordx4 v3, s[56:59], s11 offen offset:2048 lds',
            f'''buffer_load_dwordx4 v4, s[56:59], s11 offen offset:3072 lds
    s_add_u32 s11, s11, {32*XS}
    s_add_u32 s12, s12, {108*1024}
    s_add_u32 s13, s13, {108*1024}''']


def a_frags(F, va0, va1, vb):
    L = []
    for a, va in enumerate((va0, va1)):
        L.append(f'ds_read_b64_tr_b16 v[{F+4*a}:{F+4*a+1}], v{va}')
        L.append(f'ds_read_b64_tr_b16 v[{F+4*a+2}:{F+4*a+3}], v{va} offset:1024')
    for b in range(7):
        L.append(f'ds_read_b128 v[{F+8+4*b}:{F+11+4*b}], v{vb} offset:{(b>>1)*4096+(b&1)*1024}')
    return L


def a_mainloop(k, nz2, tag):
    k(f'''
    s_mov_b32 s14, {SLOT}
    s_mov_b32 s15, 0
    s_mov_b32 s7, 0                  ; kk
kgA_loop{tag}:
    ''')
    for half in range(2):
        F = FRG[half]
        k(f'''
        s_waitcnt vmcnt({4*(NS-2)}) lgkmcnt(0)
        s_barrier
        v_add_u32 v8, s14, v6
        v_add_u32 v9, s14, v7
        v_add_u32 v10, s14, v12
        s_add_u32 m0, s10, s15
        ''')
        fill = a_frags(FRG[1 - half], 8, 9, 10) + a_dma()
        M = []
        for a in range(2):
            x = f'v[{F+4*a}:{F+4*a+3}]'
            for b in range(7):
                w = f'v[{F+8+4*b}:{F+11+4*b}]'
                acc = ACC + 4 * (7 * a + b)
                if b >= nz2:
                    M.append(f'v_mfma_f32_16x16x32_bf16 v[{acc}:{acc+3}], {w}, {x}, v[{acc}:{acc+3}]')
                else:
                    M.append(f'v_mfma_f32_16x16x32_bf16 v[{acc}:{acc+3}], {x}, {w}, v[{acc}:{acc+3}]')
            g = GRAM + 4 * a
            s = SUM + 4 * a
            M.append(f'v_mfma_f32_16x16x32_bf16 v[{g}:{g+3}], {x}, {x}, v[{g}:{g+3}]')
            M.append(f'v_mfma_f32_16x16x32_bf16 v[{s}:{s+3}], {x}, v[{ONES}:{ONES+3}], v[{s}:{s+3}]')
        for n, mm in enumerate(M):
            k(mm)
            if n < len(fill):
                k(fill[n])
        k(f'''
        s_and_b32 s3, s7, 15
        s_cmp_eq_u32 s3, s55
        s_cbranch_scc0 kgA_nd{tag}{half}
        s_lshl_b32 s3, s7, 17
        buffer_store_dwordx4 v[{F}:{F+3}], v5, s[64:67], s3 offen {SC}
        buffer_store_dwordx4 v[{F+4}:{F+7}], v5, s[64:67], s3 offen offset:1024 {SC}
kgA_nd{tag}{half}:
        s_mov_b32 s15, s14
        s_add_u32 s14, s14, {SLOT}
        s_cmp_eq_u32 s14, {NS*SLOT}
        s_cselect_b32 s14, 0, s14
        s_add_u32 s7, s7, 1
        ''')
    k(f'''
    s_cmp_lt_u32 s7, {NK}
    s_cbranch_scc1 kgA_loop{tag}
    s_waitcnt vmcnt(0) lgkmcnt(0)
    s_barrier
    ''')


def a_epilogue(k, nz2, tag):
    nz1 = 7 - nz2
    k.stamp(3)
    k(f'''
    v_mul_u32_u24 v16, 80, v14
    v_lshlrev_b32 v17, 2, v13
    v_add_u32 v17, {CONST}, v17
    v_lshlrev_b32 v15, 4, v14
    v_add_u32 v15, {CONST}, v15
    ''')
    for a in range(2):
        for r in range(4):
            g = GRAM + 4 * a + r
            k(f'ds_bpermute_b32 v{g}, v16, v{g} offset:{4*r}')
    for b in range(nz2):
        k(f'''
        ds_read_b32 v{28+2*b}, v17 offset:{64*b}
        ds_read_b32 v{36+2*b}, v17 offset:{512+64*b}''')
    k(f's_waitcnt lgkmcnt({2*nz2})')
    for a in range(2):
        for r in range(4):
            g = GRAM + 4 * a + r
            s = SUM + 4 * a + r
            k(f'''
            v_mul_f32 v{s}, {f32(1.0/640)}, v{s}
            v_mov_b32 v18, {f32(1e-5)}
            v_fmac_f32 v18, {f32(1.0/640)}, v{g}
            v_fma_f32 v18, -v{s}, v{s}, v18
            v_max_f32 v18, {f32(1e-5)}, v18
            v_rsq_f32 v{g}, v18
            v_mul_f32 v{s}, v{s}, v{g}
            v_sub_f32 v{s}, 0, v{s}
            ''')
    k(f'''
    v_and_b32 v18, 3, v13
    v_lshrrev_b32 v19, 2, v13
    v_lshl_add_u32 v19, v19, 4, v13
    v_lshlrev_b32 v19, 2, v19
    v_cmp_eq_u32 s[84:85], 1, v18
    v_cmp_eq_u32 s[86:87], 2, v18
    v_cmp_eq_u32 s[68:69], 3, v18
    ''')
    for a in range(2):
        for (src, dst) in ((GRAM + 4 * a, 20 + 4 * a), (SUM + 4 * a, 22 + 4 * a)):
            k(f'''
            v_cndmask_b32 v{dst}, v{src}, v{src+1}, s[84:85]
            v_cndmask_b32 v{dst}, v{dst}, v{src+2}, s[86:87]
            v_cndmask_b32 v{dst}, v{dst}, v{src+3}, s[68:69]
            ds_bpermute_b32 v{dst}, v19, v{dst}
            ''')
    for n in range(nz1):
        b = nz2 + n
        k(f'''
        ds_read_b128 v[{180+8*n}:{183+8*n}], v15 offset:{64*b}
        ds_read_b128 v[{184+8*n}:{187+8*n}], v15 offset:{512+64*b}''')
    k(f's_waitcnt lgkmcnt({4+2*nz1})')
    for b in range(nz2):
        k(f'v_mov_b32 v{29+2*b}, v{28+2*b}\nv_mov_b32 v{37+2*b}, v{36+2*b}')
    for b in range(nz2):
        regs = []
        for a in range(2):
            acc = ACC + 4 * (7 * a + b)
            for p in range(2):
                x = acc + 2 * p
                g = GRAM + 4 * a + 2 * p
                s = SUM + 4 * a + 2 * p
                k(f'''
                v_pk_fma_f32 v[84:85], v[{28+2*b}:{29+2*b}], v[{s}:{s+1}], v[{36+2*b}:{37+2*b}]
                v_pk_fma_f32 v[{x}:{x+1}], v[{x}:{x+1}], v[{g}:{g+1}], v[84:85]''')
                regs.append(x)
        gelu_pairs(k, regs, 88)
    k.stamp(4)
    order = list(range(2, nz2))
    for a in range(2):
        for p in range(2):
            s1 = 56 + 4 * a + 2 * p
            s2 = 64 + 4 * a + 2 * p
            for n, b in enumerate(order):
                x = ACC + 4 * (7 * a + b) + 2 * p
                if n == 0:
                    k(f'''
                    v_mov_b32 v{s1}, v{x}
                    v_mov_b32 v{s1+1}, v{x+1}
                    v_pk_mul_f32 v[{s2}:{s2+1}], v[{x}:{x+1}], v[{x}:{x+1}]''')
                else:
                    k(f'''
                    v_pk_add_f32 v[{s1}:{s1+1}], v[{s1}:{s1+1}], v[{x}:{x+1}]
                    v_pk_fma_f32 v[{s2}:{s2+1}], v[{x}:{x+1}], v[{x}:{x+1}], v[{s2}:{s2+1}]''')
    k(f'''
    s_cmp_eq_u32 s55, 14
    s_cbranch_scc1 kgA_skipdup{tag}
    ''')
    for a in range(2):
        for p in range(2):
            s1 = 56 + 4 * a + 2 * p
            s2 = 64 + 4 * a + 2 * p
            for b in range(2):
                x = ACC + 4 * (7 * a + b) + 2 * p
                k(f'''
                v_pk_add_f32 v[{s1}:{s1+1}], v[{s1}:{s1+1}], v[{x}:{x+1}]
                v_pk_fma_f32 v[{s2}:{s2+1}], v[{x}:{x+1}], v[{x}:{x+1}], v[{s2}:{s2+1}]''')
    k(f'kgA_skipdup{tag}:')
    for n in (8, 4, 2, 1):
        for v in range(56, 72):
            k(f'v_add_f32_dpp v{v}, v{v}, v{v} row_ror:{n} row_mask:0xf bank_mask:0xf')
    for e in range(8):
        k(f'v_mov_b32 v{28+2*e}, v{56+e}\nv_mov_b32 v{29+2*e}, v{64+e}')
    k(f'''
    s_lshl_b32 s5, s9, 12              ; kappa*4096
    s_lshl_b32 s6, s55, 8
    s_add_u32 s6, s6, s5
    v_lshlrev_b32 v15, 6, v14          ; 64q
    v_cmp_eq_u32 vcc, 0, v13
    s_and_saveexec_b64 s[84:85], vcc
    buffer_store_dwordx4 v[28:31], v15, s[76:79], s6 offen {SC}
    buffer_store_dwordx4 v[32:35], v15, s[76:79], s6 offen offset:16 {SC}
    buffer_store_dwordx4 v[36:39], v15, s[76:79], s6 offen offset:32 {SC}
    buffer_store_dwordx4 v[40:43], v15, s[76:79], s6 offen offset:48 {SC}
    s_mov_b64 exec, s[84:85]
    v_lshl_add_u32 v16, v13, 8, v15
    s_waitcnt lgkmcnt(0)
    v_mov_b32 v21, v20
    v_mov_b32 v23, v22
    v_mov_b32 v25, v24
    v_mov_b32 v27, v26
    ''')
    k.stamp(5)
    for n in range(nz1):
        b = nz2 + n
        regs = []
        for a in range(2):
            acc = ACC + 4 * (7 * a + b)
            r = 20 + 4 * a
            for p in range(2):
                x = acc + 2 * p
                k(f'''
                v_pk_fma_f32 v[84:85], v[{180+8*n+2*p}:{181+8*n+2*p}], v[{r+2}:{r+3}], v[{184+8*n+2*p}:{185+8*n+2*p}]
                v_pk_fma_f32 v[{x}:{x+1}], v[{x}:{x+1}], v[{r}:{r+1}], v[84:85]''')
                regs.append(x)
        gelu_pairs(k, regs, 88)
        k(f'''
        s_add_u32 s3, s71, {b}           ; phi (z1)
        s_lshr_b32 s6, s3, 1
        s_lshl_b32 s6, s6, 17
        s_and_b32 s3, s3, 1
        s_lshl_b32 s3, s3, 3
        s_add_u32 s3, s3, s6
        ''')
        for a in range(2):
            acc = ACC + 4 * (7 * a + b)
            k(f'''
            v_cvt_pk_bf16_f32 v{acc}, v{acc}, v{acc+1}
            v_cvt_pk_bf16_f32 v{acc+1}, v{acc+2}, v{acc+3}
            buffer_store_dwordx2 v[{acc}:{acc+1}], v5, s[80:83], s3 offen offset:{1024*a} {SC}''')
    k.stamp(6)
    k(f'''
    s_mov_b32 s3, 0
kgA_poll{tag}:
    buffer_load_dwordx4 v[28:31], v16, s[76:79], s5 offen {SC}
    buffer_load_dwordx4 v[32:35], v16, s[76:79], s5 offen offset:16 {SC}
    buffer_load_dwordx4 v[36:39], v16, s[76:79], s5 offen offset:32 {SC}
    buffer_load_dwordx4 v[40:43], v16, s[76:79], s5 offen offset:48 {SC}
    s_waitcnt vmcnt(0)
    v_max_u32 v18, v29, v31
    v_max3_u32 v18, v18, v33, v35
    v_max3_u32 v18, v18, v37, v39
    v_max3_u32 v18, v18, v41, v43
    v_cmp_eq_u32 vcc, -1, v18
    s_cmp_eq_u64 vcc, 0
    s_cbranch_scc1 kgA_ready{tag}
    s_add_u32 s3, s3, 1
    s_cmp_lt_u32 s3, {SPIN_MAX}
    s_cbranch_scc0 kgA_ready{tag}
    s_sleep 1
    s_branch kgA_poll{tag}
kgA_ready{tag}:
    ''')
    k.stamp(7)
    for n in (8, 4, 2, 1):
        for v in range(28, 44):
            k(f'v_add_f32_dpp v{v}, v{v}, v{v} row_ror:{n} row_mask:0xf bank_mask:0xf')
    for e in range(8):
        k(f'''
        v_mul_f32 v{28+2*e}, {f32(1.0/864)}, v{28+2*e}
        v_mov_b32 v18, {f32(1e-5)}
        v_fmac_f32 v18, {f32(1.0/864)}, v{29+2*e}
        v_fma_f32 v18, -v{28+2*e}, v{28+2*e}, v18
        v_max_f32 v18, {f32(1e-5)}, v18
        v_rsq_f32 v{GRAM+e}, v18
        v_mul_f32 v{SUM+e}, v{28+2*e}, v{GRAM+e}
        v_sub_f32 v{SUM+e}, 0, v{SUM+e}
        ''')
    k(f'''
    s_mul_i32 s3, s9, 54
    s_add_u32 s3, s3, s70
    s_sub_u32 s3, s3, 54
    s_lshl_b32 s3, s3, 10
    ''')
    for b in range(nz2):
        o = 28 + 4 * b
        for a in range(2):
            acc = ACC + 4 * (7 * a + b)
            for p in range(2):
                x = acc + 2 * p
                g = GRAM + 4 * a + 2 * p
                s = SUM + 4 * a + 2 * p
                k(f'''
                v_pk_fma_f32 v[{x}:{x+1}], v[{x}:{x+1}], v[{g}:{g+1}], v[{s}:{s+1}]
                v_cvt_pk_bf16_f32 v{o+2*a+p}, v{x}, v{x+1}''')
        k(f'buffer_store_dwordx4 v[{o}:{o+3}], v12, s[92:95], s3 offen offset:{1024*b} {SC}')


def phase_a(k):
    xo, xs = WS['X1T']
    srd(k, 56, 'ws', xs + 2048, xo - 2048)
    srd_ws(k, 60, 'WPF')
    srd_ws(k, 64, 'X1F')
    srd_ws(k, 76, 'CSP')
    srd_ws(k, 80, 'BIP')
    k(f'''
    s_lshl_b32 s9, s54, 2
    s_add_u32 s9, s9, s4
    s_lshl_b32 s10, s4, 12
    s_lshl_b32 s11, s54, 8
    s_lshr_b32 s5, s55, 1
    s_mul_i32 s5, s5, 7
    s_min_u32 s5, s5, 47             ; base
    s_and_b32 s6, s55, 1
    s_lshl_b32 s7, s6, 2
    s_add_u32 s70, s5, s7
    s_add_u32 s70, s70, 54           ; 54 + z2base
    s_add_u32 s71, s5, s7
    s_sub_u32 s71, s71, 4
    s_sub_u32 s68, 4, s6             ; nz2
    s_lshl_b32 s3, s4, 1
    s_cmp_lt_u32 s3, s68
    s_cselect_b32 s12, s70, s71
    s_add_u32 s12, s12, s3
    s_lshl_b32 s12, s12, 10
    s_add_u32 s3, s3, 1
    s_min_u32 s3, s3, 6
    s_cmp_lt_u32 s3, s68
    s_cselect_b32 s13, s70, s71
    s_add_u32 s13, s13, s3
    s_lshl_b32 s13, s13, 10
    s_sub_u32 s13, s13, 1024
    s_and_b32 s3, s4, 1
    s_lshl_b32 s3, s3, 3
    v_lshlrev_b32 v16, 1, v14
    v_add_u32 v16, s3, v16
    v_xor_b32 v16, v16, v13
    v_lshlrev_b32 v16, 4, v16
    v_mul_u32_u24 v3, {XS}, v14
    v_add_u32 v3, v3, v16
    s_mul_i32 s3, s4, {8*XS}
    v_add_u32 v3, s3, v3
    v_add_u32 v4, {4*XS-1024}, v3
    ''')
    k(f'''
    v_bfe_u32 v17, v0, 4, 3
    v_min_u32 v17, 6, v17
    v_mov_b32 v18, s71
    v_mov_b32 v19, s70
    v_cmp_gt_u32 vcc, s68, v17
    v_cndmask_b32 v18, v18, v19, vcc
    v_add_u32 v17, v17, v18          ; phi'
    v_lshrrev_b32 v18, 1, v17
    v_lshlrev_b32 v18, 5, v18
    v_and_b32 v17, 1, v17
    v_lshl_add_u32 v18, v17, 2, v18
    v_lshrrev_b32 v17, 2, v13
    v_lshl_add_u32 v18, v17, 3, v18
    v_and_b32 v17, 3, v13
    v_add_u32 v18, v18, v17
    v_lshlrev_b32 v18, 2, v18        ; f*4
    s_mov_b32 s14, {1728*4}
    s_mov_b32 s15, {2*1728*4}
    s_mov_b32 s3, {3*1728*4}
    s_cmp_ge_u32 s4, 2
    s_cbranch_scc1 kgA_cb
    buffer_load_dword v20, v18, s[76:79], 0 offen
    buffer_load_dword v21, v18, s[76:79], s14 offen
    buffer_load_dword v22, v18, s[76:79], s15 offen
    buffer_load_dword v23, v18, s[76:79], s3 offen
    s_branch kgA_cj
kgA_cb:
    buffer_load_dword v20, v18, s[80:83], 0 offen
    buffer_load_dword v21, v18, s[80:83], s14 offen
    buffer_load_dword v22, v18, s[80:83], s15 offen
    buffer_load_dword v23, v18, s[80:83], s3 offen
kgA_cj:
    ''')
    for st in range(NS):
        k(f's_add_u32 m0, s10, {st*SLOT}')
        for l in a_dma():
            k(l)
    k(f'''
    s_lshl_b32 s3, s9, 11
    v_add_u32 v5, s3, v12
    v_bfe_u32 v16, v1, 2, 2          ; rr
    v_bfe_u32 v17, v1, 1, 1          ; c>>1
    s_lshl_b32 s3, s4, 2
    v_add_u32 v17, s3, v17
    v_and_b32 v18, 1, v14
    v_lshlrev_b32 v18, 3, v18
    v_lshl_add_u32 v18, v16, 1, v18
    v_xor_b32 v17, v17, v18
    v_lshlrev_b32 v6, 4, v17
    v_lshl_add_u32 v6, v16, 8, v6
    v_lshl_add_u32 v6, v14, 12, v6
    v_and_b32 v18, 1, v1
    v_lshl_add_u32 v6, v18, 3, v6
    v_add_u32 v6, 2048, v6
    v_xor_b32 v7, 32, v6
    s_mov_b32 s72, {f32(C1)}
    s_mov_b32 s73, {f32(C1)}
    s_mov_b32 s74, 1.0
    s_mov_b32 s75, 1.0
    v_mov_b32 v176, {f32(C0)}
    v_mov_b32 v177, {f32(C0)}
    ''')
    for r in range(4):
        k(f'v_mov_b32 v{ONES+r}, 0x3f803f80')
    for r in range(ACC, ONES):
        k(f'v_mov_b32 v{r}, 0')
    k(f'''
    s_waitcnt vmcnt({4*NS})
    v_add_f32 v20, v20, v21
    v_add_f32 v22, v22, v23
    v_add_f32 v20, v20, v22
    v_lshlrev_b32 v16, 2, v0
    v_add_u32 v16, {CONST}, v16
    ds_write_b32 v16, v20
    ''')
    k.stamp(1)
    k(f'''
    s_waitcnt vmcnt({4*(NS-1)})
    s_barrier
    ''')
    for l in a_frags(FRG[0], 6, 7, 12):
        k(l)
    srd_ws(k, 76, 'STAT')
    srd_ws(k, 80, 'Z1F')
    srd_ws(k, 92, 'Z2F')
    k.stamp(2)
    k('''
    s_cmp_eq_u32 s6, 0
    s_cbranch_scc0 kgA_Y
    ''')
    a_mainloop(k, 4, 'X')
    b_prefetch(k, 'X')
    a_epilogue(k, 4, 'X')
    k('s_branch kgA_done\nkgA_Y:')
    a_mainloop(k, 3, 'Y')
    b_prefetch(k, 'Y')
    a_epilogue(k, 3, 'Y')
    k('kgA_done:')
    srd_ws(k, 84, 'FLG')
    k(f'''
    s_lshr_b32 s3, s55, 1
    s_lshl_b32 s3, s3, 6
    s_add_u32 s3, s3, s9
    s_lshl_b32 s3, s3, 1
    s_and_b32 s5, s55, 1
    s_add_u32 s3, s3, s5
    s_lshl_b32 s3, s3, 2
    v_mov_b32 v15, 0
    v_mov_b32 v16, 1
    s_waitcnt vmcnt(0)
    s_mov_b64 exec, 1
    buffer_store_dword v16, v15, s[84:87], s3 offen {SC}
    s_mov_b64 exec, -1
    ''')
    k.stamp(8)


WSLOT = 8192
NWS = 3
NSET = 4
ZB = [48 + 28 * n for n in range(NSET)]
WB = [16, 32]
DIST = 3


def wdma(P):
    slot = P % NWS
    L = []
    for m in range(8):
        c = m >> 1
        rowc = 32 * (c >> 1) + 4 * (c & 1)
        L.append(f'''s_add_u32 m0, s96, {slot*WSLOT+1024*m}
    s_add_u32 s14, s97, {rowc*4096 + 128*P}
    buffer_load_dwordx4 v{220+(m&1)}, s[88:91], s14 offen lds''')
    return L


def b_prefetch(k, tag):
    srd(k, 88, 'wsp', 2048 * 4096)
    k(f'''
    v_lshrrev_b32 v16, 3, v1
    v_lshrrev_b32 v17, 2, v16
    v_lshlrev_b32 v17, 3, v17
    v_and_b32 v16, 3, v16
    v_add_u32 v17, v17, v16
    v_lshlrev_b32 v17, 12, v17
    v_and_b32 v16, 7, v1
    v_xor_b32 v16, v16, v14
    v_lshl_add_u32 v220, v16, 4, v17
    v_xor_b32 v221, 64, v220
    v_add_u32 v221, {16*4096}, v221
    s_mul_i32 s96, s4, {NWS*WSLOT}
    s_lshl_b32 s97, s98, 18
    s_lshl_b32 s3, s4, 10
    s_add_u32 s97, s97, s3
    ''')
    for P in range(2):
        for l in wdma(P):
            k(l)


def zloads(ks):
    Z = ZB[ks % NSET]
    L = []
    for b in range(7):
        v = 12 if b < 4 else 3
        L.append(f'buffer_load_dwordx4 v[{Z+4*b}:{Z+4*b+3}], v{v}, s[60:63], s12 offen offset:{1024*(b%4)} {SC}')
    L[-1] += f'\ns_add_u32 s12, s12, {54*1024}'
    return L


def wreads(ks):
    slot = (ks >> 1) % NWS
    W = WB[ks & 1]
    return [f'ds_read_b128 v[{W+4*c}:{W+4*c+3}], v{6+(ks&1)} offset:{slot*WSLOT+2048*c}' for c in range(4)]


def poll_flags(k, vaddr, nlanes, tag, srdn=84):
    mask = (1 << nlanes) - 1
    k(f'''
    s_mov_b32 s3, 0
    s_mov_b32 exec_lo, {mask & 0xffffffff}
    s_mov_b32 exec_hi, {mask >> 32}
kg_poll{tag}:
    buffer_load_dword v15, v{vaddr}, s[{srdn}:{srdn+3}], 0 offen {SC}
    s_waitcnt vmcnt(0)
    v_cmp_eq_u32 vcc, 0, v15
    s_cmp_eq_u64 vcc, 0
    s_cbranch_scc1 kg_rdy{tag}
    s_add_u32 s3, s3, 1
    s_cmp_lt_u32 s3, {SPIN_MAX}
    s_cbranch_scc0 kg_rdy{tag}
    s_sleep 1
    s_branch kg_poll{tag}
kg_rdy{tag}:
    s_mov_b64 exec, -1
    ''')


def phase_b(k):
    srd_ws(k, 60, 'Z2F')
    srd_ws(k, 64, 'Z1F')
    srd_ws(k, 68, 'PF')
    srd(k, 72, 'bsp', 4096)
    k(f'''
    s_mul_i32 s8, s99, 7
    s_min_u32 s8, s8, 47             ; phi0
    v_add_u32 v3, 4096, v12
    v_lshrrev_b32 v8, 2, v13
    v_lshlrev_b32 v8, 3, v8
    v_and_b32 v9, 3, v13
    v_add_u32 v8, v8, v9             ; row_local
    v_lshrrev_b32 v11, 1, v13
    v_xor_b32 v11, v11, v14
    v_lshlrev_b32 v11, 4, v11
    v_lshl_add_u32 v6, v13, 7, v11
    v_add_u32 v6, s96, v6
    v_xor_b32 v7, 64, v6
    s_mul_i32 s12, s4, {16*54}
    s_add_u32 s12, s12, s8
    s_lshl_b32 s12, s12, 10
    s_lshl_b32 s9, s98, 2
    s_add_u32 s9, s9, s4             ; tau
    s_lshl_b32 s13, s9, 10
    v_add_u32 v10, s13, v12
    s_lshr_b32 s13, s4, 1
    s_lshl_b32 s13, s13, 5
    s_and_b32 s15, s4, 1
    s_lshl_b32 s15, s15, 2
    s_add_u32 s13, s13, s15
    s_lshl_b32 s15, s98, 6
    s_add_u32 s13, s13, s15
    s_lshl_b32 s13, s13, 1
    v_lshlrev_b32 v9, 1, v8
    buffer_load_ushort v206, v9, s[72:75], s13 offen
    s_lshl_b32 s3, s99, 9
    s_lshl_b32 s5, s4, 7
    s_add_u32 s5, s5, s3
    v_lshlrev_b32 v16, 2, v1
    v_add_u32 v16, s5, v16
    s_lshr_b32 s5, s9, 1
    s_lshl_b32 s5, s5, 3
    s_add_u32 s5, s5, s3
    v_and_b32 v17, 1, v1
    v_lshlrev_b32 v17, 2, v17
    v_add_u32 v17, s5, v17
    v_cmp_gt_u32 vcc, 32, v1
    v_cndmask_b32 v2, v17, v16, vcc
    ''')
    for l in wreads(0):
        k(l)
    poll_flags(k, 2, 34, 'B')
    k.stamp(9)
    issued = []

    def emit(l, tag):
        k(l)
        issued.append(tag)

    for ks in range(2):
        for l in zloads(ks):
            emit(l, ('z', ks))
    for b in range(7):
        k(f'''
        s_add_u32 s13, s8, {b}
        s_lshr_b32 s15, s13, 1
        s_lshl_b32 s15, s15, 17
        s_and_b32 s13, s13, 1
        s_lshl_b32 s13, s13, 3
        s_add_u32 s{76+b}, s13, s15''')
        emit(f'buffer_load_dwordx2 v[{192+2*b}:{193+2*b}], v10, s[64:67], s{76+b} offen {SC}', ('e', 0))

    def wait_for(tags, extra=''):
        idx = [i for i, t in enumerate(issued) if t in tags]
        n = len(issued) - 1 - max(idx)
        k(f's_waitcnt vmcnt({n}) {extra}')

    nz = 2
    for ks in range(16):
        Z = ZB[ks % NSET]
        W = WB[ks & 1]
        need = [('z', ks)]
        if ks + 1 < 16 and (ks + 1) >> 1 >= 2:
            need.append(('w', (ks + 1) >> 1))
        wait_for(need, 'lgkmcnt(0)')
        todo = []
        if ks + 1 < 16:
            todo += [(None, l) for l in wreads(ks + 1)]
        while nz <= min(ks + DIST, 15):
            todo += [(('z', nz), l) for l in zloads(nz)]
            nz += 1
        if ks % 2 == 0 and (ks >> 1) + 2 < 8:
            P = (ks >> 1) + 2
            todo += [(('w', P), l) for l in wdma(P)]
        per = 1 if len(todo) > 14 else 2
        m = cnt = 0
        for c in range(4):
            for b in range(7):
                a = 4 * (7 * c + b)
                cc = '0' if ks == 0 else f'a[{a}:{a+3}]'
                k(f'v_mfma_f32_16x16x32_bf16 a[{a}:{a+3}], v[{Z+4*b}:{Z+4*b+3}], v[{W+4*c}:{W+4*c+3}], {cc}')
                m += 1
                if m % per == 0 and cnt < len(todo):
                    t, l = todo[cnt]
                    k(l)
                    if t:
                        issued.append(t)
                    cnt += 1
        assert cnt == len(todo), (ks, len(todo))
    k.stamp(10)
    c_prefetch(k)
    k('s_barrier')
    for w in range(4):
        k(f'''
        s_cmp_eq_u32 s4, {w}
        s_cbranch_scc0 kgB_red_{w}''')
        for c in range(4):
            if c == w:
                continue
            src = (w - c - 1) % 4
            k(f'v_add_u32 v11, {(c*3+src)*7168}, v12')
            for b in range(7):
                a = 4 * (7 * c + b)
                k(f'ds_write_b128 v11, a[{a}:{a+3}] offset:{1024*b}')
        for n in range(28):
            k(f'v_accvgpr_read_b32 v{16+n}, a{28*w+n}')
        k(f'kgB_red_{w}:')
    k(f'''
    s_mul_i32 s14, s4, {3*7168}
    v_add_u32 v11, s14, v12
    v_lshlrev_b32 v206, 16, v206
    v_mov_b32 v207, v206
    s_waitcnt lgkmcnt(0)
    s_barrier
    ''')
    for b in range(7):
        for s in range(3):
            r = 48 + 12 * b + 4 * s
            k(f'ds_read_b128 v[{r}:{r+3}], v11 offset:{s*7168+1024*b}')
    for b in range(7):
        k(f's_waitcnt lgkmcnt({min(15, 18-3*b)})')
        o = 16 + 4 * b
        r = 48 + 12 * b
        for p in range(2):
            k(f'''
            v_pk_add_f32 v[{o+2*p}:{o+2*p+1}], v[{o+2*p}:{o+2*p+1}], v[{r+2*p}:{r+2*p+1}]
            v_pk_add_f32 v[{r+4+2*p}:{r+4+2*p+1}], v[{r+4+2*p}:{r+4+2*p+1}], v[{r+8+2*p}:{r+8+2*p+1}]
            v_pk_add_f32 v[{o+2*p}:{o+2*p+1}], v[{o+2*p}:{o+2*p+1}], v[206:207]
            v_lshlrev_b32 v{r}, 16, v{192+2*b+p}
            v_and_b32 v{r+1}, 0xffff0000, v{192+2*b+p}
            v_pk_add_f32 v[{o+2*p}:{o+2*p+1}], v[{o+2*p}:{o+2*p+1}], v[{r+4+2*p}:{r+4+2*p+1}]
            v_pk_mul_f32 v[{o+2*p}:{o+2*p+1}], v[{o+2*p}:{o+2*p+1}], v[{r}:{r+1}]
            v_cvt_pk_bf16_f32 v{192+2*b+p}, v{o+2*p}, v{o+2*p+1}
            ''')
        k(f'buffer_store_dwordx2 v[{192+2*b}:{193+2*b}], v10, s[68:71], s{76+b} offen {SC}')
    k(f'''
    s_lshl_b32 s3, s98, 3
    s_add_u32 s3, s3, s99
    s_lshl_b32 s3, s3, 2
    s_add_u32 s3, s3, s4
    s_lshl_b32 s3, s3, 2
    s_add_u32 s3, s3, 4096
    v_mov_b32 v15, 0
    v_mov_b32 v16, 1
    s_waitcnt vmcnt(0)
    s_mov_b64 exec, 1
    buffer_store_dword v16, v15, s[84:87], s3 offen {SC}
    s_mov_b64 exec, -1
    ''')
    k.stamp(11)


WOB = 112
PSET = [16 + 16 * n for n in range(4)]


def c_prefetch(k):
    srd_ws(k, 56, 'WOF')
    k(f'''
    s_mul_i32 s5, s4, {7*40}
    s_mul_i32 s6, s99, 5
    s_add_u32 s5, s5, s6
    s_lshl_b32 s5, s5, 10
    ''')
    for ks in range(7):
        for b in range(5):
            v = 12 if b < 4 else 3
            a = WOB + 20 * ks + 4 * b
            k(f'buffer_load_dwordx4 a[{a}:{a+3}], v{v}, s[56:59], s5 offen offset:{1024*(b%4)}')
        k(f's_add_u32 s5, s5, {40*1024}')


def ploads(ks):
    P = PSET[ks % 4]
    L = [f'buffer_load_dwordx4 v[{P+4*c}:{P+4*c+3}], v12, s[60:63], s12 offen offset:{1024*c} {SC}' for c in range(4)]
    L[-1] += f'\ns_add_u32 s12, s12, {128*1024}'
    return L


def phase_c(k):
    srd_ws(k, 60, 'PF')
    srd_ws(k, 64, 'X1F')
    srd_ws(k, 68, 'MODF')
    srd(k, 72, 'out', 2048 * 1280)
    k(f'''
    s_mul_i32 s8, s99, 5             ; delta0
    v_mul_u32_u24 v4, 1280, v8
    v_lshl_add_u32 v4, v14, 4, v4
    v_lshlrev_b32 v5, 5, v14
    s_mul_i32 s12, s4, {7*128}
    s_lshl_b32 s10, s98, 2
    s_add_u32 s12, s12, s10
    s_lshl_b32 s12, s12, 10
    s_lshr_b32 s14, s4, 1
    s_lshl_b32 s14, s14, 5
    s_and_b32 s15, s4, 1
    s_lshl_b32 s15, s15, 2
    s_add_u32 s14, s14, s15
    s_lshl_b32 s15, s98, 6
    s_add_u32 s14, s14, s15
    s_mul_i32 s13, s14, 1280
    ''')
    for b in range(5):
        k(f'''
        s_add_u32 s14, s8, {b}
        s_lshr_b32 s15, s14, 1           ; dblk
        s_and_b32 s14, s14, 1            ; h
        s_lshl_b32 s5, s15, 17
        s_lshl_b32 s6, s14, 3
        s_add_u32 s{76+b}, s5, s6        ; x1f soffset
        s_lshl_b32 s5, s15, 6
        s_add_u32 s5, s5, s6
        s_add_u32 s{88+b}, s5, s13
        s_lshl_b32 s5, s5, 1
        s_add_u32 s5, s5, {5*640*4}
        buffer_load_dwordx4 v[{208+4*b}:{211+4*b}], v5, s[68:71], s5 offen
        ''')
    k(f'''
    s_lshl_b32 s3, s98, 7
    s_lshl_b32 s5, s4, 5
    s_add_u32 s3, s3, s5
    s_add_u32 s3, s3, 4096
    v_lshlrev_b32 v16, 2, v1
    v_add_u32 v16, s3, v16
    s_lshr_b32 s5, s8, 1
    s_add_u32 s5, s5, 8
    v_add_u32 v17, s5, v1
    v_and_b32 v17, 15, v17
    v_lshrrev_b32 v18, 1, v17
    v_lshlrev_b32 v18, 9, v18
    v_and_b32 v17, 1, v17
    v_lshl_add_u32 v18, v17, 2, v18
    s_lshr_b32 s5, s9, 1
    s_lshl_b32 s5, s5, 3
    v_add_u32 v18, s5, v18
    v_cmp_gt_u32 vcc, 8, v1
    v_cndmask_b32 v16, v18, v16, vcc
    ''')
    poll_flags(k, 16, 11, 'C')
    k.stamp(12)
    issued = []

    def emit(l, tag):
        k(l)
        issued.append(tag)

    for ks in range(3):
        for l in ploads(ks):
            emit(l, ks)
    for b in range(5):
        emit(f'buffer_load_dwordx2 v[{196+2*b}:{197+2*b}], v10, s[64:67], s{76+b} offen {SC}', -1)
    np_ = 3
    for ks in range(7):
        P = PSET[ks % 4]
        last = max(i for i, t in enumerate(issued) if t == ks)
        k(f's_waitcnt vmcnt({len(issued) - 1 - last})')
        todo = []
        if np_ <= min(ks + 3, 6):
            todo = [(np_, l) for l in ploads(np_)]
            np_ += 1
        m = cnt = 0
        for c in range(4):
            for b in range(5):
                a = 4 * (5 * c + b)
                w = WOB + 20 * ks + 4 * b
                cc = '0' if ks == 0 else f'a[{a}:{a+3}]'
                k(f'v_mfma_f32_16x16x32_bf16 a[{a}:{a+3}], a[{w}:{w+3}], v[{P+4*c}:{P+4*c+3}], {cc}')
                m += 1
                if m % 2 == 0 and cnt < len(todo):
                    t, l = todo[cnt]
                    k(l)
                    issued.append(t)
                    cnt += 1
    k.stamp(13)
    k('s_barrier')
    for w in range(4):
        k(f'''
        s_cmp_eq_u32 s4, {w}
        s_cbranch_scc0 kgC_red_{w}''')
        for c in range(4):
            if c == w:
                continue
            src = (w - c - 1) % 4
            for b in range(5):
                a = 4 * (5 * c + b)
                k(f'ds_write_b128 v12, a[{a}:{a+3}] offset:{(c*3+src)*5120+1024*b}')
        for n in range(20):
            k(f'v_accvgpr_read_b32 v{16+n}, a{20*w+n}')
        k(f'kgC_red_{w}:')
    k(f'''
    s_mul_i32 s14, s4, {3*5120}
    v_add_u32 v11, s14, v12
    s_waitcnt lgkmcnt(0)
    s_barrier
    ''')
    for b in range(5):
        for s in range(3):
            r = 48 + 12 * b + 4 * s
            k(f'ds_read_b128 v[{r}:{r+3}], v11 offset:{s*5120+1024*b}')
    for b in range(5):
        k(f's_waitcnt lgkmcnt({12-3*b})')
        o = 16 + 4 * b
        r = 48 + 12 * b
        for p in range(2):
            k(f'''
            v_pk_add_f32 v[{o+2*p}:{o+2*p+1}], v[{o+2*p}:{o+2*p+1}], v[{r+2*p}:{r+2*p+1}]
            v_pk_add_f32 v[{r+4+2*p}:{r+4+2*p+1}], v[{r+4+2*p}:{r+4+2*p+1}], v[{r+8+2*p}:{r+8+2*p+1}]
            v_lshlrev_b32 v{r}, 16, v{196+2*b+p}
            v_and_b32 v{r+1}, 0xffff0000, v{196+2*b+p}
            v_pk_add_f32 v[{o+2*p}:{o+2*p+1}], v[{o+2*p}:{o+2*p+1}], v[{r+4+2*p}:{r+4+2*p+1}]
            v_pk_fma_f32 v[{o+2*p}:{o+2*p+1}], v[{o+2*p}:{o+2*p+1}], v[{208+4*b+2*p}:{209+4*b+2*p}], v[{r}:{r+1}]
            v_cvt_pk_bf16_f32 v{196+2*b+p}, v{o+2*p}, v{o+2*p+1}
            ''')
        k(f'buffer_store_dwordx2 v[{196+2*b}:{197+2*b}], v4, s[72:75], s{88+b} offen')
    k.stamp(14)


def make_kg():
    k = Kern('gemm_kernel', 256, 256, KG_LDS)
    k('''
    s_cmp_ge_u32 s2, 256
    s_cbranch_scc1 kg_exit
    ''')
    k.stamp(0)
    load_ptrs(k)
    k(f'''
    s_and_b32 s3, s2, 7              ; xcd
    s_lshr_b32 s5, s2, 3             ; kx
    s_lshr_b32 s6, s3, 1             ; xh
    s_and_b32 s7, s3, 1              ; xl
    s_lshl_b32 s54, s6, 2
    s_and_b32 s8, s5, 3
    s_add_u32 s54, s54, s8
    s_lshl_b32 s55, s7, 3
    s_lshr_b32 s8, s5, 2
    s_add_u32 s55, s55, s8
    s_lshl_b32 s98, s6, 3
    s_and_b32 s8, s5, 7
    s_add_u32 s98, s98, s8
    s_lshl_b32 s99, s7, 2
    s_lshr_b32 s8, s5, 3
    s_add_u32 s99, s99, s8
    v_and_b32 v1, 63, v0
    v_lshrrev_b32 v15, 6, v0
    v_lshlrev_b32 v12, 4, v1
    v_and_b32 v13, 15, v1
    v_lshrrev_b32 v14, 4, v1
    v_readfirstlane_b32 s4, v15
    s_waitcnt lgkmcnt(0)
    ''')
    phase_a(k)
    phase_b(k)
    phase_c(k)
    if os.environ.get('STAMP'):
        k('s_waitcnt vmcnt(0)')
    k.stamp(15)
    k.stamp_flush(2)
    k('kg_exit:\ns_endpgm')
    return k
```

```python
import sys
sys.path.insert(0, 'dev')
from asmlib import assemble_file
import gen_k1
NAME = 'adaLN_cond__ssm_conv_s4__mixer_gmlp__prompt'
def header():
    ref = open('cdna_kernels/%s.s.ref' % NAME).read().split('\n')
    h = []
    for l in ref:
        if l.startswith('; Override launch'):
            break
        h.append(l)
    return '\n'.join(h) + '\n'
def build(out, which=None):
    ks = [gen_k1.make_k1()]
    import gen_k2, gen_kg
    ks.append(gen_k2.make_k2())
    ks.append(gen_kg.make_kg())
    if which: ks = ks[:which]
    txt = assemble_file(ks, header())
    open(out, 'w').write(txt)
    for k in ks:
        print(k.name, 'vgpr/agpr/sgpr/ninst', k.stats, 'grid', k.grid, 'lds', k.lds)
if __name__ == '__main__':
    out = sys.argv[1] if len(sys.argv) > 1 else 'cdna_kernels/%s.s' % NAME
    build(out, int(sys.argv[2]) if len(sys.argv) > 2 else None)
```

```python
from asmlib import Kern
from layout import WS, KR_STRIDE, XS, LBS
from gen_k1 import f32, load_ptrs, srd, srd_ws

N_WP, N_MISC, N_CONV, N_WSF = 108, 16, 640, int(__import__('os').environ.get('K2_TOUCH', 0))
B_WP = N_CONV
B_WSF = B_WP + N_WP
B_MISC = B_WSF + N_WSF
CS = 4160
HOFF = 8 * CS
K2_LDS = 38912


def quad_sum(k, v):
    k(f'''
    v_add_f32_dpp v{v}, v{v}, v{v} quad_perm:[1,0,3,2] row_mask:0xf bank_mask:0xf
    v_add_f32_dpp v{v}, v{v}, v{v} quad_perm:[2,3,0,1] row_mask:0xf bank_mask:0xf
    ''')


def role_wp(k):
    RS = 192
    RED = 160 * RS
    srd(k, 56, 'win', 640 * 3456)
    srd_ws(k, 60, 'MODP')
    srd_ws(k, 64, 'WPF')
    srd_ws(k, 68, 'CSP')
    srd_ws(k, 72, 'BIP')
    k(f'''
    s_sub_u32 s3, s2, {B_WP}
    s_mul_i32 s4, s3, 2428
    s_lshr_b32 s4, s4, 16            ; dq
    s_mul_i32 s5, s4, 27
    s_sub_u32 s5, s3, s5             ; fb
    v_and_b32 v1, 7, v0              ; c8
    v_lshrrev_b32 v2, 3, v0          ; rg
    v_mul_u32_u24 v3, 3456, v2
    v_lshl_add_u32 v3, v1, 4, v3
    s_mul_i32 s6, s4, {160*3456}
    s_lshl_b32 s7, s5, 7
    s_add_u32 s6, s6, s7
    v_and_b32 v4, 3, v1
    v_mul_u32_u24 v4, 15360, v4
    v_lshrrev_b32 v5, 2, v1
    v_mul_u32_u24 v5, 2560, v5
    v_add_u32 v4, v4, v5
    v_lshl_add_u32 v4, v2, 2, v4
    s_mul_i32 s12, s4, 640
    s_add_u32 s12, s12, {3*2560}
    ''')
    for i in range(1, 5):
        k(f's_add_u32 s{6+i}, s6, {32*3456*i}')
    for i in range(5):
        k(f'buffer_load_dword v{28+i}, v4, s[60:63], s12 offen offset:{128*i}')
    for i in range(5):
        k(f'buffer_load_dwordx4 v[{8+4*i}:{11+4*i}], v3, s[56:59], s{6+i} offen')
    k(f'''
    v_mul_u32_u24 v6, {RS}, v2
    v_lshl_add_u32 v6, v1, 4, v6
    v_cmp_gt_u32 vcc, 4, v1
    s_waitcnt vmcnt(5)
    ''')
    for i in range(5):
        v = 28 + i
        quad_sum(k, v)
        k(f'''
        v_cvt_pk_bf16_f32 v{v}, v{v}, v{v}
        v_lshlrev_b32 v{v}, 16, v{v}
        v_mov_b32_dpp v5, v{v} row_half_mirror row_mask:0xf bank_mask:0xf
        v_cndmask_b32 v{34+4*i}, v{v}, v5, vcc      ; cb
        v_cndmask_b32 v{36+4*i}, v5, v{v}, vcc      ; sb
        v_add_f32 v{34+4*i}, 1.0, v{34+4*i}
        v_mov_b32 v{35+4*i}, v{34+4*i}
        v_mov_b32 v{37+4*i}, v{36+4*i}
        ''')
    for i in range(5):
        k(f's_waitcnt vmcnt({4-i})')
        for j in range(4):
            r = 8 + 4 * i + j
            k(f'''
            v_lshlrev_b32 v72, 16, v{r}
            v_and_b32 v73, 0xffff0000, v{r}
            v_pk_mul_f32 v[74:75], v[72:73], v[{34+4*i}:{35+4*i}]
            ''')
            if i == 0:
                k(f'v_pk_mul_f32 v[{64+2*j}:{65+2*j}], v[72:73], v[{36+4*i}:{37+4*i}]')
            else:
                k(f'v_pk_fma_f32 v[{64+2*j}:{65+2*j}], v[72:73], v[{36+4*i}:{37+4*i}], v[{64+2*j}:{65+2*j}]')
            k(f'v_cvt_pk_bf16_f32 v{r}, v74, v75')
            if i == 0:
                k(f'''
                v_lshlrev_b32 v{56+2*j}, 16, v{r}
                v_and_b32 v{57+2*j}, 0xffff0000, v{r}''')
            else:
                k(f'''
                v_lshlrev_b32 v76, 16, v{r}
                v_and_b32 v77, 0xffff0000, v{r}
                v_pk_add_f32 v[{56+2*j}:{57+2*j}], v[{56+2*j}:{57+2*j}], v[76:77]''')
        k(f'ds_write_b128 v6, v[{8+4*i}:{11+4*i}] offset:{32*RS*i}')
    for j in range(16):
        k(f'v_add_f32_dpp v{56+j}, v{56+j}, v{56+j} row_ror:8 row_mask:0xf bank_mask:0xf')
    k(f'''
    v_lshrrev_b32 v5, 4, v0
    v_lshlrev_b32 v5, 8, v5
    v_lshl_add_u32 v5, v1, 5, v5
    ds_write_b128 v5, v[56:59] offset:{RED}
    ds_write_b128 v5, v[60:63] offset:{RED+16}
    ds_write_b128 v5, v[64:67] offset:{RED+4096}
    ds_write_b128 v5, v[68:71] offset:{RED+4096+16}
    v_and_b32 v40, 63, v0            ; lane
    v_lshrrev_b32 v41, 6, v0
    v_lshrrev_b32 v42, 4, v40        ; kq
    v_bfe_u32 v43, v40, 2, 2         ; rr
    v_and_b32 v44, 3, v40            ; c
    v_lshl_add_u32 v7, v42, 3, v43
    v_mul_u32_u24 v7, {RS}, v7
    v_lshl_add_u32 v7, v44, 4, v7    ; + 16c
    v_lshrrev_b32 v45, 1, v41
    v_lshl_add_u32 v7, v45, 6, v7    ; + 64 blk
    v_and_b32 v45, 1, v41
    v_lshl_add_u32 v7, v45, 3, v7    ; + 8a
    v_lshlrev_b32 v46, 4, v40
    v_lshl_add_u32 v46, v41, 10, v46
    s_mul_i32 s6, s4, {5*108}
    s_lshl_b32 s7, s5, 2
    s_add_u32 s6, s6, s7
    s_lshl_b32 s6, s6, 10
    s_waitcnt lgkmcnt(0)
    s_barrier
    ''')
    for j in range(5):
        k(f'''
        ds_read_b64_tr_b16 v[{8+4*j}:{9+4*j}], v7 offset:{32*RS*j}
        ds_read_b64_tr_b16 v[{10+4*j}:{11+4*j}], v7 offset:{32*RS*j+4*RS}''')
    for j in range(5):
        k(f'''
        s_waitcnt lgkmcnt({8-2*j})
        buffer_store_dwordx4 v[{8+4*j}:{11+4*j}], v46, s[64:67], s6 offen
        s_add_u32 s6, s6, {108*1024}''')
    k(f'''
    v_cmp_gt_u32 vcc, 128, v0
    s_and_saveexec_b64 s[14:15], vcc
    s_cbranch_execz k2_wp_end
    v_lshlrev_b32 v6, 2, v40
    v_lshl_add_u32 v5, v41, 12, v6
    ''')
    for i in range(16):
        k(f'ds_read_b32 v{48+i}, v5 offset:{RED+256*i}')
    k('s_waitcnt lgkmcnt(0)')
    for s in (8, 4, 2, 1):
        for i in range(s):
            k(f'v_add_f32 v{48+i}, v{48+i}, v{48+i+s}')
    k(f'''
    s_mul_i32 s6, s4, {1728*4}
    s_lshl_b32 s7, s5, 8
    s_add_u32 s6, s6, s7
    v_readfirstlane_b32 s8, v41
    s_cmp_eq_u32 s8, 0
    s_cbranch_scc0 k2_wp_b
    buffer_store_dword v48, v6, s[68:71], s6 offen
    s_endpgm
k2_wp_b:
    buffer_store_dword v48, v6, s[72:75], s6 offen
k2_wp_end:
    s_endpgm
    ''')


def role_misc(k):
    srd_ws(k, 56, 'STAT')
    srd_ws(k, 60, 'MODP')
    srd_ws(k, 64, 'MODF')
    srd_ws(k, 68, 'FLG')
    k(f"""
    s_sub_u32 s3, s2, {B_MISC}
    s_lshl_b32 s4, s3, 12
    s_sub_u32 s9, s4, 16384
    v_lshlrev_b32 v1, 4, v0
    v_mov_b32 v4, 0
    v_mov_b32 v5, 0
    v_mov_b32 v6, 0
    v_mov_b32 v7, 0
    s_cmp_ge_u32 s3, 4
    s_cbranch_scc1 k2_misc_b
    buffer_store_dwordx4 v[4:7], v1, s[56:59], s4 offen
    s_branch k2_misc_a
k2_misc_b:
    s_cmp_ge_u32 s3, 7
    s_cbranch_scc1 k2_misc_a
    buffer_store_dwordx4 v[4:7], v1, s[68:71], s9 offen
k2_misc_a:
    s_cmp_ge_u32 s3, 15
    s_cbranch_scc1 k2_misc_end
    v_lshlrev_b32 v2, 2, v0
    s_lshl_b32 s5, s3, 10
    s_add_u32 s6, s5, 15360
    s_add_u32 s7, s5, 30720
    s_add_u32 s8, s5, 46080
    buffer_load_dword v8, v2, s[60:63], s5 offen
    buffer_load_dword v9, v2, s[60:63], s6 offen
    buffer_load_dword v10, v2, s[60:63], s7 offen
    buffer_load_dword v11, v2, s[60:63], s8 offen
    s_waitcnt vmcnt(0)
    v_add_f32 v8, v8, v9
    v_add_f32 v10, v10, v11
    v_add_f32 v8, v8, v10
    v_cvt_pk_bf16_f32 v8, v8, v8
    v_lshlrev_b32 v8, 16, v8
    buffer_store_dword v8, v2, s[64:67], s5 offen
k2_misc_end:
    s_endpgm
    """)


def role_wsf(k):
    srd(k, 56, 'wsp', 2048 * 4096)
    k(f"""
    s_sub_u32 s3, s2, {B_WSF}
    s_lshl_b32 s3, s3, 16
    v_lshlrev_b32 v1, 4, v0
    """)
    for j in range(16):
        k(f"""
        buffer_load_dwordx4 v[{4+4*j}:{7+4*j}], v1, s[56:59], s3 offen
        s_add_u32 s3, s3, 4096""")
    k('s_waitcnt vmcnt(0)\ns_endpgm')


def role_conv(k):
    srd_ws(k, 56, 'KR')
    srd_ws(k, 60, 'XNT')
    srd_ws(k, 64, 'XT')
    srd_ws(k, 68, 'MODP')
    srd(k, 72, 'Dskip', 1280)
    srd_ws(k, 76, 'X1T')
    FB = 8
    ACC = 72
    XR = 4
    k(f"""
    s_and_b32 s3, s2, 7
    s_lshl_b32 s3, s3, 2
    s_lshr_b32 s4, s2, 3
    s_and_b32 s5, s4, 3
    s_add_u32 s3, s3, s5
    s_lshr_b32 s4, s4, 2
    s_lshl_b32 s4, s4, 5
    s_add_u32 s3, s3, s4             ; d = 32(k>>2) + 4xcd + (k&3)
    v_and_b32 v1, 63, v0             ; lane
    v_lshrrev_b32 v8, 6, v0
    v_lshlrev_b32 v11, 4, v0
    v_readfirstlane_b32 s4, v8       ; wave
    s_mul_i32 s5, s3, {KR_STRIDE}
    s_mul_i32 s6, s3, {XS}
    buffer_load_dwordx4 v[40:43], v11, s[56:59], s5 offen
    buffer_load_dwordx4 v[44:47], v11, s[56:59], s5 offen offset:16
    v_and_b32 v16, 3, v1
    v_mul_u32_u24 v16, 15360, v16
    v_bfe_u32 v17, v1, 2, 2
    v_min_u32 v17, 2, v17
    v_mul_u32_u24 v17, 2560, v17
    v_add_u32 v16, v16, v17
    s_lshl_b32 s10, s3, 2
    buffer_load_dword v18, v16, s[68:71], s10 offen
    v_lshrrev_b32 v9, 1, v0
    v_mul_u32_u24 v9, {LBS}, v9
    v_and_b32 v10, 1, v0
    v_lshl_add_u32 v9, v10, 4, v9
    s_lshl_b32 s7, s3, 5
    buffer_load_dwordx4 v[12:15], v9, s[60:63], s7 offen
    v_mov_b32 v19, 0
    s_lshl_b32 s11, s3, 1
    buffer_load_ushort v20, v19, s[72:75], s11 offen
    v_and_b32 v21, 15, v1            ; n / b
    v_lshrrev_b32 v22, 4, v1         ; q / kq
    v_mul_u32_u24 v23, {LBS}, v21
    v_lshl_add_u32 v23, v22, 3, v23  ; n*20480 + 8q
    s_mul_i32 s8, s4, {32*LBS}
    s_add_u32 s8, s8, s7
    s_add_u32 s9, s8, {16*LBS}
    buffer_load_dwordx2 v[4:5], v23, s[64:67], s8 offen
    buffer_load_dwordx2 v[6:7], v23, s[64:67], s9 offen
    s_lshl_b32 s12, s4, 10
    s_add_u32 s13, s6, s12
    v_mov_b32 v24, 0
    v_mov_b32 v25, 0
    v_mov_b32 v26, 0
    v_mov_b32 v27, 0
    v_and_b32 v28, 7, v0
    v_mul_u32_u24 v28, {CS}, v28
    ds_write_b128 v28, v[24:27] offset:4096
    v_min_u32 v29, 29, v1
    v_lshlrev_b32 v29, 4, v29
    ds_write_b128 v29, v[24:27] offset:{HOFF}
    v_sub_u32 v30, 15, v21           ; b'
    v_and_b32 v31, 7, v30
    v_mul_u32_u24 v2, {CS}, v31
    v_lshrrev_b32 v30, 3, v30
    v_add_u32 v30, v30, v22
    v_lshl_add_u32 v2, v30, 4, v2
    s_lshl_b32 s14, s4, 7
    s_sub_u32 s14, 384, s14          ; 448 - 128w - 64
    v_add_u32 v2, s14, v2
    v_lshlrev_b32 v3, 5, v21
    v_lshl_add_u32 v3, v22, 4, v3
    s_add_u32 s15, s14, {HOFF}
    v_add_u32 v3, s15, v3
    s_waitcnt vmcnt(5)
    """)
    k.stamp(1)
    k(f"""
    ds_write_b128 v11, v[40:43] offset:{0*CS}
    ds_write_b128 v11, v[42:45] offset:{4*CS}
    """)
    for j in range(6):
        k(f'v_mov_b32 v{48+j}, v{41+j}')
    k(f"""
    ds_write_b128 v11, v[48:51] offset:{2*CS}
    ds_write_b128 v11, v[50:53] offset:{6*CS}
    """)
    for j in range(6):
        k(f'v_alignbit_b32 v{56+j}, v{41+j}, v{40+j}, 16')
    k(f"""
    ds_write_b128 v11, v[56:59] offset:{1*CS}
    ds_write_b128 v11, v[58:61] offset:{5*CS}
    """)
    for j in range(6):
        k(f'v_alignbit_b32 v{64+j}, v{42+j}, v{41+j}, 16')
    k(f"""
    ds_write_b128 v11, v[64:67] offset:{3*CS}
    ds_write_b128 v11, v[66:69] offset:{7*CS}
    s_waitcnt vmcnt(4)
    """)
    quad_sum(k, 18)
    k(f"""
    v_cvt_pk_bf16_f32 v18, v18, v18
    v_lshlrev_b32 v18, 16, v18
    s_nop 0
    v_readlane_b32 s80, v18, 0       ; sa
    v_readlane_b32 s81, v18, 4       ; ca
    v_readlane_b32 s82, v18, 8       ; ga
    s_nop 1
    v_mov_b32 v32, s81
    v_add_f32 v32, 1.0, v32
    v_mov_b32 v33, v32
    v_mov_b32 v34, s80
    v_mov_b32 v35, s80
    s_waitcnt vmcnt(3)
    """)
    for j in range(4):
        k(f"""
        v_lshlrev_b32 v36, 16, v{12+j}
        v_and_b32 v37, 0xffff0000, v{12+j}
        v_pk_fma_f32 v[36:37], v[36:37], v[32:33], v[34:35]
        v_cvt_pk_bf16_f32 v{12+j}, v36, v37""")
    k(f"""
    ds_write_b128 v11, v[12:15] offset:{HOFF+480}
    s_waitcnt vmcnt(2)
    v_lshlrev_b32 v20, 16, v20
    s_nop 0
    v_readfirstlane_b32 s83, v20     ; Dskip
    s_waitcnt lgkmcnt(0)
    s_barrier
    """)
    k.stamp(2)
    first = [True] * 8

    def rd_f(p, rr):
        return f'ds_read_b128 v[{FB+4*p}:{FB+3+4*p}], v2 offset:{3584-512*p+64*(1-rr)}'

    def rd_g(q, rr):
        return f'ds_read_b128 v[{FB+32+4*q}:{FB+35+4*q}], v3 offset:{512*q+64*(1-rr)}'

    def mf(p, q):
        i = p + q
        a = ACC + 4 * i
        c = '0' if first[i] else f'v[{a}:{a+3}]'
        first[i] = False
        k(f'v_mfma_f32_16x16x32_bf16 v[{a}:{a+3}], v[{FB+4*p}:{FB+3+4*p}], v[{FB+32+4*q}:{FB+35+4*q}], {c}')

    for m in range(8):
        k(rd_g(m, 0))
        k(rd_f(7 - m, 0))
    issued_after = 0
    for st in range(8):
        p = 7 - st
        k(f's_waitcnt lgkmcnt({min(15, 16-(2*st+2)+issued_after)})')
        for q in range(st + 1):
            mf(p, q)
        k(rd_f(p, 1))
        issued_after += 1
    for q in range(8):
        k(rd_g(q, 1))
    for q in range(8):
        k(f's_waitcnt lgkmcnt({7-q})')
        for p in range(7 - q, -1, -1):
            mf(p, q)
    k.stamp(3)
    k(f"""
    v_lshlrev_b32 v8, 4, v1          ; lane*16
    s_barrier
    """)
    for w in range(4):
        k(f"""
        s_cmp_eq_u32 s4, {w}
        s_cbranch_scc0 k2_red_{w}""")
        for i in range(8):
            o = i >> 1
            if o == w:
                continue
            src = (w - o - 1) % 4
            k(f'ds_write_b128 v8, v[{ACC+4*i}:{ACC+4*i+3}] offset:{(i*3+src)*1024}')
        for j in range(8):
            k(f'v_mov_b32 v{40+j}, v{ACC+8*w+j}')
        k(f'k2_red_{w}:')
    k(f'''
    s_mul_i32 s12, s4, 6144
    v_add_u32 v9, s12, v8
    v_and_b32 v21, 15, v1
    v_lshrrev_b32 v22, 4, v1
    v_lshlrev_b32 v23, 5, v21
    v_lshl_add_u32 v23, v22, 3, v23
    s_lshl_b32 s12, s4, 10
    v_add_u32 v10, s12, v23
    v_lshrrev_b32 v11, 1, v21
    v_lshlrev_b32 v11, 6, v11
    v_and_b32 v12, 1, v22
    v_lshl_add_u32 v11, v12, 5, v11
    v_and_b32 v12, 1, v21
    v_lshl_add_u32 v11, v12, 4, v11
    v_lshrrev_b32 v12, 1, v22
    v_lshl_add_u32 v11, v12, 3, v11
    s_waitcnt lgkmcnt(0)
    s_barrier
    ds_read_b64 v[12:13], v10 offset:{HOFF+480}
    ds_read_b64 v[14:15], v10 offset:{HOFF+480+512}
    ''')
    for j in range(6):
        k(f'ds_read_b128 v[{48+4*j}:{51+4*j}], v9 offset:{1024*j}')
    k(f'''
    v_mov_b32 v16, s83
    v_mov_b32 v17, s83
    v_mov_b32 v18, s82
    v_mov_b32 v19, s82
    s_waitcnt lgkmcnt(0) vmcnt(0)
    ''')
    for t in range(2):
        o = 40 + 4 * t
        for j in range(3):
            s = 48 + 12 * t + 4 * j
            k(f'''
            v_pk_add_f32 v[{o}:{o+1}], v[{o}:{o+1}], v[{s}:{s+1}]
            v_pk_add_f32 v[{o+2}:{o+3}], v[{o+2}:{o+3}], v[{s+2}:{s+3}]''')
        for hh in range(2):
            hv = 12 + 2 * t + hh
            xv = XR + 2 * t + hh
            y = o + 2 * hh
            k(f'''
            v_lshlrev_b32 v20, 16, v{hv}
            v_and_b32 v21, 0xffff0000, v{hv}
            v_pk_fma_f32 v[{y}:{y+1}], v[20:21], v[16:17], v[{y}:{y+1}]
            v_lshlrev_b32 v22, 16, v{xv}
            v_and_b32 v23, 0xffff0000, v{xv}
            v_pk_fma_f32 v[{y}:{y+1}], v[{y}:{y+1}], v[18:19], v[22:23]
            v_cvt_pk_bf16_f32 v{24+2*t+hh}, v{y}, v{y+1}
            ''')
        k(f'buffer_store_dwordx2 v[{24+2*t}:{25+2*t}], v11, s[76:79], s13 offen offset:{512*t}')
    k.stamp(4)
    k('s_waitcnt vmcnt(0)')
    k.stamp(5)
    k.stamp_flush(1)
    k('s_endpgm')


def make_k2():
    total = N_WP + N_MISC + N_CONV + N_WSF
    k = Kern('conv_kernel', total, 256, K2_LDS)
    k(f"""
    s_cmp_ge_u32 s2, {total}
    s_cbranch_scc1 k2_exit
    """)
    k.stamp_s = 88
    k.stamp_v = 100
    k.stamp(0)
    load_ptrs(k)
    k(f"""
    s_waitcnt lgkmcnt(0)
    s_cmp_ge_u32 s2, {B_MISC}
    s_cbranch_scc1 k2_misc
    s_cmp_ge_u32 s2, {B_WSF}
    s_cbranch_scc1 k2_wsf
    s_cmp_ge_u32 s2, {B_WP}
    s_cbranch_scc1 k2_wp
    """)
    role_conv(k)
    k('k2_wp:')
    role_wp(k)
    k('k2_wsf:')
    role_wsf(k)
    k('k2_misc:')
    role_misc(k)
    k('k2_exit:\ns_endpgm')
    return k
```

```python
import os
from asmlib import Kern
from layout import WS, XS
from gen_k1 import f32, load_ptrs, srd, srd_ws

SC = 'sc1'
SPIN_MAX = 100000


NS = 5
SLOT = 12288
PANEL = 65536
CONST = PANEL + 81920
SCR = CONST + 1024
KG_LDS = SCR + 1024
TAB = 98304
ZERO = TAB + 4 * 4096
CORR = ZERO + 1024
NK = 20
VB = [28, 44]
ACC2 = 60
ACC1 = 92
GRAM = 124
SUM = 132
ONES = 140
C0 = -2.0 * 0.7978845608028654 * 1.4426950408889634
C1 = C0 * 0.044715


def gelu4(k, regs, t0=162):
    T = [t0 + 2 * g for g in range(len(regs))]
    z = list(zip(regs, T))
    for x, t in z:
        k(f'v_pk_mul_f32 v[{t}:{t+1}], v[{x}:{x+1}], v[{x}:{x+1}]')
    for x, t in z:
        k(f'v_pk_fma_f32 v[{t}:{t+1}], v[{t}:{t+1}], s[72:73], v[176:177]')
    for x, t in z:
        k(f'v_pk_mul_f32 v[{t}:{t+1}], v[{t}:{t+1}], v[{x}:{x+1}]')
    for x, t in z:
        k(f'v_exp_f32 v{t}, v{t}\nv_exp_f32 v{t+1}, v{t+1}')
    for x, t in z:
        k(f'v_pk_add_f32 v[{t}:{t+1}], v[{t}:{t+1}], s[74:75]')
    for x, t in z:
        k(f'v_rcp_f32 v{t}, v{t}\nv_rcp_f32 v{t+1}, v{t+1}')
    for x, t in z:
        k(f'v_pk_mul_f32 v[{x}:{x+1}], v[{x}:{x+1}], v[{t}:{t+1}]')


def a_dma(st):
    return [f"""s_add_u32 m0, s10, {(st % NS)*SLOT}
    buffer_load_dwordx4 v12, s[60:63], s12 offen lds""",
            'buffer_load_dwordx4 v3, s[56:59], s11 offen offset:1024 lds',
            f"""buffer_load_dwordx4 v4, s[56:59], s11 offen offset:2048 lds
    s_add_u32 s11, s11, {32*XS}
    s_add_u32 s12, s12, {108*1024}"""]


def a_panel(kk):
    return f"""s_add_u32 m0, s15, {kk*1024}
    buffer_load_dwordx4 v12, s[60:63], s13 offen lds
    s_add_u32 s13, s13, {108*1024}"""


def a_frags(st):
    base = (st % NS) * SLOT
    L = []
    for a in range(2):
        x = 8 * st + 4 * a
        L.append(f'ds_read_b64_tr_b16 a[{x}:{x+1}], v{6+a} offset:{base}')
        L.append(f'ds_read_b64_tr_b16 a[{x+2}:{x+3}], v{6+a} offset:{base+1024}')
    B = VB[st & 1]
    for n in range(4):
        L.append(f'ds_read_b128 v[{B+4*n}:{B+4*n+3}], v12 offset:{base+3072*n}')
    return L


def flag_store(k, soff):
    k(f"""
    v_mov_b32 v15, 0
    v_mov_b32 v16, 1
    s_mov_b64 exec, 1
    buffer_store_dword v16, v15, s[84:87], s{soff} offen {SC}
    s_mov_b64 exec, -1
    """)


def phase_a(k):
    xo, xs = WS['X1T']
    srd(k, 56, 'ws', xs + 1024, xo - 1024)
    srd_ws(k, 60, 'WPF')
    srd_ws(k, 64, 'X1F')
    srd_ws(k, 76, 'CSP')
    srd_ws(k, 80, 'BIP')
    k(f"""
    s_lshl_b32 s9, s54, 2
    s_add_u32 s9, s9, s4
    s_mul_i32 s10, s4, 3072
    s_lshl_b32 s11, s54, 8
    s_lshr_b32 s5, s55, 1
    s_mul_i32 s5, s5, 7
    s_min_u32 s5, s5, 47             ; base
    s_and_b32 s6, s55, 1             ; type
    s_lshl_b32 s7, s6, 2
    s_add_u32 s70, s5, s7            ; z2base
    s_mul_i32 s7, s6, 3
    s_add_u32 s71, s5, s7            ; z1base
    s_sub_u32 s68, 3, s6             ; z2max
    s_add_u32 s69, s6, 2             ; z1max
    s_min_u32 s12, s4, s68
    s_add_u32 s12, s12, s70
    s_add_u32 s12, s12, 54
    s_lshl_b32 s12, s12, 10          ; z2 slot w
    s_min_u32 s13, s4, s69
    s_add_u32 s13, s13, s71
    s_lshl_b32 s13, s13, 10          ; z1 slot w
    s_mul_i32 s15, s4, 20480
    s_add_u32 s15, s15, {PANEL}
    s_and_b32 s3, s4, 1
    s_lshl_b32 s3, s3, 3
    v_lshlrev_b32 v16, 1, v14
    v_add_u32 v16, s3, v16
    v_xor_b32 v16, v16, v13
    v_lshlrev_b32 v16, 4, v16
    v_mul_u32_u24 v3, {XS}, v14
    v_add_u32 v3, v3, v16
    s_mul_i32 s3, s4, {8*XS}
    v_add_u32 v3, s3, v3
    v_add_u32 v4, {4*XS-1024}, v3
    """)
    issued = []

    def emit(l, tag):
        k(l)
        issued.append(tag)

    def wait_for(tags, extra=''):
        idx = [i for i, t in enumerate(issued) if t in tags]
        n = len(issued) - 1 - max(idx)
        k(f's_waitcnt vmcnt({n}) {extra}')

    for st in range(NS):
        for l in a_dma(st):
            emit(l, ('a', st))
    k(f"""
    v_bfe_u32 v17, v0, 4, 2
    v_min_u32 v18, s68, v17
    v_add_u32 v18, s70, v18
    v_add_u32 v18, 54, v18
    v_min_u32 v19, s69, v17
    v_add_u32 v19, s71, v19
    v_and_b32 v17, 64, v0
    v_cmp_eq_u32 vcc, 0, v17
    v_cndmask_b32 v17, v19, v18, vcc ; phi'
    v_lshrrev_b32 v18, 1, v17
    v_lshlrev_b32 v18, 5, v18
    v_and_b32 v17, 1, v17
    v_lshl_add_u32 v18, v17, 2, v18
    v_lshrrev_b32 v17, 2, v13
    v_lshl_add_u32 v18, v17, 3, v18
    v_and_b32 v17, 3, v13
    v_add_u32 v18, v18, v17
    v_lshlrev_b32 v18, 2, v18
    s_mov_b32 s14, {1728*4}
    s_mov_b32 s7, {2*1728*4}
    s_mov_b32 s3, {3*1728*4}
    s_cmp_ge_u32 s4, 2
    s_cbranch_scc1 kgA_cb
    buffer_load_dword v20, v18, s[76:79], 0 offen
    buffer_load_dword v21, v18, s[76:79], s14 offen
    buffer_load_dword v22, v18, s[76:79], s7 offen
    buffer_load_dword v23, v18, s[76:79], s3 offen
    s_branch kgA_cj
kgA_cb:
    buffer_load_dword v20, v18, s[80:83], 0 offen
    buffer_load_dword v21, v18, s[80:83], s14 offen
    buffer_load_dword v22, v18, s[80:83], s7 offen
    buffer_load_dword v23, v18, s[80:83], s3 offen
kgA_cj:
    s_lshl_b32 s3, s9, 11
    v_add_u32 v5, s3, v12
    v_lshrrev_b32 v218, 1, v5
    v_bfe_u32 v16, v1, 2, 2
    v_bfe_u32 v17, v1, 1, 1
    s_lshl_b32 s3, s4, 2
    v_add_u32 v17, s3, v17
    v_and_b32 v18, 1, v14
    v_lshlrev_b32 v18, 3, v18
    v_lshl_add_u32 v18, v16, 1, v18
    v_xor_b32 v17, v17, v18
    v_lshlrev_b32 v6, 4, v17
    v_lshl_add_u32 v6, v16, 8, v6
    v_mul_u32_u24 v18, 3072, v14
    v_add_u32 v6, v6, v18
    v_and_b32 v18, 1, v1
    v_lshl_add_u32 v6, v18, 3, v6
    v_add_u32 v6, 1024, v6
    v_xor_b32 v7, 32, v6
    s_mov_b32 s72, {f32(C1)}
    s_mov_b32 s73, {f32(C1)}
    s_mov_b32 s74, 1.0
    s_mov_b32 s75, 1.0
    v_mov_b32 v176, {f32(C0)}
    v_mov_b32 v177, {f32(C0)}
    """)
    issued += [('c', 0)] * 4
    for r in range(4):
        k(f'v_mov_b32 v{ONES+r}, 0x3f803f80')
    srd_ws(k, 76, 'STAT')
    srd_ws(k, 80, 'Z1F')
    srd_ws(k, 92, 'Z2F')
    srd_ws(k, 84, 'FLG')
    k.stamp(1)
    wait_for([('a', 0)])
    k('s_barrier')
    for l in a_frags(0):
        k(l)
    k.stamp(2)
    for kk in range(NK):
        fill = []
        if kk + 1 < NK:
            wait_for([('a', kk + 1)], 'lgkmcnt(0)')
            k('s_barrier')
            fill = [(None, l) for l in a_frags(kk + 1)]
            if kk + NS < NK:
                fill += [(('a', kk + NS), l) for l in a_dma(kk + NS)]
        else:
            k('s_waitcnt lgkmcnt(0)')
        fill.append((('p', 0), a_panel(kk)))
        B = VB[kk & 1]
        z = kk == 0
        M = []
        for a in range(2):
            x = f'a[{8*kk+4*a}:{8*kk+4*a+3}]'
            for n in range(4):
                acc = ACC2 + 4 * (4 * a + n)
                M.append(f'v_mfma_f32_16x16x32_bf16 v[{acc}:{acc+3}], {x}, v[{B+4*n}:{B+4*n+3}], ' + ('0' if z else f'v[{acc}:{acc+3}]'))
            g = GRAM + 4 * a
            s_ = SUM + 4 * a
            M.append(f'v_mfma_f32_16x16x32_bf16 v[{g}:{g+3}], {x}, {x}, ' + ('0' if z else f'v[{g}:{g+3}]'))
            M.append(f'v_mfma_f32_16x16x32_bf16 v[{s_}:{s_+3}], {x}, v[{ONES}:{ONES+3}], ' + ('0' if z else f'v[{s_}:{s_+3}]'))
        for n, mm in enumerate(M):
            k(mm)
            if n < len(fill):
                t, l = fill[n]
                k(l)
                if t:
                    issued.append(t)
        if kk == 6:
            k(f"""
            v_add_f32 v20, v20, v21
            v_add_f32 v22, v22, v23
            v_add_f32 v20, v20, v22
            v_lshlrev_b32 v16, 2, v0
            v_add_u32 v16, {CONST}, v16
            ds_write_b32 v16, v20
            """)
    k.stamp(3)
    k(f"""
    v_mul_u32_u24 v16, 80, v14
    v_lshlrev_b32 v17, 2, v13
    v_add_u32 v17, {CONST}, v17
    v_lshlrev_b32 v15, 4, v14
    v_add_u32 v15, {CONST}, v15
    """)
    for a in range(2):
        for r in range(4):
            g = GRAM + 4 * a + r
            k(f'ds_bpermute_b32 v{g}, v16, v{g} offset:{4*r}')
    for n in range(4):
        k(f"""
        ds_read_b32 v{144+4*n}, v17 offset:{64*n}
        ds_read_b32 v{146+4*n}, v17 offset:{512+64*n}""")
    k('s_waitcnt lgkmcnt(8)')
    for e in range(8):
        g = GRAM + e
        s_ = SUM + e
        t = 162 + (e & 3)
        k(f"""
        v_mul_f32 v{s_}, {f32(1.0/640)}, v{s_}
        v_mov_b32 v{t}, {f32(1e-5)}
        v_fmac_f32 v{t}, {f32(1.0/640)}, v{g}
        v_fma_f32 v{t}, -v{s_}, v{s_}, v{t}
        v_max_f32 v{t}, {f32(1e-5)}, v{t}
        v_rsq_f32 v{g}, v{t}
        v_mul_f32 v{s_}, -v{s_}, v{g}
        """)
    k(f"""
    v_and_b32 v18, 3, v13
    v_lshrrev_b32 v19, 2, v13
    v_lshl_add_u32 v19, v19, 4, v13
    v_lshlrev_b32 v19, 2, v19
    v_cmp_eq_u32 s[56:57], 1, v18
    v_cmp_eq_u32 s[58:59], 2, v18
    v_cmp_eq_u32 vcc, 3, v18
    """)
    for a in range(2):
        for (src, dst) in ((GRAM + 4 * a, 20 + 4 * a), (SUM + 4 * a, 22 + 4 * a)):
            k(f"""
            v_cndmask_b32 v{dst}, v{src}, v{src+1}, s[56:57]
            v_cndmask_b32 v{dst}, v{dst}, v{src+2}, s[58:59]
            v_cndmask_b32 v{dst}, v{dst}, v{src+3}, vcc
            ds_bpermute_b32 v{dst}, v19, v{dst}
            """)
    for n in range(4):
        k(f"""
        ds_read_b128 v[{180+8*n}:{183+8*n}], v15 offset:{256+64*n}
        ds_read_b128 v[{184+8*n}:{187+8*n}], v15 offset:{768+64*n}""")
    k('s_waitcnt lgkmcnt(12)')
    for n in range(4):
        k(f'v_mov_b32 v{145+4*n}, v{144+4*n}\nv_mov_b32 v{147+4*n}, v{146+4*n}')
    for e in range(16):
        k(f'v_mov_b32 v{28+e}, 0')
    k(f"""
    s_mul_i32 s3, s9, 54
    s_add_u32 s3, s3, s70
    """)
    for n in range(4):
        regs = []
        for a in range(2):
            acc = ACC2 + 4 * (4 * a + n)
            for p in range(2):
                x = acc + 2 * p
                g = GRAM + 4 * a + 2 * p
                s_ = SUM + 4 * a + 2 * p
                t = 162 + 2 * (2 * a + p)
                k(f"""
                v_pk_fma_f32 v[{t}:{t+1}], v[{144+4*n}:{145+4*n}], v[{s_}:{s_+1}], v[{146+4*n}:{147+4*n}]
                v_pk_fma_f32 v[{x}:{x+1}], v[{x}:{x+1}], v[{g}:{g+1}], v[{t}:{t+1}]""")
                regs.append(x)
        gelu4(k, regs)
        o = 44 + 4 * n
        for j, x in enumerate(regs):
            k(f'v_cvt_pk_bf16_f32 v{o+j}, v{x}, v{x+1}')
        k(f"""
        s_min_u32 s5, s68, {n}
        s_add_u32 s5, s5, s3
        s_lshl_b32 s5, s5, 10""")
        emit(f'buffer_store_dwordx4 v[{o}:{o+3}], v12, s[92:95], s5 offen {SC}', ('s', 0))
        lab = f'kgA_ns{n}'
        if n == 3:
            k(f's_cmp_eq_u32 s68, 3\ns_cbranch_scc0 {lab}')
        elif n < 2:
            k(f's_cmp_eq_u32 s55, 14\ns_cbranch_scc1 {lab}')
        for j, x in enumerate(regs):
            k(f"""
            v_pk_add_f32 v[{28+2*j}:{29+2*j}], v[{28+2*j}:{29+2*j}], v[{x}:{x+1}]
            v_pk_fma_f32 v[{36+2*j}:{37+2*j}], v[{x}:{x+1}], v[{x}:{x+1}], v[{36+2*j}:{37+2*j}]""")
        if n != 2:
            k(f'{lab}:')
    for n in (8, 4, 2, 1):
        for v in range(28, 44):
            k(f'v_add_f32_dpp v{v}, v{v}, v{v} row_ror:{n} row_mask:0xf bank_mask:0xf')
    for e in range(8):
        k(f'v_mov_b32 v{144+2*e}, v{28+e}\nv_mov_b32 v{145+2*e}, v{36+e}')
    k(f"""
    s_lshl_b32 s5, s4, 8
    s_add_u32 s5, s5, {SCR}
    v_lshlrev_b32 v15, 6, v14
    v_add_u32 v15, s5, v15
    v_lshl_add_u32 v16, v13, 2, v15
    v_cmp_eq_u32 vcc, 0, v13
    s_and_saveexec_b64 s[56:57], vcc
    ds_write_b128 v15, v[144:147]
    ds_write_b128 v15, v[148:151] offset:16
    ds_write_b128 v15, v[152:155] offset:32
    ds_write_b128 v15, v[156:159] offset:48
    s_mov_b64 exec, s[56:57]
    s_waitcnt lgkmcnt(0)
    ds_read_b32 v17, v16
    v_lshlrev_b32 v16, 2, v1
    s_lshl_b32 s5, s9, 8
    v_mov_b32 v21, v20
    v_mov_b32 v23, v22
    v_mov_b32 v25, v24
    v_mov_b32 v27, v26
    v_add_u32 v8, {PANEL}, v12
    v_add_u32 v9, {PANEL+40960}, v12
    s_waitcnt lgkmcnt(0)
    """)
    emit(f'buffer_atomic_add_f32 v17, v16, s[76:79], s5 offen {SC}', ('s', 0))
    k.stamp(4)
    b_setup(k)
    bpl = b_prefetch_list()
    wait_for([('p', 0)])
    k('s_barrier')

    def p_reads(kk):
        B = VB[kk & 1]
        return [f'ds_read_b128 v[{B+4*n}:{B+4*n+3}], v{8+(n>>1)} offset:{(n&1)*20480+1024*kk}' for n in range(4)]

    for l in p_reads(0):
        k(l)
    for kk in range(NK):
        nxt = p_reads(kk + 1) if kk + 1 < NK else []
        k('s_waitcnt lgkmcnt(0)')
        B = VB[kk & 1]
        m = 0
        for a in range(2):
            x = f'a[{8*kk+4*a}:{8*kk+4*a+3}]'
            for n in range(4):
                acc = ACC1 + 4 * (4 * a + n)
                k(f'v_mfma_f32_16x16x32_bf16 v[{acc}:{acc+3}], v[{B+4*n}:{B+4*n+3}], {x}, ' + ('0' if kk == 0 else f'v[{acc}:{acc+3}]'))
                if m < len(nxt):
                    k(nxt[m])
                if m in (5, 7) and bpl and kk >= 2:
                    emit(bpl.pop(0), ('b', 0))
                m += 1
    assert not bpl
    k.stamp(5)
    k(f"""
    s_lshl_b32 s3, s9, 4
    s_add_u32 s3, s3, s55
    s_lshl_b32 s3, s3, 2
    """)
    wait_for([('s', 0)])
    flag_store(k, 3)
    k('s_barrier')
    k.stamp(6)
    for n in range(4):
        regs = []
        for a in range(2):
            acc = ACC1 + 4 * (4 * a + n)
            r = 20 + 4 * a
            for p in range(2):
                x = acc + 2 * p
                t = 162 + 2 * (2 * a + p)
                k(f"""
                v_pk_fma_f32 v[{t}:{t+1}], v[{180+8*n+2*p}:{181+8*n+2*p}], v[{r+2}:{r+3}], v[{184+8*n+2*p}:{185+8*n+2*p}]
                v_pk_fma_f32 v[{x}:{x+1}], v[{x}:{x+1}], v[{r}:{r+1}], v[{t}:{t+1}]""")
                regs.append(x)
        gelu4(k, regs)
        k(f"""
        s_min_u32 s3, s69, {n}
        s_add_u32 s3, s3, s71
        s_lshl_b32 s3, s3, 16
        """)
        for a in range(2):
            acc = ACC1 + 4 * (4 * a + n)
            k(f"""
            v_cvt_pk_bf16_f32 v{acc}, v{acc}, v{acc+1}
            v_cvt_pk_bf16_f32 v{acc+1}, v{acc+2}, v{acc+3}
            buffer_store_dwordx2 v[{acc}:{acc+1}], v218, s[80:83], s3 offen offset:{512*a} {SC}""")
    for kk in range(NK):
        k(f"""
        s_cmp_eq_u32 s55, {kk & 15}
        s_cbranch_scc0 kgA_nd{kk}
        s_mov_b32 s3, {kk*128*1024}
        buffer_store_dwordx4 a[{8*kk}:{8*kk+3}], v5, s[64:67], s3 offen {SC}
        buffer_store_dwordx4 a[{8*kk+4}:{8*kk+7}], v5, s[64:67], s3 offen offset:1024 {SC}
kgA_nd{kk}:
        """)
    k.stamp(7)
    k(f"""
    s_lshl_b32 s54, s9, 4
    s_add_u32 s54, s54, s55
    s_lshl_b32 s54, s54, 2
    s_add_u32 s54, s54, 8192
    """)
    k.stamp(8)


WSLOT = 8192
NWS = 3
NSET = 4
ZB = [48 + 28 * n for n in range(NSET)]
WB = [16, 32]
DIST = 3


def wdma(P):
    slot = P % NWS
    L = []
    for m in range(8):
        c = m >> 1
        rowc = 32 * (c >> 1) + 4 * (c & 1)
        L.append(f'''s_add_u32 m0, s96, {slot*32768+1024*m}
    s_add_u32 s14, s97, {rowc*4096 + 128*P}
    buffer_load_dwordx4 v{220+(m&1)}, s[88:91], s14 offen lds''')
    return L


def b_setup(k):
    srd(k, 88, 'wsp', 2048 * 4096)
    k(f"""
    v_lshrrev_b32 v16, 3, v1
    v_lshrrev_b32 v17, 2, v16
    v_lshlrev_b32 v17, 3, v17
    v_and_b32 v16, 3, v16
    v_add_u32 v17, v17, v16
    v_lshlrev_b32 v17, 12, v17
    v_and_b32 v16, 7, v1
    v_xor_b32 v16, v16, v14
    v_lshl_add_u32 v220, v16, 4, v17
    v_xor_b32 v221, 64, v220
    v_add_u32 v221, {16*4096}, v221
    s_lshl_b32 s96, s4, 13
    s_lshl_b32 s97, s98, 18
    s_lshl_b32 s3, s4, 10
    s_add_u32 s97, s97, s3
    s_lshl_b32 s7, s2, 15
    v_lshlrev_b32 v219, 4, v0
    """)


def b_prefetch_list():
    L = wdma(0) + wdma(1)
    for j in range(8):
        L.append(f"""buffer_load_dwordx4 v[{224+4*(j&3)}:{227+4*(j&3)}], v219, s[88:91], s7 offen
    s_add_u32 s7, s7, 4096""")
    return L


def zloads(ks):
    Z = ZB[ks % NSET]
    L = []
    for b in range(7):
        v = 12 if b < 4 else 3
        L.append(f'buffer_load_dwordx4 v[{Z+4*b}:{Z+4*b+3}], v{v}, s[60:63], s12 offen offset:{1024*(b%4)} {SC}')
    L[-1] += f'\ns_add_u32 s12, s12, {54*1024}'
    return L


def wreads(ks):
    slot = (ks >> 1) % NWS
    W = WB[ks & 1]
    va = (6 if slot < 2 else 222) + (ks & 1)
    return [f'ds_read_b128 v[{W+4*c}:{W+4*c+3}], v{va} offset:{(slot%2)*32768+2048*c}' for c in range(4)]


def poll_loop(k, body, tag, sleep=2):
    pre = int(os.environ.get('KG_PRE' + tag, 0))
    sleep = int(os.environ.get('KG_SLP' + tag, sleep))
    if pre:
        k(f's_sleep {pre}')
    k(f"""
    s_mov_b32 s3, 0
kg_poll{tag}:
    {body}
    s_cmp_eq_u64 vcc, 0
    s_cbranch_scc1 kg_rdy{tag}
    s_add_u32 s3, s3, 1
    s_cmp_lt_u32 s3, {SPIN_MAX}
    s_cbranch_scc0 kg_rdy{tag}
    s_sleep {sleep}
    s_branch kg_poll{tag}
kg_rdy{tag}:
    """)


RB = [160, 168]
MB = [176, 180]
ACCM = 112


def tabreads(ks):
    R = RB[ks & 1]
    M = MB[ks & 1]
    return [f'ds_read_b128 v[{R}:{R+3}], v4 offset:{128*ks}',
            f'ds_read_b128 v[{R+4}:{R+7}], v4 offset:{128*ks+16}',
            f'ds_read_b128 v[{M}:{M+3}], v5 offset:{64*ks}']


def scale_ops(ks):
    W = WB[ks & 1]
    R = RB[ks & 1]
    L = []
    for c in range(4):
        for d in range(4):
            w = W + 4 * c + d
            t = 184 + 2 * ((4 * c + d) % 4)
            L.append(f"""v_lshlrev_b32 v{t}, 16, v{w}
    v_and_b32 v{t+1}, 0xffff0000, v{w}
    v_pk_mul_f32 v[{t}:{t+1}], v[{t}:{t+1}], v[{R+2*d}:{R+2*d+1}]
    v_cvt_pk_bf16_f32 v{w}, v{t}, v{t+1}""")
    return L


def phase_b(k):
    srd_ws(k, 60, 'Z2F')
    srd_ws(k, 64, 'Z1F')
    srd_ws(k, 68, 'PF')
    srd(k, 72, 'bsp', 4096)
    k(f"""
    s_mul_i32 s8, s99, 7
    s_min_u32 s8, s8, 47             ; phi0
    v_add_u32 v3, 4096, v12
    v_lshrrev_b32 v8, 2, v13
    v_lshlrev_b32 v8, 3, v8
    v_and_b32 v9, 3, v13
    v_add_u32 v8, v8, v9             ; row_local
    v_lshrrev_b32 v11, 1, v13
    v_xor_b32 v11, v11, v14
    v_lshlrev_b32 v11, 4, v11
    v_lshl_add_u32 v6, v13, 7, v11
    v_add_u32 v6, s96, v6
    v_xor_b32 v7, 64, v6
    v_add_u32 v222, 65536, v6
    v_add_u32 v223, 65536, v7
    s_mul_i32 s12, s4, {16*54}
    s_add_u32 s12, s12, s8
    s_lshl_b32 s12, s12, 10
    s_lshl_b32 s9, s98, 2
    s_add_u32 s9, s9, s4             ; tau
    s_lshl_b32 s13, s9, 10
    v_add_u32 v10, s13, v12
    v_lshrrev_b32 v217, 1, v10
    s_lshr_b32 s13, s4, 1
    s_lshl_b32 s13, s13, 5
    s_and_b32 s15, s4, 1
    s_lshl_b32 s15, s15, 2
    s_add_u32 s13, s13, s15
    s_lshl_b32 s15, s98, 6
    s_add_u32 s13, s13, s15
    s_lshl_b32 s13, s13, 1
    v_lshlrev_b32 v9, 1, v8
    buffer_load_ushort v206, v9, s[72:75], s13 offen
    s_lshl_b32 s10, s4, 12
    s_add_u32 s10, s10, {TAB}
    v_lshlrev_b32 v4, 5, v14
    v_add_u32 v4, s10, v4
    v_lshlrev_b32 v5, 4, v14
    v_mov_b32 v16, {ZERO}
    s_add_u32 s5, s10, 2048
    v_mov_b32 v17, s5
    v_cmp_eq_u32 vcc, 0, v13
    v_cndmask_b32 v16, v16, v17, vcc
    v_add_u32 v17, 1024, v17
    v_cmp_eq_u32 vcc, 1, v13
    v_cndmask_b32 v16, v16, v17, vcc
    v_add_u32 v5, v5, v16
    v_mov_b32 v16, 0
    v_mov_b32 v17, 0
    v_mov_b32 v18, 0
    v_mov_b32 v19, 0
    v_add_u32 v15, {ZERO}, v12
    ds_write_b128 v15, v[16:19]
    s_lshl_b32 s5, s4, 10
    s_lshr_b32 s6, s9, 1
    s_lshl_b32 s6, s6, 6
    s_lshl_b32 s7, s99, 3
    s_add_u32 s6, s6, s7
    v_and_b32 v2, 1, v1
    v_lshlrev_b32 v2, 2, v2
    s_waitcnt lgkmcnt(0)
    """)
    k('s_add_u32 s11, s6, 8192')
    poll_loop(k, f"""buffer_load_dwordx4 v[48:51], v12, s[84:87], s5 offen {SC}
    s_waitcnt vmcnt(0)
    v_min_u32 v48, v48, v49
    v_min3_u32 v48, v48, v50, v51
    v_cmp_eq_u32 vcc, 0, v48""", 'B', 16)
    flag_store(k, 54)
    for l in wreads(0):
        k(l)
    k.stamp(9)
    issued = [('f', 0)]

    def emit(l, tag):
        k(l)
        issued.append(tag)

    k('s_lshl_b32 s5, s4, 12\nv_lshlrev_b32 v15, 6, v1')
    for n in range(4):
        emit(f'buffer_load_dwordx4 v[{132+4*n}:{135+4*n}], v15, s[76:79], s5 offen offset:{16*n} {SC}', ('s', 0))
    for ks in range(2):
        for l in zloads(ks):
            emit(l, ('z', ks))
    def wait_for(tags, extra=''):
        idx = [i for i, t in enumerate(issued) if t in tags]
        n = len(issued) - 1 - max(idx)
        k(f's_waitcnt vmcnt({n}) {extra}')

    wait_for([('s', 0)])
    for e in range(8):
        m = 132 + 2 * e
        k(f"""
        v_mul_f32 v{m}, {f32(1.0/864)}, v{m}
        v_mov_b32 v15, {f32(1e-5)}
        v_fmac_f32 v15, {f32(1.0/864)}, v{m+1}
        v_fma_f32 v15, -v{m}, v{m}, v15
        v_max_f32 v15, {f32(1e-5)}, v15
        v_rsq_f32 v{148+e}, v15
        """)
    for d in range(4):
        m0, m1 = 132 + 4 * d, 134 + 4 * d
        k(f"""
        v_cvt_pk_bf16_f32 v{156+d}, v{m0}, v{m1}
        v_lshlrev_b32 v{m0+1}, 16, v{156+d}
        v_and_b32 v{m1+1}, 0xffff0000, v{156+d}
        v_sub_f32 v{m0}, v{m0}, v{m0+1}
        v_sub_f32 v{m1}, v{m1}, v{m1+1}
        v_cvt_pk_bf16_f32 v{184+d}, v{m0}, v{m1}
        """)
    k(f"""
    v_lshlrev_b32 v15, 5, v1
    v_add_u32 v15, s10, v15
    ds_write_b128 v15, v[148:151]
    ds_write_b128 v15, v[152:155] offset:16
    v_add_u32 v15, s10, v12
    ds_write_b128 v15, v[156:159] offset:2048
    ds_write_b128 v15, v[184:187] offset:3072
    s_waitcnt lgkmcnt(0)
    """)
    for l in tabreads(0):
        k(l)
    k('s_waitcnt lgkmcnt(0)')
    for l in scale_ops(0):
        k(l)
    nz = 2
    for ks in range(16):
        Z = ZB[ks % NSET]
        W = WB[ks & 1]
        M = MB[ks & 1]
        need = [('z', ks)]
        if ks + 1 < 16 and (ks + 1) >> 1 >= 2:
            need.append(('w', (ks + 1) >> 1))
        wait_for(need)
        early = []
        if ks + 1 < 16:
            early += [(None, l) for l in wreads(ks + 1) + tabreads(ks + 1)]
        mem = []
        while nz <= min(ks + DIST, 15):
            mem += [(('z', nz), l) for l in zloads(nz)]
            nz += 1
        if ks % 2 == 0 and (ks >> 1) + 2 < 8:
            P = (ks >> 1) + 2
            mem += [(('w', P), l) for l in wdma(P)]
        sc = scale_ops(ks + 1) if ks + 1 < 16 else []
        MF = []
        for c in range(4):
            for b in range(7):
                a = 4 * (7 * c + b)
                cc = '0' if ks == 0 else f'a[{a}:{a+3}]'
                MF.append(f'v_mfma_f32_16x16x32_bf16 a[{a}:{a+3}], v[{Z+4*b}:{Z+4*b+3}], v[{W+4*c}:{W+4*c+3}], {cc}')
            a = ACCM + 4 * c
            cc = '0' if ks == 0 else f'a[{a}:{a+3}]'
            MF.append(f'v_mfma_f32_16x16x32_bf16 a[{a}:{a+3}], v[{M}:{M+3}], v[{W+4*c}:{W+4*c+3}], {cc}')
        mi = 0
        for n, mm in enumerate(MF):
            k(mm)
            if n < len(early):
                k(early[n][1])
            if mi < len(mem) and (n >= len(early) or len(mem) > 24):
                t, l = mem[mi]
                k(l)
                issued.append(t)
                mi += 1
            if n == 13 and sc:
                k('s_waitcnt lgkmcnt(0)')
            if 14 <= n < 30 and sc:
                k(sc[n - 14])
        assert mi == len(mem), (ks, mi, len(mem))
    k.stamp(10)
    poll_loop(k, f"""buffer_load_dword v15, v2, s[84:87], s11 offen {SC}
    s_waitcnt vmcnt(0)
    v_cmp_eq_u32 vcc, 0, v15""", 'Z', 4)
    for b in range(7):
        k(f"""
        s_add_u32 s13, s8, {b}
        s_lshl_b32 s{76+b}, s13, 16
        buffer_load_dwordx2 v[{192+2*b}:{193+2*b}], v217, s[64:67], s{76+b} offen {SC}""")
    for c in range(4):
        k(f'v_accvgpr_read_b32 v{16+2*c}, a{ACCM+4*c}\nv_accvgpr_read_b32 v{17+2*c}, a{ACCM+4*c+1}')
    k(f"""
    s_lshl_b32 s5, s4, 8
    s_add_u32 s5, s5, {CORR}
    v_lshlrev_b32 v15, 2, v13
    v_add_u32 v11, s5, v15
    v_add_f32 v16, v16, v17
    v_add_f32 v18, v18, v19
    v_add_f32 v20, v20, v21
    v_add_f32 v22, v22, v23
    s_mov_b64 exec, 0xffff
    ds_write_b32 v11, v16
    ds_write_b32 v11, v18 offset:64
    ds_write_b32 v11, v20 offset:128
    ds_write_b32 v11, v22 offset:192
    s_mov_b64 exec, -1
    s_barrier
    """)
    for w in range(4):
        k(f"""
        s_cmp_eq_u32 s4, {w}
        s_cbranch_scc0 kgB_red_{w}""")
        for c in range(4):
            if c == w:
                continue
            src = (w - c - 1) % 4
            k(f'v_add_u32 v11, {(c*3+src)*7168}, v12')
            for b in range(7):
                a = 4 * (7 * c + b)
                k(f'ds_write_b128 v11, a[{a}:{a+3}] offset:{1024*b}')
        for n in range(28):
            k(f'v_accvgpr_read_b32 v{16+n}, a{28*w+n}')
        k(f'kgB_red_{w}:')
    k(f"""
    s_mul_i32 s14, s4, {3*7168}
    v_add_u32 v11, s14, v12
    s_lshl_b32 s5, s4, 6
    s_add_u32 s5, s5, {CORR}
    v_add_u32 v15, s5, v15
    s_waitcnt lgkmcnt(0)
    s_barrier
    ds_read_b32 v140, v15
    ds_read_b32 v141, v15 offset:256
    ds_read_b32 v142, v15 offset:512
    ds_read_b32 v143, v15 offset:768
    """)
    for b in range(3):
        for s in range(3):
            r = 48 + 12 * b + 4 * s
            k(f'ds_read_b128 v[{r}:{r+3}], v11 offset:{s*7168+1024*b}')
    k(f"""
    s_waitcnt lgkmcnt(9) vmcnt(0)
    v_lshlrev_b32 v206, 16, v206
    v_add_f32 v140, v140, v141
    v_add_f32 v142, v142, v143
    v_sub_f32 v206, v206, v140
    v_sub_f32 v206, v206, v142
    v_mov_b32 v207, v206
    """)
    for b in range(3, 7):
        for s in range(3):
            r = 48 + 12 * b + 4 * s
            k(f'ds_read_b128 v[{r}:{r+3}], v11 offset:{s*7168+1024*b}')
    for b in range(7):
        k(f's_waitcnt lgkmcnt({min(15, 18-3*b)})')
        o = 16 + 4 * b
        r = 48 + 12 * b
        for p in range(2):
            k(f"""
            v_pk_add_f32 v[{o+2*p}:{o+2*p+1}], v[{o+2*p}:{o+2*p+1}], v[{r+2*p}:{r+2*p+1}]
            v_pk_add_f32 v[{r+4+2*p}:{r+4+2*p+1}], v[{r+4+2*p}:{r+4+2*p+1}], v[{r+8+2*p}:{r+8+2*p+1}]
            v_pk_add_f32 v[{o+2*p}:{o+2*p+1}], v[{o+2*p}:{o+2*p+1}], v[206:207]
            v_lshlrev_b32 v{r}, 16, v{192+2*b+p}
            v_and_b32 v{r+1}, 0xffff0000, v{192+2*b+p}
            v_pk_add_f32 v[{o+2*p}:{o+2*p+1}], v[{o+2*p}:{o+2*p+1}], v[{r+4+2*p}:{r+4+2*p+1}]
            v_pk_mul_f32 v[{o+2*p}:{o+2*p+1}], v[{o+2*p}:{o+2*p+1}], v[{r}:{r+1}]
            v_cvt_pk_bf16_f32 v{192+2*b+p}, v{o+2*p}, v{o+2*p+1}
            """)
        k(f'buffer_store_dwordx2 v[{192+2*b}:{193+2*b}], v217, s[68:71], s{76+b} offen {SC}')
    k(f"""
    s_lshl_b32 s3, s98, 3
    s_add_u32 s3, s3, s99
    s_lshl_b32 s3, s3, 2
    s_add_u32 s3, s3, s4
    s_lshl_b32 s3, s3, 2
    s_add_u32 s3, s3, 4096
    v_mov_b32 v15, 0
    v_mov_b32 v16, 1
    s_waitcnt vmcnt(0)
    s_mov_b64 exec, 1
    buffer_store_dword v16, v15, s[84:87], s3 offen {SC}
    s_mov_b64 exec, -1
    """)
    k.stamp(11)
    c_prefetch_setup(k)
    for l in c_prefetch_list():
        k(l)


WOB = 80
PSET = [16 + 16 * n for n in range(4)]


def c_prefetch_setup(k):
    srd_ws(k, 56, 'WOF')
    k(f"""
    s_mul_i32 s5, s4, {7*40}
    s_mul_i32 s6, s99, 5
    s_add_u32 s5, s5, s6
    s_lshl_b32 s5, s5, 10
    """)


def c_prefetch_list():
    L = []
    for ks in range(7):
        for b in range(5):
            v = 12 if b < 4 else 3
            a = WOB + 20 * ks + 4 * b
            L.append(f'buffer_load_dwordx4 a[{a}:{a+3}], v{v}, s[56:59], s5 offen offset:{1024*(b%4)}')
        L[-1] += f'\ns_add_u32 s5, s5, {40*1024}'
    return L


def ploads(ks):
    P = PSET[ks % 4]
    L = []
    for c in range(4):
        L.append(f'buffer_load_dwordx2 v[{P+4*c}:{P+4*c+1}], v216, s[60:63], s12 offen offset:{512*c} {SC}')
        L.append(f'buffer_load_dwordx2 v[{P+4*c+2}:{P+4*c+3}], v216, s[60:63], s11 offen offset:{512*c} {SC}')
    L[-1] += f'\ns_add_u32 s12, s12, {128*1024}\ns_add_u32 s11, s11, {128*1024}'
    return L


def phase_c(k):
    srd_ws(k, 60, 'PF')
    srd_ws(k, 64, 'X1F')
    srd_ws(k, 68, 'MODF')
    srd(k, 72, 'out', 2048 * 1280)
    k(f'''
    s_mul_i32 s8, s99, 5             ; delta0
    v_mul_u32_u24 v4, 1280, v8
    v_lshl_add_u32 v4, v14, 4, v4
    v_lshlrev_b32 v5, 5, v14
    s_mul_i32 s12, s4, {14*128}
    s_lshl_b32 s10, s98, 2
    s_add_u32 s12, s12, s10
    s_lshl_b32 s12, s12, 9
    s_add_u32 s11, s12, 65536
    v_lshlrev_b32 v216, 3, v1
    s_lshr_b32 s14, s4, 1
    s_lshl_b32 s14, s14, 5
    s_and_b32 s15, s4, 1
    s_lshl_b32 s15, s15, 2
    s_add_u32 s14, s14, s15
    s_lshl_b32 s15, s98, 6
    s_add_u32 s14, s14, s15
    s_mul_i32 s13, s14, 1280
    ''')
    for b in range(5):
        k(f'''
        s_add_u32 s14, s8, {b}
        s_lshr_b32 s15, s14, 1           ; dblk
        s_and_b32 s14, s14, 1            ; h
        s_lshl_b32 s5, s15, 17
        s_lshl_b32 s6, s14, 3
        s_add_u32 s{76+b}, s5, s6        ; x1f soffset
        s_lshl_b32 s5, s15, 6
        s_add_u32 s5, s5, s6
        s_add_u32 s{88+b}, s5, s13
        s_lshl_b32 s5, s5, 1
        s_add_u32 s5, s5, {5*640*4}
        buffer_load_dwordx4 v[{228+4*b}:{231+4*b}], v5, s[68:71], s5 offen
        ''')
    k(f'''
    s_lshl_b32 s3, s98, 7
    s_lshl_b32 s5, s4, 5
    s_add_u32 s3, s3, s5
    s_add_u32 s3, s3, 4096
    v_lshlrev_b32 v16, 2, v1
    v_add_u32 v16, s3, v16
    s_lshr_b32 s5, s8, 1
    s_add_u32 s5, s5, 8
    v_add_u32 v17, s5, v1
    v_and_b32 v17, 15, v17
    v_lshlrev_b32 v18, 2, v17
    s_lshr_b32 s5, s9, 1
    s_lshl_b32 s5, s5, 6
    s_add_u32 s5, s5, 8192
    v_add_u32 v18, s5, v18
    v_cmp_gt_u32 vcc, 8, v1
    v_cndmask_b32 v16, v18, v16, vcc
    ''')
    k('s_mov_b64 exec, 0x7ff')
    poll_loop(k, f"""buffer_load_dword v15, v16, s[84:87], 0 offen {SC}
    s_waitcnt vmcnt(0)
    v_cmp_eq_u32 vcc, 0, v15""", 'C', 2)
    k('s_mov_b64 exec, -1')
    k.stamp(12)
    issued = []

    def emit(l, tag):
        k(l)
        issued.append(tag)

    for ks in range(3):
        for l in ploads(ks):
            emit(l, ks)
    for b in range(5):
        emit(f'buffer_load_dwordx2 v[{196+2*b}:{197+2*b}], v10, s[64:67], s{76+b} offen {SC}', -1)
    np_ = 3
    for ks in range(7):
        P = PSET[ks % 4]
        last = max(i for i, t in enumerate(issued) if t == ks)
        k(f's_waitcnt vmcnt({len(issued) - 1 - last})')
        todo = []
        if np_ <= min(ks + 3, 6):
            todo = [(np_, l) for l in ploads(np_)]
            np_ += 1
        m = cnt = 0
        for c in range(4):
            for b in range(5):
                a = 4 * (5 * c + b)
                w = WOB + 20 * ks + 4 * b
                cc = '0' if ks == 0 else f'a[{a}:{a+3}]'
                k(f'v_mfma_f32_16x16x32_bf16 a[{a}:{a+3}], a[{w}:{w+3}], v[{P+4*c}:{P+4*c+3}], {cc}')
                m += 1
                if m % 2 == 0 and cnt < len(todo):
                    t, l = todo[cnt]
                    k(l)
                    issued.append(t)
                    cnt += 1
    k.stamp(13)
    k('s_barrier')
    for w in range(4):
        k(f'''
        s_cmp_eq_u32 s4, {w}
        s_cbranch_scc0 kgC_red_{w}''')
        for c in range(4):
            if c == w:
                continue
            src = (w - c - 1) % 4
            for b in range(5):
                a = 4 * (5 * c + b)
                k(f'ds_write_b128 v12, a[{a}:{a+3}] offset:{(c*3+src)*5120+1024*b}')
        for n in range(20):
            k(f'v_accvgpr_read_b32 v{16+n}, a{20*w+n}')
        k(f'kgC_red_{w}:')
    k(f'''
    s_mul_i32 s14, s4, {3*5120}
    v_add_u32 v11, s14, v12
    s_waitcnt lgkmcnt(0)
    s_barrier
    ''')
    for b in range(5):
        for s in range(3):
            r = 48 + 12 * b + 4 * s
            k(f'ds_read_b128 v[{r}:{r+3}], v11 offset:{s*5120+1024*b}')
    for b in range(5):
        k(f's_waitcnt lgkmcnt({12-3*b})')
        o = 16 + 4 * b
        r = 48 + 12 * b
        for p in range(2):
            k(f'''
            v_pk_add_f32 v[{o+2*p}:{o+2*p+1}], v[{o+2*p}:{o+2*p+1}], v[{r+2*p}:{r+2*p+1}]
            v_pk_add_f32 v[{r+4+2*p}:{r+4+2*p+1}], v[{r+4+2*p}:{r+4+2*p+1}], v[{r+8+2*p}:{r+8+2*p+1}]
            v_lshlrev_b32 v{r}, 16, v{196+2*b+p}
            v_and_b32 v{r+1}, 0xffff0000, v{196+2*b+p}
            v_pk_add_f32 v[{o+2*p}:{o+2*p+1}], v[{o+2*p}:{o+2*p+1}], v[{r+4+2*p}:{r+4+2*p+1}]
            v_pk_fma_f32 v[{o+2*p}:{o+2*p+1}], v[{o+2*p}:{o+2*p+1}], v[{228+4*b+2*p}:{229+4*b+2*p}], v[{r}:{r+1}]
            v_cvt_pk_bf16_f32 v{196+2*b+p}, v{o+2*p}, v{o+2*p+1}
            ''')
        k(f'buffer_store_dwordx2 v[{196+2*b}:{197+2*b}], v4, s[72:75], s{88+b} offen')
    k.stamp(14)


def make_kg():
    k = Kern('gemm_kernel', 256, 256, KG_LDS)
    k('''
    s_cmp_ge_u32 s2, 256
    s_cbranch_scc1 kg_exit
    ''')
    k.stamp(0)
    load_ptrs(k)
    k(f'''
    s_and_b32 s3, s2, 7              ; xcd
    s_lshr_b32 s5, s2, 3             ; kx
    s_lshr_b32 s6, s3, 1             ; xh
    s_and_b32 s7, s3, 1              ; xl
    s_lshl_b32 s54, s6, 2
    s_and_b32 s8, s5, 3
    s_add_u32 s54, s54, s8
    s_lshl_b32 s55, s7, 3
    s_lshr_b32 s8, s5, 2
    s_add_u32 s55, s55, s8
    s_lshl_b32 s98, s6, 3
    s_and_b32 s8, s5, 7
    s_add_u32 s98, s98, s8
    s_lshl_b32 s99, s7, 2
    s_lshr_b32 s8, s5, 3
    s_add_u32 s99, s99, s8
    v_and_b32 v1, 63, v0
    v_lshrrev_b32 v15, 6, v0
    v_lshlrev_b32 v12, 4, v1
    v_and_b32 v13, 15, v1
    v_lshrrev_b32 v14, 4, v1
    v_readfirstlane_b32 s4, v15
    s_waitcnt lgkmcnt(0)
    ''')
    phase_a(k)
    phase_b(k)
    phase_c(k)
    if os.environ.get('STAMP'):
        k('s_waitcnt vmcnt(0)')
    k.stamp(15)
    k.stamp_flush(2)
    k('kg_exit:\ns_endpgm')
    return k
```

```python
import sys
sys.path.insert(0, 'dev')
from asmlib import assemble_file
import gen_k1
NAME = 'adaLN_cond__ssm_conv_s4__mixer_gmlp__prompt'
def header():
    ref = open('cdna_kernels/%s.s.ref' % NAME).read().split('\n')
    h = []
    for l in ref:
        if l.startswith('; Override launch'):
            break
        h.append(l)
    return '\n'.join(h) + '\n'
def build(out, which=None):
    import gen_k2, gen_kg
    ks = [gen_k1.make_k1(), gen_k2.make_k2(), gen_kg.make_kg()]
    if which: ks = ks[:which]
    txt = assemble_file(ks, header())
    open(out, 'w').write(txt)
    for k in ks:
        print(k.name, 'vgpr/agpr/sgpr/ninst', k.stats, 'grid', k.grid, 'lds', k.lds)
if __name__ == '__main__':
    out = sys.argv[1] if len(sys.argv) > 1 else 'cdna_kernels/%s.s' % NAME
    build(out, int(sys.argv[2]) if len(sys.argv) > 2 else None)
```

```python
import re

REG_RE = re.compile(r'\b([vas])(\d+)\b|\b([vas])\[(\d+):(\d+)\]|\b(vcc|exec|m0|scc)\b')

TRANS = ('v_exp_f32', 'v_log_f32', 'v_rcp_f32', 'v_rsq_f32', 'v_sqrt_f32', 'v_sin_f32', 'v_cos_f32',
         'v_rcp_iflag_f32', 'v_exp_f16', 'v_log_f16', 'v_rcp_f16', 'v_rsq_f16', 'v_sqrt_f16')


def regs_of(tok):
    out = []
    for m in REG_RE.finditer(tok):
        if m.group(1):
            out.append((m.group(1), int(m.group(2))))
        elif m.group(3):
            for i in range(int(m.group(4)), int(m.group(5)) + 1):
                out.append((m.group(3), i))
        else:
            n = m.group(6)
            if n == 'vcc':
                out += [('vcc', 0)]
            elif n == 'exec':
                out += [('exec', 0)]
            else:
                out += [(n, 0)]
    return out


def split_ops(s):
    ops, depth, cur = [], 0, ''
    for ch in s:
        if ch == '[':
            depth += 1
        elif ch == ']':
            depth -= 1
        if ch == ',' and depth == 0:
            ops.append(cur.strip())
            cur = ''
        else:
            cur += ch
    if cur.strip():
        ops.append(cur.strip())
    return ops


class Inst:
    __slots__ = ('text', 'mn', 'reads', 'writes', 'kind', 'passes', 'srcc', 'srcab', 'dpp', 'is_label', 'label',
                 'target', 'nops', 'sdata', 'opsel', 'lanesel', 'cond')

    def __init__(self, text):
        self.text = text
        t = text.split(';')[0].strip()
        self.is_label = t.endswith(':')
        self.label = t[:-1] if self.is_label else None
        self.reads, self.writes = [], []
        self.kind = 'other'
        self.passes = 0
        self.srcc, self.srcab, self.sdata, self.lanesel = [], [], [], []
        self.dpp = False
        self.opsel = False
        self.target = None
        self.cond = False
        self.nops = 1
        self.mn = ''
        if self.is_label or not t or t.startswith('.'):
            self.kind = 'none'
            self.nops = 0
            return
        parts = t.split(None, 1)
        mn = parts[0]
        self.mn = mn
        rest = parts[1] if len(parts) > 1 else ''
        ops = split_ops(rest)
        R = lambda i: regs_of(ops[i]) if i < len(ops) else []
        allr = lambda a: [r for o in ops[a:] for r in regs_of(o.split(' ')[0] if False else o)]
        if mn == 's_nop':
            self.kind = 'nop'
            self.nops = int(ops[0], 0) + 1
        elif mn in ('s_branch',) or mn.startswith('s_cbranch'):
            self.kind = 'branch'
            self.target = ops[0]
            self.cond = mn != 's_branch'
            if 'vcc' in mn:
                self.reads = [('vcc', 0)]
        elif mn == 's_endpgm':
            self.kind = 'end'
        elif mn.startswith('v_mfma'):
            self.kind = 'mfma'
            self.writes = R(0)
            self.srcab = R(1) + R(2)
            self.srcc = regs_of(ops[3].split(' ')[0])
            self.reads = self.srcab + self.srcc
            if '16x16x32' in mn or '16x16x16' in mn:
                self.passes = 4
            elif '32x32x16' in mn or '32x32x8' in mn:
                self.passes = 8
            else:
                raise ValueError('unknown mfma ' + mn)
        elif mn.startswith('v_'):
            self.kind = 'valu'
            if mn.replace('_e32', '').replace('_e64', '') in TRANS:
                self.kind = 'trans'
            self.dpp = '_dpp' in mn or 'row_' in rest or 'quad_perm' in rest or 'wave_' in rest
            self.opsel = '_sdwa' in mn or ('op_sel' in rest and not mn.startswith('v_pk_'))
            if mn.startswith('v_cmp'):
                self.writes = R(0)
                self.reads = allr(1)
                if mn.startswith('v_cmpx'):
                    raise ValueError('v_cmpx not supported by hazard pass')
            elif mn.startswith('v_readfirstlane') or mn.startswith('v_readlane'):
                self.kind = 'readlane'
                self.writes = R(0)
                self.reads = allr(1)
                self.lanesel = R(2)
            elif mn.startswith('v_writelane'):
                self.writes = R(0)
                self.reads = allr(1) + R(0)
                self.lanesel = R(2)
            elif mn.startswith('v_permlane') or mn.startswith('v_swap'):
                self.kind = 'permlane'
                self.writes = R(0) + R(1)
                self.reads = R(0) + R(1)
            elif re.match(r'v_(add|sub|subrev)_co_u32|v_(addc|subb|subbrev)_co_u32|v_mad_u64_u32|v_div_scale', mn):
                self.writes = R(0) + R(1)
                self.reads = allr(2)
            else:
                self.writes = R(0)
                self.reads = allr(1)
                if re.match(r'v_(fmac|pk_fmac|dot2c|mac|fmamk|dot4c)', mn) or self.dpp or '_sdwa' in mn:
                    self.reads = self.reads + R(0)
        elif mn.startswith('buffer_') or mn.startswith('global_') or mn.startswith('flat_'):
            self.kind = 'vmem'
            isl = ' lds' in (' ' + rest) or 'load_lds' in mn
            if mn in ('buffer_inv', 'buffer_wbl2'):
                pass
            elif 'load' in mn and not isl:
                self.writes = R(0)
                self.reads = allr(1)
                if 'd16' in mn:
                    self.reads = self.reads + R(0)
            elif isl:
                self.reads = allr(0) + [('m0', 0)]
                self.kind = 'ldsdma'
            elif 'store' in mn:
                self.reads = allr(0)
                d = R(0) if mn.startswith('buffer_') else R(1)
                if 'x3' in mn or 'x4' in mn:
                    self.sdata = d
            elif 'atomic' in mn:
                self.reads = allr(0)
                if 'sc0' in rest:
                    self.writes = R(0)
            else:
                raise ValueError('unknown vmem ' + text)
        elif mn.startswith('ds_'):
            self.kind = 'ds'
            if mn.startswith('ds_read') or mn.startswith('ds_bpermute') or mn.startswith('ds_permute') or mn.startswith('ds_swizzle'):
                self.writes = R(0)
                self.reads = allr(1)
                if 'd16' in mn:
                    self.reads = self.reads + R(0)
            else:
                self.reads = allr(0)
        elif mn.startswith('s_'):
            self.kind = 'salu'
            if mn.startswith('s_cmp') or mn in ('s_waitcnt', 's_barrier', 's_sleep', 's_setprio', 's_bitcmp0_b32', 's_bitcmp1_b32'):
                self.reads = allr(0)
            elif mn.startswith('s_load') or mn.startswith('s_buffer_load') or mn.startswith('s_memtime') or mn.startswith('s_memrealtime'):
                self.kind = 'smem'
                self.writes = R(0)
                self.reads = allr(1)
            elif 'saveexec' in mn:
                self.writes = R(0) + [('exec', 0)]
                self.reads = allr(1) + [('exec', 0)]
            else:
                self.writes = R(0)
                self.reads = allr(1)
        else:
            raise ValueError('unknown instr: ' + text)


BIG = 64


def required_gap(hist, ins):
    need = 0

    def chk(key, req):
        nonlocal need
        a = hist.get(key)
        if a is not None and a < req:
            need = max(need, req - a)

    k = ins.kind
    isvalu = k in ('valu', 'trans', 'readlane', 'permlane')
    vr = [r for r in ins.reads if r[0] in 'va']
    vw = [r for r in ins.writes if r[0] in 'va']
    sr = [r for r in ins.reads if r[0] in ('s', 'vcc')]
    if k == 'mfma':
        for r in ins.reads:
            chk(('valu_w', r), 2)
        for r in ins.srcab:
            chk(('mfma4_w', r), 8)
            chk(('mfma8_w', r), 12)
        sig = (ins.passes, tuple(ins.srcc))
        for r in ins.srcc:
            for p, req in ((4, 6), (8, 10)):
                a = hist.get(('mfma%d_w' % p, r))
                if a is not None and a < req:
                    if hist.get(('mfma_sig', r)) == sig and a is not None:
                        continue
                    need = max(need, req - a)
        chk(('valu_exec', 0), 4)
    if isvalu or k in ('vmem', 'ds', 'ldsdma'):
        for r in vr:
            chk(('mfma4_w', r), 8)
            chk(('mfma8_w', r), 12)
        for r in vw:
            chk(('mfma4_w', r), 8)
            chk(('mfma8_w', r), 12)
    if isvalu:
        for r in vw:
            chk(('mfma4_c', r), 3)
            chk(('mfma8_c', r), 7)
            chk(('store_d', r), 2)
        if k != 'trans':
            for r in vr:
                chk(('trans_w', r), 1)
        for r in vr + vw:
            chk(('opsel_w', r), 1)
        for r in sr:
            chk(('valu_sw', r), 2)
        for r in ins.lanesel:
            chk(('valu_sw', r), 4)
        if ins.dpp:
            for r in vr:
                chk(('valu_w', r), 2)
        if k == 'permlane':
            for r in vr:
                chk(('valu_w', r), 2)
        if k == 'readlane':
            for r in vr:
                chk(('valu_w', r), 1)
    if k in ('vmem', 'ds', 'ldsdma'):
        for r in vw:
            chk(('store_d', r), 1)
    if k in ('vmem', 'ldsdma'):
        for r in sr:
            chk(('valu_sw', r), 5)
    if k == 'ldsdma':
        chk(('salu_m0', 0), 1)
    if k in ('salu', 'smem', 'branch'):
        for r in sr:
            chk(('valu_sw', r), 1)
    return need


def step(hist, ins):
    n = ins.nops
    h = {}
    for key, a in hist.items():
        if key[0] == 'mfma_sig':
            h[key] = a
            continue
        a2 = a + n
        if a2 < 24:
            h[key] = a2
    k = ins.kind
    isvalu = k in ('valu', 'trans', 'readlane', 'permlane')
    if isvalu:
        for r in ins.writes:
            if r[0] in 'va':
                h[('valu_w', r)] = 0
                h.pop(('mfma_sig', r), None)
                if k == 'trans':
                    h[('trans_w', r)] = 0
                if ins.opsel:
                    h[('opsel_w', r)] = 0
            elif r[0] in ('s', 'vcc'):
                h[('valu_sw', r)] = 0
            elif r[0] == 'exec':
                h[('valu_exec', 0)] = 0
    if k == 'mfma':
        sig = (ins.passes, tuple(ins.writes))
        for r in ins.writes:
            h[('mfma%d_w' % ins.passes, r)] = 0
            h[('mfma_sig', r)] = sig
        for r in ins.srcc:
            h[('mfma%d_c' % ins.passes, r)] = 0
    if ins.sdata:
        for r in ins.sdata:
            h[('store_d', r)] = 0
    if k == 'salu':
        for r in ins.writes:
            if r[0] == 'm0':
                h[('salu_m0', 0)] = 0
            h.pop(('valu_sw', r), None)
    for key in [x for x in h if x[0] == 'mfma_sig']:
        r = key[1]
        if ('mfma4_w', r) not in h and ('mfma8_w', r) not in h:
            del h[key]
    return h


def merge(h1, h2):
    if h1 is None:
        return dict(h2), True
    changed = False
    out = dict(h1)
    for k, v in h2.items():
        if k[0] == 'mfma_sig':
            if k in out and out[k] != v:
                out[k] = None
                changed = True
            elif k not in out:
                out[k] = v
                changed = True
            continue
        if k not in out or v < out[k]:
            out[k] = v
            changed = True
    return out, changed


def fix_hazards(lines):
    insts = [Inst(l) for l in lines]
    for _ in range(50):
        labels = {i.label: n for n, i in enumerate(insts) if i.is_label}
        state = [None] * (len(insts) + 1)
        state[0] = {}
        work = [0]
        while work:
            n = work.pop()
            h = state[n]
            while n < len(insts):
                ins = insts[n]
                if ins.kind == 'end':
                    break
                need = required_gap(h, ins) if ins.kind != 'none' else 0
                hh = h
                if need:
                    hh = {k: (v if k[0] == 'mfma_sig' else v + need) for k, v in h.items()}
                h2 = step(hh, ins) if ins.kind != 'none' else hh
                if ins.kind == 'branch':
                    t = labels[ins.target]
                    m, ch = merge(state[t], h2)
                    if ch:
                        state[t] = m
                        work.append(t)
                    if not ins.cond:
                        break
                nxt = n + 1
                if nxt < len(insts) and insts[nxt].is_label:
                    m, ch = merge(state[nxt], h2)
                    if ch:
                        state[nxt] = m
                        work.append(nxt)
                    break
                state[nxt] = h2
                h = h2
                n = nxt
        out, changed = [], False
        for n, ins in enumerate(insts):
            if ins.kind not in ('none',) and state[n] is not None:
                need = required_gap(state[n], ins)
                while need > 0:
                    k = min(need, 16)
                    out.append(Inst('    s_nop %d' % (k - 1)))
                    need -= k
                    changed = True
            out.append(ins)
        insts = out
        if not changed:
            break
    return [i.text for i in insts]


def code_touch(k, target, nbytes, tag, extra=None):
    k(f'''
    s_getpc_b64 s[4:5]
{tag}_here:
    s_add_u32 s4, s4, {target}-{tag}_here
    s_addc_u32 s5, s5, 0
    v_lshlrev_b32 v1, 4, v0
    ''')
    n = nbytes // 4096
    for j in range(n):
        k(f'''global_load_dwordx4 v[{4+4*(j%8)}:{7+4*(j%8)}], v1, s[4:5]
        s_add_u32 s4, s4, 4096
        s_addc_u32 s5, s5, 0''')
    if extra:
        extra(k)
    k('s_waitcnt vmcnt(0)\ns_endpgm')


class Kern:
    def __init__(self, name, grid, block, lds, vgpr=256, agpr=0, sgpr=96):
        self.name, self.grid, self.block, self.lds = name, grid, block, lds
        self.vgpr, self.agpr, self.sgpr = vgpr, agpr, sgpr
        self.L = []
        self._lab = 0
        self.stamp_v = 252
        self.stamp_s = None
        import os
        self.store_flag = os.environ.get('STORE_FLAG', '')

    def __call__(self, s):
        for line in s.strip('\n').split('\n'):
            t = line.strip()
            if not t or t.startswith(';'):
                continue
            if t.startswith('buffer_store') and self.store_flag and 'sc1' not in t:
                t = t.split(';')[0].rstrip() + ' ' + self.store_flag
            if t.endswith(':'):
                self.L.append(t)
            else:
                self.L.append('    ' + t)

    def stamp(self, idx, vreg=None):
        import os
        if not os.environ.get('STAMP'):
            return
        if self.stamp_s is not None:
            self(f'''
            s_memtime s[100:101]
            s_waitcnt lgkmcnt(0)
            s_mov_b32 s{self.stamp_s+idx}, s100''')
            return
        v = vreg if vreg is not None else self.stamp_v
        self(f'''
        s_memtime s[100:101]
        s_waitcnt lgkmcnt(0)
        v_writelane_b32 v{v}, s100, {idx}''')

    def stamp_flush(self, kidx, ws_ptr=52, vreg=None):
        import os
        if not os.environ.get('STAMP'):
            return
        from layout import WS
        v = vreg if vreg is not None else self.stamp_v
        off, size = WS['DBG']
        if self.stamp_s is not None:
            self('s_mov_b64 exec, -1')
            for i in range(6):
                self(f'v_writelane_b32 v{v}, s{self.stamp_s+i}, {i}')
        self(f'''
        s_add_u32 s96, s{ws_ptr}, {off}
        s_addc_u32 s97, s{ws_ptr+1}, 0
        s_mov_b32 s98, {size}
        s_mov_b32 s99, 0x00020000
        v_lshrrev_b32 v{v-1}, 6, v0
        v_lshlrev_b32 v{v-1}, 6, v{v-1}
        v_and_b32 v{v-2}, 63, v0
        v_lshl_add_u32 v{v-1}, v{v-2}, 2, v{v-1}
        s_lshl_b32 s100, s2, 8
        s_add_u32 s100, s100, {kidx*1100*256}
        v_cmp_gt_u32 vcc, 16, v{v-2}
        s_and_saveexec_b64 s[94:95], vcc
        buffer_store_dword v{v}, v{v-1}, s[96:99], s100 offen
        s_mov_b64 exec, s[94:95]''')

    def label(self, base):
        self._lab += 1
        return '%s_%s_%d' % (self.name[:8], base, self._lab)

    def body(self):
        return fix_hazards(self.L)

    def text(self):
        body = self.body()
        maxv = maxa = maxs = -1
        for l in body:
            t = l.split(';')[0]
            for r in regs_of(t):
                if r[0] == 'v':
                    maxv = max(maxv, r[1])
                elif r[0] == 'a':
                    maxa = max(maxa, r[1])
                elif r[0] == 's':
                    maxs = max(maxs, r[1])
        acc_off = max(4, (maxv + 1 + 3) // 4 * 4)
        nfv = acc_off + (maxa + 1) if maxa >= 0 else maxv + 1
        assert maxv < 256 and maxa < 256 and maxs < 102, (maxv, maxa, maxs)
        self.stats = (maxv + 1, maxa + 1, maxs + 1, len(body))
        s = '.globl %s\n.p2align 8\n.type %s,@function\n%s:\n' % (self.name, self.name, self.name)
        s += '\n'.join(body) + '\n' + self.name + '_end:\n'
        kd = '''.amdhsa_kernel %s
  .amdhsa_next_free_vgpr %d
  .amdhsa_next_free_sgpr %d
  .amdhsa_accum_offset %d
  .amdhsa_group_segment_fixed_size 0
  .amdhsa_kernarg_size 152
  .amdhsa_user_sgpr_count 2
  .amdhsa_user_sgpr_kernarg_segment_ptr 1
  .amdhsa_system_sgpr_workgroup_id_x 1
  .amdhsa_float_denorm_mode_32 3
.end_amdhsa_kernel
''' % (self.name, nfv, max(maxs + 1, 16), acc_off)
        return s, kd


def assemble_file(kerns, header):
    out = header
    for k in kerns:
        out += '; @launch kernel=%s grid=(%d,1,1) block=(%d,1,1) lds=%d\n' % (k.name, k.grid, k.block, k.lds)
    out += '.amdgcn_target "amdgcn-amd-amdhsa--gfx950"\n.text\n'
    kds = []
    for k in kerns:
        s, kd = k.text()
        out += s
        kds.append(kd)
    out += '.section .rodata,"a"\n'
    for kd in kds:
        out += '.p2align 6\n' + kd
    return out
```

```python
from asmlib import Kern, code_touch
from layout import WS, KR_STRIDE, XS, LBS
import struct


def f32(x):
    return '0x%08x' % struct.unpack('<I', struct.pack('<f', x))[0]


PTR = {n: 16 + 2 * i for i, n in enumerate(
    ['u', 'Are', 'Aim', 'Bre', 'Bim', 'Cre', 'Cim', 'logdt', 'Dskip', 'Bx', 'win', 'wsp', 'bsp', 'wout', 'c', 'wmod',
     'out', 'dbg', 'ws'])}

LOG2E = 1.4426950408889634
INV2PI = 0.15915494309189535


def load_ptrs(k):
    k('''
    s_load_dwordx16 s[16:31], s[0:1], 0
    s_load_dwordx16 s[32:47], s[0:1], 64
    s_load_dwordx4 s[48:51], s[0:1], 128
    s_load_dwordx2 s[52:53], s[0:1], 144
    ''')


def srd(k, d, ptr, size, off=0):
    p = PTR[ptr]
    if off:
        k(f'''
        s_add_u32 s{d}, s{p}, {off}
        s_addc_u32 s{d+1}, s{p+1}, 0''')
    else:
        k(f'''
        s_mov_b32 s{d}, s{p}
        s_mov_b32 s{d+1}, s{p+1}''')
    k(f'''
    s_mov_b32 s{d+2}, {size}
    s_mov_b32 s{d+3}, 0x00020000''')


def srd_ws(k, d, name):
    off, size = WS[name]
    srd(k, d, 'ws', size, off)


def dpp_sum16(k, v):
    for n in (8, 4, 2, 1):
        k(f'v_add_f32_dpp v{v}, v{v}, v{v} row_ror:{n} row_mask:0xf bank_mask:0xf')


N_LN1, N_MOD, N_WOF, N_KG = 128, 240, 54, 640
B_LN1 = N_KG
B_MOD = B_LN1 + N_LN1
B_WOF = B_MOD + N_MOD
K1_LDS = 32768


def role_ln1(k):
    RS = 1344
    srd(k, 56, 'u', 2048 * 1280)
    srd_ws(k, 60, 'XT')
    srd_ws(k, 64, 'XNT')
    k(f'''
    v_and_b32 v1, 15, v0
    v_lshrrev_b32 v2, 4, v0
    s_sub_u32 s9, s2, {B_LN1}
    s_mul_i32 s3, s9, {16*1280}
    v_mul_u32_u24 v3, 1280, v2
    v_lshl_add_u32 v3, v1, 4, v3
    ''')
    for i in range(5):
        k(f'buffer_load_dwordx4 v[{8+4*i}:{11+4*i}], v3, s[56:59], s3 offen offset:{256*i}')
    k(f'''
    v_mul_u32_u24 v4, {RS}, v2
    v_lshl_add_u32 v4, v1, 4, v4
    v_and_b32 v88, 63, v0            ; lane
    v_lshrrev_b32 v89, 6, v0         ; wave
    v_lshrrev_b32 v90, 4, v88        ; g
    v_bfe_u32 v91, v88, 2, 2         ; rr
    v_and_b32 v92, 3, v88            ; c
    v_lshrrev_b32 v93, 1, v90        ; g>>1
    v_and_b32 v94, 1, v90            ; g&1
    v_lshl_add_u32 v5, v93, 3, v91
    v_mul_u32_u24 v5, {RS}, v5
    v_lshl_add_u32 v5, v94, 5, v5
    v_lshl_add_u32 v5, v92, 3, v5
    v_lshl_add_u32 v5, v89, 6, v5
    v_and_b32 v6, 15, v88            ; i
    v_lshl_add_u32 v6, v94, 4, v6
    v_lshl_add_u32 v6, v89, 5, v6    ; d_local = 32w + 16(g&1) + i
    v_lshlrev_b32 v6, 5, v6
    v_lshl_add_u32 v6, v93, 4, v6
    s_mul_i32 s4, s9, {LBS}
    ''')
    for it in range(1, 5):
        k(f's_add_u32 s{4+it}, s4, {128*32*it}')
    for i in range(5):
        k(f'''s_waitcnt vmcnt({4-i})
        ds_write_b128 v4, v[{8+4*i}:{11+4*i}] offset:{256*i}''')
    k('''
    s_waitcnt lgkmcnt(0)
    s_barrier
    ''')

    def transpose(srdn, base):
        for it in range(5):
            k(f'''
            ds_read_b64_tr_b16 v[{base+4*it}:{base+4*it+1}], v5 offset:{256*it}
            ds_read_b64_tr_b16 v[{base+4*it+2}:{base+4*it+3}], v5 offset:{256*it+4*RS}''')
        for it in range(5):
            k(f'''
            s_waitcnt lgkmcnt({8-2*it})
            buffer_store_dwordx4 v[{base+4*it}:{base+4*it+3}], v6, s[{srdn}:{srdn+3}], s{4+it} offen''')

    k.stamp(1)
    transpose(60, 68)
    k.stamp(2)
    for j in range(20):
        k(f'''
        v_lshlrev_b32 v{28+2*j}, 16, v{8+j}
        v_and_b32 v{29+2*j}, 0xffff0000, v{8+j}''')
    k('v_pk_add_f32 v[8:9], v[28:29], v[30:31]')
    k('v_pk_add_f32 v[10:11], v[32:33], v[34:35]')
    for j in range(4, 20):
        a = 8 + 2 * (j & 1)
        k(f'v_pk_add_f32 v[{a}:{a+1}], v[{a}:{a+1}], v[{28+2*j}:{29+2*j}]')
    k('''
    v_pk_add_f32 v[8:9], v[8:9], v[10:11]
    v_add_f32 v8, v8, v9''')
    dpp_sum16(k, 8)
    k(f'''
    v_mul_f32 v10, {f32(-1.0/640)}, v8
    v_mov_b32 v11, v10''')
    for j in range(20):
        k(f'v_pk_add_f32 v[{28+2*j}:{29+2*j}], v[{28+2*j}:{29+2*j}], v[10:11]')
    k('v_pk_mul_f32 v[8:9], v[28:29], v[28:29]')
    k('v_pk_mul_f32 v[12:13], v[30:31], v[30:31]')
    for j in range(2, 20):
        a = 8 + 4 * (j & 1)
        k(f'v_pk_fma_f32 v[{a}:{a+1}], v[{28+2*j}:{29+2*j}], v[{28+2*j}:{29+2*j}], v[{a}:{a+1}]')
    k('''
    v_pk_add_f32 v[8:9], v[8:9], v[12:13]
    v_add_f32 v8, v8, v9''')
    dpp_sum16(k, 8)
    k(f'''
    v_mov_b32 v9, {f32(1e-5)}
    v_fmac_f32 v9, {f32(1.0/640)}, v8
    v_rsq_f32 v10, v9
    s_nop 0
    v_mov_b32 v11, v10''')
    for j in range(20):
        k(f'v_pk_mul_f32 v[{28+2*j}:{29+2*j}], v[{28+2*j}:{29+2*j}], v[10:11]')
    for j in range(20):
        k(f'v_cvt_pk_bf16_f32 v{8+j}, v{28+2*j}, v{29+2*j}')
    k('s_barrier')
    for i in range(5):
        k(f'ds_write_b128 v4, v[{8+4*i}:{11+4*i}] offset:{256*i}')
    k('''
    s_waitcnt lgkmcnt(0)
    s_barrier
    ''')
    k.stamp(3)
    transpose(64, 28)
    k.stamp(4)
    k('s_waitcnt vmcnt(0)')
    k.stamp(5)
    k.stamp_flush(0)
    k('s_endpgm')


def role_mod(k):
    srd(k, 56, 'wmod', 640 * 7680)
    srd(k, 60, 'c', 1280)
    srd_ws(k, 64, 'MODP')
    k(f'''
    s_sub_u32 s3, s2, {B_MOD}
    s_mul_i32 s4, s3, 1093
    s_lshr_b32 s4, s4, 16            ; ks
    s_mul_i32 s5, s4, 60
    s_sub_u32 s5, s3, s5             ; cb
    v_and_b32 v1, 7, v0
    v_lshrrev_b32 v2, 3, v0          ; rg
    v_mul_u32_u24 v3, 7680, v2
    v_lshl_add_u32 v3, v1, 4, v3
    s_mul_i32 s6, s4, {160*7680}
    s_lshl_b32 s7, s5, 7
    s_add_u32 s6, s6, s7
    v_lshlrev_b32 v4, 1, v2
    s_mul_i32 s12, s4, 320
    ''')
    for i in range(1, 5):
        k(f's_add_u32 s{6+i}, s6, {32*7680*i}')
    for i in range(5):
        k(f'buffer_load_ushort v{28+i}, v4, s[60:63], s12 offen offset:{64*i}')
    for i in range(5):
        k(f'buffer_load_dwordx4 v[{8+4*i}:{11+4*i}], v3, s[56:59], s{6+i} offen')
    k('s_waitcnt vmcnt(5)')
    k.stamp(1)
    for i in range(5):
        c = 28 + i
        k(f'''
        v_lshlrev_b32 v{c}, 16, v{c}
        v_mul_f32 v5, {f32(-LOG2E)}, v{c}
        v_exp_f32 v5, v5
        s_nop 0
        v_add_f32 v5, 1.0, v5
        v_rcp_f32 v5, v5
        s_nop 0
        v_mul_f32 v5, v{c}, v5
        v_cvt_pk_bf16_f32 v5, v5, v5
        v_lshlrev_b32 v{34+2*i}, 16, v5
        v_lshlrev_b32 v{35+2*i}, 16, v5
        ''')
    for i in range(5):
        k(f's_waitcnt vmcnt({4-i})')
        for j in range(4):
            r = 8 + 4 * i + j
            k(f'''
            v_lshlrev_b32 v52, 16, v{r}
            v_and_b32 v53, 0xffff0000, v{r}''')
            if i == 0:
                k(f'v_pk_mul_f32 v[{44+2*j}:{45+2*j}], v[52:53], v[34:35]')
            else:
                k(f'v_pk_fma_f32 v[{44+2*j}:{45+2*j}], v[52:53], v[{34+2*i}:{35+2*i}], v[{44+2*j}:{45+2*j}]')
    k.stamp(2)
    for j in range(8):
        k(f'v_add_f32_dpp v{44+j}, v{44+j}, v{44+j} row_ror:8 row_mask:0xf bank_mask:0xf')
    k(f'''
    v_lshrrev_b32 v5, 4, v0
    v_lshlrev_b32 v5, 8, v5
    v_lshl_add_u32 v5, v1, 5, v5
    ds_write_b128 v5, v[44:47]
    ds_write_b128 v5, v[48:51] offset:16
    s_waitcnt lgkmcnt(0)
    s_barrier
    v_cmp_gt_u32 vcc, 64, v0
    s_and_saveexec_b64 s[14:15], vcc
    s_cbranch_execz k1_mod_end
    v_lshlrev_b32 v6, 2, v0
    ''')
    for i in range(16):
        k(f'ds_read_b32 v{8+i}, v6 offset:{256*i}')
    k('s_waitcnt lgkmcnt(0)')
    for s in (8, 4, 2, 1):
        for i in range(s):
            k(f'v_add_f32 v{8+i}, v{8+i}, v{8+i+s}')
    k(f'''
    s_mul_i32 s6, s4, {3840*4}
    s_lshl_b32 s7, s5, 8
    s_add_u32 s6, s6, s7
    buffer_store_dword v8, v6, s[64:67], s6 offen
k1_mod_end:
    ''')
    k.stamp(4)
    k('s_waitcnt vmcnt(0)')
    k.stamp(5)
    k.stamp_flush(0)
    k('s_endpgm')


def role_wof(k):
    RS = 704
    srd(k, 56, 'wout', 864 * 1280)
    srd_ws(k, 60, 'WOF')
    k(f'''
    s_sub_u32 s3, s2, {B_WOF}
    s_lshr_b32 s4, s3, 1             ; beta
    s_and_b32 s5, s3, 1              ; half
    v_and_b32 v1, 7, v0
    v_lshrrev_b32 v2, 3, v0          ; row 0..31
    v_mul_u32_u24 v3, 1280, v2
    v_lshl_add_u32 v3, v1, 4, v3
    s_mul_i32 s6, s4, {32*1280}
    s_mul_i32 s7, s5, 640
    s_add_u32 s6, s6, s7
    ''')
    for i in range(5):
        k(f'buffer_load_dwordx4 v[{8+4*i}:{11+4*i}], v3, s[56:59], s6 offen offset:{128*i}')
    k(f'''
    v_mul_u32_u24 v4, {RS}, v2
    v_lshl_add_u32 v4, v1, 4, v4
    v_and_b32 v40, 63, v0            ; lane
    v_lshrrev_b32 v41, 6, v0         ; wave
    v_lshrrev_b32 v42, 4, v40        ; kq
    v_bfe_u32 v43, v40, 2, 2         ; rr
    v_and_b32 v44, 3, v40            ; c
    v_lshl_add_u32 v5, v42, 3, v43
    v_mul_u32_u24 v5, {RS}, v5
    v_lshl_add_u32 v5, v44, 4, v5    ; +16c
    v_lshlrev_b32 v6, 4, v40
    v_readfirstlane_b32 s8, v41
    ''')
    for i in range(5):
        k(f'''s_waitcnt vmcnt({4-i})
        ds_write_b128 v4, v[{8+4*i}:{11+4*i}] offset:{128*i}''')
    k(f'''
    s_mul_i32 s8, s8, 5              ; dl0
    s_mul_i32 s9, s4, 40
    s_mul_i32 s10, s5, 20
    s_add_u32 s9, s9, s10
    s_add_u32 s9, s9, s8
    s_lshl_b32 s9, s9, 10
    s_waitcnt lgkmcnt(0)
    s_barrier
    ''')
    for j in range(5):
        k(f'''
        s_add_u32 s10, s8, {j}
        s_lshr_b32 s11, s10, 1
        s_lshl_b32 s11, s11, 6
        s_and_b32 s10, s10, 1
        s_lshl_b32 s10, s10, 3
        s_add_u32 s10, s10, s11
        v_add_u32 v7, s10, v5
        ds_read_b64_tr_b16 v[{8+4*j}:{9+4*j}], v7
        ds_read_b64_tr_b16 v[{10+4*j}:{11+4*j}], v7 offset:{4*RS}
        ''')
    for j in range(5):
        k(f'''
        s_waitcnt lgkmcnt({8-2*j})
        buffer_store_dwordx4 v[{8+4*j}:{11+4*j}], v6, s[60:63], s9 offen offset:{1024*j if j < 4 else 0}''' if j < 4 else f'''
        s_waitcnt lgkmcnt(0)
        s_add_u32 s9, s9, 4096
        buffer_store_dwordx4 v[{8+4*j}:{11+4*j}], v6, s[60:63], s9 offen''')
    k('s_endpgm')


KG_RS = 544
KG_UL = 0
KG_VL = 41 * KG_RS
KG_T = KG_VL + 16 * KG_RS


def role_kgen(k):
    for n, (name) in enumerate(['Are', 'Aim', 'Bre', 'Bim', 'Cre', 'Cim']):
        srd(k, 56 + 4 * n, name, 640 * 256)
    srd(k, 80, 'logdt', 1280)
    srd_ws(k, 84, 'KR')
    k(f'''
    s_mov_b32 s3, s2   ; d
    v_and_b32 v1, 127, v0            ; n
    v_lshlrev_b32 v2, 1, v1
    s_lshl_b32 s4, s3, 8
    s_lshl_b32 s5, s3, 1
    v_mov_b32 v3, 0
    buffer_load_ushort v16, v3, s[80:83], s5 offen
    ''')
    for n in range(6):
        k(f'buffer_load_ushort v{10+n}, v2, s[{56+4*n}:{59+4*n}], s4 offen')
    k(f'''
    v_lshrrev_b32 v4, 6, v0
    v_lshlrev_b32 v5, 2, v1
    v_readfirstlane_b32 s6, v4
    s_waitcnt vmcnt(0)
    ''')
    k.stamp(1)
    for n in range(7):
        k(f'v_lshlrev_b32 v{10+n}, 16, v{10+n}')
    k(f'''
    v_mul_f32 v16, {f32(LOG2E)}, v16
    v_exp_f32 v16, v16
    s_nop 0
    v_cvt_pk_bf16_f32 v16, v16, v16
    v_lshlrev_b32 v16, 16, v16       ; dt
    v_mul_f32 v10, v16, v10
    v_mul_f32 v10, {f32(LOG2E)}, v10  ; a2
    v_mul_f32 v11, v16, v11
    v_mul_f32 v11, {f32(INV2PI)}, v11 ; w (rev/step)
    v_mul_f32 v12, v16, v12          ; dBr
    v_mul_f32 v13, v16, v13          ; dBi
    v_mul_f32 v18, v14, v12
    v_fma_f32 v18, -v15, v13, v18    ; Wr
    v_mul_f32 v19, v14, v13
    v_fma_f32 v19, v15, v12, v19     ; Wi
    v_mul_f32 v6, v18, v18
    v_fma_f32 v6, v19, v19, v6
    v_max_f32 v6, {f32(1e-36)}, v6
    v_log_f32 v6, v6
    s_nop 0
    v_mul_f32 v7, 0.25, v6
    v_exp_f32 v8, v7                 ; sv = |W|^(1/2)
    v_exp_f32 v7, -v7                ; 1/sv
    s_nop 0
    v_mul_f32 v18, v18, v7
    v_mul_f32 v19, v19, v7           ; W' = W/sv in v[18:19]
    '''.replace('0.25', f32(0.25)))

    def pw(dst, e):
        k(f'''
        v_mul_f32 v6, {f32(float(e))}, v10
        v_mul_f32 v7, {f32(float(e))}, v11
        v_exp_f32 v6, v6
        v_fract_f32 v7, v7
        v_cos_f32 v{dst}, v7
        v_sin_f32 v{dst+1}, v7
        s_nop 0
        v_mul_f32 v{dst}, v{dst}, v6
        v_mul_f32 v{dst+1}, v{dst+1}, v6
        ''')

    def cmul(d, x, y):
        k(f'''
        v_pk_mul_f32 v[{d}:{d+1}], v[{x}:{x+1}], v[{y}:{y+1}] op_sel:[0,0] op_sel_hi:[0,1]
        v_pk_fma_f32 v[{d}:{d+1}], v[{x}:{x+1}], v[{y}:{y+1}], v[{d}:{d+1}] op_sel:[1,1,0] op_sel_hi:[1,0,1] neg_lo:[0,1,0]
        ''')

    tmpc = [0]

    def outU(row, x):
        t = 60 + (tmpc[0] % 8)
        tmpc[0] += 1
        k(f'''
        v_cvt_pk_f16_f32 v{t}, v{x}, -v{x+1}
        ds_write_b32 v5, v{t} offset:{KG_UL + row*KG_RS}''')

    def outV(row, x):
        t = 60 + (tmpc[0] % 8)
        tmpc[0] += 1
        k(f'''
        v_cvt_pk_f16_f32 v{t}, v{x}, v{x+1}
        ds_write_b32 v5, v{t} offset:{KG_VL + row*KG_RS}''')

    k('''
    s_cmp_ge_u32 s6, 2
    s_cbranch_scc1 k1_kg_g1
    ''')
    pw(20, 1)
    pw(22, 128)
    pw(24, 256)
    pw(26, 8)
    k('v_mov_b32 v28, v18\nv_mov_b32 v29, v19')
    outU(0, 28)
    k('v_mov_b32 v48, v8\nv_mov_b32 v49, 0')
    outV(0, 48)
    for r in range(1, 8):
        cmul(28 + 2 * r, 28 + 2 * (r - 1), 20)
        outU(r, 28 + 2 * r)
        a, b = (48, 50) if r % 2 else (50, 48)
        cmul(b, a, 26)
        outV(r, b)
    for r in range(8):
        t = 44 + 2 * (r & 1)
        cmul(t, 28 + 2 * r, 22)
        outU(8 + r, t)
        if r % 2 == 0:
            cmul(52, t, 24)
            outU(20 + r // 2, 52)
            cmul(54, 28 + 2 * r, 24)
            outU(16 + r // 2, 54)
    k('s_branch k1_kg_join')
    k('k1_kg_g1:')
    pw(20, 4)
    pw(22, 128)
    pw(24, 1024)
    pw(26, 8)
    pw(28, 64)
    k('v_mul_f32 v48, v28, v8\nv_mul_f32 v49, v29, v8')
    outV(8, 48)
    cur = 18
    for a in range(8):
        if a > 0:
            nxt = 30 + 2 * (a & 1)
            cmul(nxt, cur, 22)
            cur = nxt
            va, vb = (48, 50) if a % 2 else (50, 48)
            cmul(vb, va, 26)
            outV(8 + a, vb)
        t = 36 + 2 * (a & 1)
        cmul(t, cur, 24)
        outU(32 + a, t)
        if a == 0:
            cmul(40, t, 24)
            outU(40, 40)
        if a >= 4:
            outU(24 + 2 * (a - 4), cur)
            cmul(42, cur, 20)
            outU(24 + 2 * (a - 4) + 1, 42)
    k('k1_kg_join:')
    k.stamp(2)
    k(f'''
    v_and_b32 v6, 63, v0             ; lane
    v_and_b32 v7, 15, v6             ; i
    v_lshrrev_b32 v9, 4, v6          ; q
    v_mul_u32_u24 v10, {KG_RS}, v7
    v_lshl_add_u32 v10, v9, 4, v10   ; i*RS + 16q
    s_mul_i32 s7, s6, {16*KG_RS}
    v_add_u32 v11, s7, v10           ; A addr
    s_waitcnt lgkmcnt(0)
    s_barrier
    s_cmp_ge_u32 s6, 3
    s_cbranch_scc1 k1_kg_gather
    ''')
    for s in range(8):
        k(f'''
        ds_read_b128 v[{16+8*s}:{19+8*s}], v11 offset:{KG_UL+64*s}
        ds_read_b128 v[{20+8*s}:{23+8*s}], v10 offset:{KG_VL+64*s}''')
    k('''
    s_cmp_eq_u32 s6, 1
    s_cbranch_scc1 k1_kg_w1
    s_cmp_eq_u32 s6, 2
    s_cbranch_scc1 k1_kg_w2
    v_lshrrev_b32 v12, 1, v9
    v_lshlrev_b32 v12, 7, v12
    v_and_b32 v13, 1, v9
    v_lshl_add_u32 v12, v13, 2, v12
    v_lshl_add_u32 v12, v7, 3, v12
    v_add_u32 v13, 1, v12
    v_add_u32 v14, 2, v12
    v_add_u32 v15, 3, v12
    s_branch k1_kg_wj
k1_kg_w1:
    ; q<2: 256+64q+4i+r ; q>=2: 384+64(q-2)+2i+{0,1,32,33}
    v_lshlrev_b32 v12, 6, v9
    v_add_u32 v12, 256, v12
    v_lshl_add_u32 v13, v7, 2, v12
    v_lshl_add_u32 v14, v7, 1, v12
    v_cmp_gt_u32 vcc, 2, v9
    s_nop 1
    v_cndmask_b32 v12, v14, v13, vcc
    v_mov_b32 v14, 32
    v_cndmask_b32 v14, v14, 2, vcc
    v_add_u32 v13, 1, v12
    v_add_u32 v14, v14, v12
    v_add_u32 v15, 1, v14
    s_branch k1_kg_wj
k1_kg_w2:
    v_lshlrev_b32 v12, 6, v9
    v_add_u32 v12, 512, v12
    v_add_u32 v12, v12, v7
    v_add_u32 v13, 16, v12
    v_add_u32 v14, 32, v12
    v_add_u32 v15, 48, v12
k1_kg_wj:
    '''.replace('v_cndmask_b32 v14, v14, 2, vcc', 'v_cndmask_b32_e64 v14, v14, 2, vcc'))
    for r in range(4):
        k(f'v_lshlrev_b32 v{12+r}, 1, v{12+r}')
    for s in range(8):
        k(f's_waitcnt lgkmcnt({14-2*s})')
        c = '0' if s == 0 else 'v[80:83]'
        k(f'v_mfma_f32_16x16x32_f16 v[80:83], v[{16+8*s}:{19+8*s}], v[{20+8*s}:{23+8*s}], {c}')
    k(f'''
    v_cvt_pk_bf16_f32 v84, v80, v81
    v_cvt_pk_bf16_f32 v85, v82, v83
    ds_write_b16 v12, v84 offset:{KG_T}
    ds_write_b16_d16_hi v13, v84 offset:{KG_T}
    ds_write_b16 v14, v85 offset:{KG_T}
    ds_write_b16_d16_hi v15, v85 offset:{KG_T}
k1_kg_gather:
    ; l_e = 2047 - 8*tid - e
    v_lshlrev_b32 v6, 3, v0
    v_sub_u32 v6, 2047, v6
    ''')
    for e in range(8):
        k(f'''
        v_subrev_u32 v{16+e}, {e}, v6
        v_cvt_f32_u32 v{24+e}, v{16+e}''')
    for e in range(0, 8, 2):
        k(f'v_cvt_pk_bf16_f32 v{32+e//2}, v{24+e}, v{25+e}')
    for e in range(8):
        if e % 2 == 0:
            k(f'v_and_b32 v{24+e}, 0xffff, v{32+e//2}')
        else:
            k(f'v_lshrrev_b32 v{24+e}, 16, v{32+e//2}')
        k(f'''
        v_subrev_u32 v{24+e}, {0x4300-128}, v{24+e}
        v_cmp_gt_u32 vcc, 128, v{16+e}
        v_cndmask_b32 v{24+e}, v{24+e}, v{16+e}, vcc
        v_lshlrev_b32 v{24+e}, 1, v{24+e}
        ''')
    k('''
    s_waitcnt lgkmcnt(0)
    s_barrier
    ''')
    k.stamp(3)
    for e in range(8):
        k(f'ds_read_u16 v{44+e}, v{24+e} offset:{KG_T}')
    k(f'''
    s_mul_i32 s7, s3, {KR_STRIDE}
    v_lshlrev_b32 v6, 4, v0
    v_mov_b32 v40, 0
    v_mov_b32 v41, 0
    v_mov_b32 v42, 0
    v_mov_b32 v43, 0
    s_waitcnt lgkmcnt(0)
    v_lshl_or_b32 v36, v45, 16, v44
    v_lshl_or_b32 v37, v47, 16, v46
    v_lshl_or_b32 v38, v49, 16, v48
    v_lshl_or_b32 v39, v51, 16, v50
    buffer_store_dwordx4 v[36:39], v6, s[84:87], s7 offen
    v_cmp_gt_u32 vcc, 2, v0
    s_and_saveexec_b64 s[14:15], vcc
    s_cbranch_execz k1_kg_end
    s_add_u32 s7, s7, 4096
    buffer_store_dwordx4 v[40:43], v6, s[84:87], s7 offen
k1_kg_end:
    ''')
    k.stamp(4)
    k('s_waitcnt vmcnt(0)')
    k.stamp(5)
    k.stamp_flush(0)
    k('s_endpgm')


def make_k1():
    total = N_LN1 + N_MOD + N_WOF + N_KG + 8
    k = Kern('prep_kernel', total, 256, K1_LDS)
    k(f'''
    s_cmp_ge_u32 s2, {total}
    s_cbranch_scc1 k1_exit
    ''')
    k.stamp_s = 88
    k.stamp_v = 20
    k.stamp(0)
    load_ptrs(k)
    k(f'''
    s_waitcnt lgkmcnt(0)
    s_cmp_ge_u32 s2, {B_WOF+N_WOF}
    s_cbranch_scc1 k1_code
    s_cmp_ge_u32 s2, {B_WOF}
    s_cbranch_scc1 k1_wof
    s_cmp_ge_u32 s2, {B_MOD}
    s_cbranch_scc1 k1_mod
    s_cmp_ge_u32 s2, {B_LN1}
    s_cbranch_scc1 k1_ln1
    ''')
    role_kgen(k)
    k('k1_ln1:')
    role_ln1(k)
    k('k1_mod:')
    role_mod(k)
    k('k1_wof:')
    role_wof(k)
    k('k1_code:')
    code_touch(k, 'conv_kernel', 8192, 'k1ct')
    k('k1_exit:\ns_endpgm')
    return k
```

```python
from asmlib import Kern, code_touch
from layout import WS, KR_STRIDE, XS, LBS
from gen_k1 import f32, load_ptrs, srd, srd_ws

N_WP, N_MISC, N_CONV, N_WSF = 108, 16, 640, int(__import__('os').environ.get('K2_TOUCH', 0))
B_WP = N_CONV
B_WSF = B_WP + N_WP
B_MISC = B_WSF + N_WSF
KG_CODE_BYTES = 36864
CS = 4160
HOFF = 8 * CS
K2_LDS = 38912


def quad_sum(k, v):
    k(f'''
    v_add_f32_dpp v{v}, v{v}, v{v} quad_perm:[1,0,3,2] row_mask:0xf bank_mask:0xf
    v_add_f32_dpp v{v}, v{v}, v{v} quad_perm:[2,3,0,1] row_mask:0xf bank_mask:0xf
    ''')


def role_wp(k):
    RS = 192
    RED = 160 * RS
    srd(k, 56, 'win', 640 * 3456)
    srd_ws(k, 60, 'MODP')
    srd_ws(k, 64, 'WPF')
    srd_ws(k, 68, 'CSP')
    srd_ws(k, 72, 'BIP')
    k(f'''
    s_sub_u32 s3, s2, {B_WP}
    s_mul_i32 s4, s3, 2428
    s_lshr_b32 s4, s4, 16            ; dq
    s_mul_i32 s5, s4, 27
    s_sub_u32 s5, s3, s5             ; fb
    v_and_b32 v1, 7, v0              ; c8
    v_lshrrev_b32 v2, 3, v0          ; rg
    v_mul_u32_u24 v3, 3456, v2
    v_lshl_add_u32 v3, v1, 4, v3
    s_mul_i32 s6, s4, {160*3456}
    s_lshl_b32 s7, s5, 7
    s_add_u32 s6, s6, s7
    v_and_b32 v4, 3, v1
    v_mul_u32_u24 v4, 15360, v4
    v_lshrrev_b32 v5, 2, v1
    v_mul_u32_u24 v5, 2560, v5
    v_add_u32 v4, v4, v5
    v_lshl_add_u32 v4, v2, 2, v4
    s_mul_i32 s12, s4, 640
    s_add_u32 s12, s12, {3*2560}
    ''')
    for i in range(1, 5):
        k(f's_add_u32 s{6+i}, s6, {32*3456*i}')
    for i in range(5):
        k(f'buffer_load_dword v{28+i}, v4, s[60:63], s12 offen offset:{128*i}')
    for i in range(5):
        k(f'buffer_load_dwordx4 v[{8+4*i}:{11+4*i}], v3, s[56:59], s{6+i} offen')
    k(f'''
    v_mul_u32_u24 v6, {RS}, v2
    v_lshl_add_u32 v6, v1, 4, v6
    v_cmp_gt_u32 vcc, 4, v1
    s_waitcnt vmcnt(5)
    ''')
    for i in range(5):
        v = 28 + i
        quad_sum(k, v)
        k(f'''
        v_cvt_pk_bf16_f32 v{v}, v{v}, v{v}
        v_lshlrev_b32 v{v}, 16, v{v}
        v_mov_b32_dpp v5, v{v} row_half_mirror row_mask:0xf bank_mask:0xf
        v_cndmask_b32 v{34+4*i}, v{v}, v5, vcc      ; cb
        v_cndmask_b32 v{36+4*i}, v5, v{v}, vcc      ; sb
        v_add_f32 v{34+4*i}, 1.0, v{34+4*i}
        v_mov_b32 v{35+4*i}, v{34+4*i}
        v_mov_b32 v{37+4*i}, v{36+4*i}
        ''')
    for i in range(5):
        k(f's_waitcnt vmcnt({4-i})')
        for j in range(4):
            r = 8 + 4 * i + j
            k(f'''
            v_lshlrev_b32 v72, 16, v{r}
            v_and_b32 v73, 0xffff0000, v{r}
            v_pk_mul_f32 v[74:75], v[72:73], v[{34+4*i}:{35+4*i}]
            ''')
            if i == 0:
                k(f'v_pk_mul_f32 v[{64+2*j}:{65+2*j}], v[72:73], v[{36+4*i}:{37+4*i}]')
            else:
                k(f'v_pk_fma_f32 v[{64+2*j}:{65+2*j}], v[72:73], v[{36+4*i}:{37+4*i}], v[{64+2*j}:{65+2*j}]')
            k(f'v_cvt_pk_bf16_f32 v{r}, v74, v75')
            if i == 0:
                k(f'''
                v_lshlrev_b32 v{56+2*j}, 16, v{r}
                v_and_b32 v{57+2*j}, 0xffff0000, v{r}''')
            else:
                k(f'''
                v_lshlrev_b32 v76, 16, v{r}
                v_and_b32 v77, 0xffff0000, v{r}
                v_pk_add_f32 v[{56+2*j}:{57+2*j}], v[{56+2*j}:{57+2*j}], v[76:77]''')
        k(f'ds_write_b128 v6, v[{8+4*i}:{11+4*i}] offset:{32*RS*i}')
    for j in range(16):
        k(f'v_add_f32_dpp v{56+j}, v{56+j}, v{56+j} row_ror:8 row_mask:0xf bank_mask:0xf')
    k(f'''
    v_lshrrev_b32 v5, 4, v0
    v_lshlrev_b32 v5, 8, v5
    v_lshl_add_u32 v5, v1, 5, v5
    ds_write_b128 v5, v[56:59] offset:{RED}
    ds_write_b128 v5, v[60:63] offset:{RED+16}
    ds_write_b128 v5, v[64:67] offset:{RED+4096}
    ds_write_b128 v5, v[68:71] offset:{RED+4096+16}
    v_and_b32 v40, 63, v0            ; lane
    v_lshrrev_b32 v41, 6, v0
    v_lshrrev_b32 v42, 4, v40        ; kq
    v_bfe_u32 v43, v40, 2, 2         ; rr
    v_and_b32 v44, 3, v40            ; c
    v_lshl_add_u32 v7, v42, 3, v43
    v_mul_u32_u24 v7, {RS}, v7
    v_lshl_add_u32 v7, v44, 4, v7    ; + 16c
    v_lshrrev_b32 v45, 1, v41
    v_lshl_add_u32 v7, v45, 6, v7    ; + 64 blk
    v_and_b32 v45, 1, v41
    v_lshl_add_u32 v7, v45, 3, v7    ; + 8a
    v_lshlrev_b32 v46, 4, v40
    v_lshl_add_u32 v46, v41, 10, v46
    s_mul_i32 s6, s4, {5*108}
    s_lshl_b32 s7, s5, 2
    s_add_u32 s6, s6, s7
    s_lshl_b32 s6, s6, 10
    s_waitcnt lgkmcnt(0)
    s_barrier
    ''')
    for j in range(5):
        k(f'''
        ds_read_b64_tr_b16 v[{8+4*j}:{9+4*j}], v7 offset:{32*RS*j}
        ds_read_b64_tr_b16 v[{10+4*j}:{11+4*j}], v7 offset:{32*RS*j+4*RS}''')
    for j in range(5):
        k(f'''
        s_waitcnt lgkmcnt({8-2*j})
        buffer_store_dwordx4 v[{8+4*j}:{11+4*j}], v46, s[64:67], s6 offen
        s_add_u32 s6, s6, {108*1024}''')
    k(f'''
    v_cmp_gt_u32 vcc, 128, v0
    s_and_saveexec_b64 s[14:15], vcc
    s_cbranch_execz k2_wp_end
    v_lshlrev_b32 v6, 2, v40
    v_lshl_add_u32 v5, v41, 12, v6
    ''')
    for i in range(16):
        k(f'ds_read_b32 v{48+i}, v5 offset:{RED+256*i}')
    k('s_waitcnt lgkmcnt(0)')
    for s in (8, 4, 2, 1):
        for i in range(s):
            k(f'v_add_f32 v{48+i}, v{48+i}, v{48+i+s}')
    k(f'''
    s_mul_i32 s6, s4, {1728*4}
    s_lshl_b32 s7, s5, 8
    s_add_u32 s6, s6, s7
    v_readfirstlane_b32 s8, v41
    s_cmp_eq_u32 s8, 0
    s_cbranch_scc0 k2_wp_b
    buffer_store_dword v48, v6, s[68:71], s6 offen
    s_endpgm
k2_wp_b:
    buffer_store_dword v48, v6, s[72:75], s6 offen
k2_wp_end:
    s_endpgm
    ''')


def role_misc(k):
    srd_ws(k, 56, 'STAT')
    srd_ws(k, 60, 'MODP')
    srd_ws(k, 64, 'MODF')
    srd_ws(k, 68, 'FLG')
    k(f"""
    s_sub_u32 s3, s2, {B_MISC}
    s_lshl_b32 s4, s3, 12
    s_sub_u32 s9, s4, 16384
    v_lshlrev_b32 v1, 4, v0
    v_mov_b32 v4, 0
    v_mov_b32 v5, 0
    v_mov_b32 v6, 0
    v_mov_b32 v7, 0
    s_cmp_ge_u32 s3, 4
    s_cbranch_scc1 k2_misc_b
    buffer_store_dwordx4 v[4:7], v1, s[56:59], s4 offen
    s_branch k2_misc_a
k2_misc_b:
    s_cmp_ge_u32 s3, 7
    s_cbranch_scc1 k2_misc_a
    buffer_store_dwordx4 v[4:7], v1, s[68:71], s9 offen
k2_misc_a:
    s_cmp_ge_u32 s3, 15
    s_cbranch_scc1 k2_misc_end
    v_lshlrev_b32 v2, 2, v0
    s_lshl_b32 s5, s3, 10
    s_add_u32 s6, s5, 15360
    s_add_u32 s7, s5, 30720
    s_add_u32 s8, s5, 46080
    buffer_load_dword v8, v2, s[60:63], s5 offen
    buffer_load_dword v9, v2, s[60:63], s6 offen
    buffer_load_dword v10, v2, s[60:63], s7 offen
    buffer_load_dword v11, v2, s[60:63], s8 offen
    s_waitcnt vmcnt(0)
    v_add_f32 v8, v8, v9
    v_add_f32 v10, v10, v11
    v_add_f32 v8, v8, v10
    v_cvt_pk_bf16_f32 v8, v8, v8
    v_lshlrev_b32 v8, 16, v8
    buffer_store_dword v8, v2, s[64:67], s5 offen
k2_misc_end:
    s_endpgm
    """)


def role_wsf(k):
    srd(k, 56, 'wsp', 2048 * 4096)
    k(f"""
    s_sub_u32 s3, s2, {B_WSF}
    s_lshl_b32 s3, s3, 16
    v_lshlrev_b32 v1, 4, v0
    """)
    for j in range(16):
        k(f"""
        buffer_load_dwordx4 v[{4+4*j}:{7+4*j}], v1, s[56:59], s3 offen
        s_add_u32 s3, s3, 4096""")
    k('s_waitcnt vmcnt(0)\ns_endpgm')


def role_conv(k):
    srd_ws(k, 56, 'KR')
    srd_ws(k, 60, 'XNT')
    srd_ws(k, 64, 'XT')
    srd_ws(k, 68, 'MODP')
    srd(k, 72, 'Dskip', 1280)
    srd_ws(k, 76, 'X1T')
    FB = 8
    ACC = 72
    XR = 4
    k(f"""
    s_and_b32 s3, s2, 7
    s_lshl_b32 s3, s3, 2
    s_lshr_b32 s4, s2, 3
    s_and_b32 s5, s4, 3
    s_add_u32 s3, s3, s5
    s_lshr_b32 s4, s4, 2
    s_lshl_b32 s4, s4, 5
    s_add_u32 s3, s3, s4             ; d = 32(k>>2) + 4xcd + (k&3)
    v_and_b32 v1, 63, v0             ; lane
    v_lshrrev_b32 v8, 6, v0
    v_lshlrev_b32 v11, 4, v0
    v_readfirstlane_b32 s4, v8       ; wave
    s_mul_i32 s5, s3, {KR_STRIDE}
    s_mul_i32 s6, s3, {XS}
    buffer_load_dwordx4 v[40:43], v11, s[56:59], s5 offen
    buffer_load_dwordx4 v[44:47], v11, s[56:59], s5 offen offset:16
    v_and_b32 v16, 3, v1
    v_mul_u32_u24 v16, 15360, v16
    v_bfe_u32 v17, v1, 2, 2
    v_min_u32 v17, 2, v17
    v_mul_u32_u24 v17, 2560, v17
    v_add_u32 v16, v16, v17
    s_lshl_b32 s10, s3, 2
    buffer_load_dword v18, v16, s[68:71], s10 offen
    v_lshrrev_b32 v9, 1, v0
    v_mul_u32_u24 v9, {LBS}, v9
    v_and_b32 v10, 1, v0
    v_lshl_add_u32 v9, v10, 4, v9
    s_lshl_b32 s7, s3, 5
    buffer_load_dwordx4 v[12:15], v9, s[60:63], s7 offen
    v_mov_b32 v19, 0
    s_lshl_b32 s11, s3, 1
    buffer_load_ushort v20, v19, s[72:75], s11 offen
    v_and_b32 v21, 15, v1            ; n / b
    v_lshrrev_b32 v22, 4, v1         ; q / kq
    v_mul_u32_u24 v23, {LBS}, v21
    v_lshl_add_u32 v23, v22, 3, v23  ; n*20480 + 8q
    s_mul_i32 s8, s4, {32*LBS}
    s_add_u32 s8, s8, s7
    s_add_u32 s9, s8, {16*LBS}
    buffer_load_dwordx2 v[4:5], v23, s[64:67], s8 offen
    buffer_load_dwordx2 v[6:7], v23, s[64:67], s9 offen
    s_lshl_b32 s12, s4, 10
    s_add_u32 s13, s6, s12
    v_mov_b32 v24, 0
    v_mov_b32 v25, 0
    v_mov_b32 v26, 0
    v_mov_b32 v27, 0
    v_and_b32 v28, 7, v0
    v_mul_u32_u24 v28, {CS}, v28
    ds_write_b128 v28, v[24:27] offset:4096
    v_min_u32 v29, 29, v1
    v_lshlrev_b32 v29, 4, v29
    ds_write_b128 v29, v[24:27] offset:{HOFF}
    v_sub_u32 v30, 15, v21           ; b'
    v_and_b32 v31, 7, v30
    v_mul_u32_u24 v2, {CS}, v31
    v_lshrrev_b32 v30, 3, v30
    v_add_u32 v30, v30, v22
    v_lshl_add_u32 v2, v30, 4, v2
    s_lshl_b32 s14, s4, 7
    s_sub_u32 s14, 384, s14          ; 448 - 128w - 64
    v_add_u32 v2, s14, v2
    v_lshlrev_b32 v3, 5, v21
    v_lshl_add_u32 v3, v22, 4, v3
    s_add_u32 s15, s14, {HOFF}
    v_add_u32 v3, s15, v3
    s_waitcnt vmcnt(5)
    """)
    k.stamp(1)
    k(f"""
    ds_write_b128 v11, v[40:43] offset:{0*CS}
    ds_write_b128 v11, v[42:45] offset:{4*CS}
    """)
    for j in range(6):
        k(f'v_mov_b32 v{48+j}, v{41+j}')
    k(f"""
    ds_write_b128 v11, v[48:51] offset:{2*CS}
    ds_write_b128 v11, v[50:53] offset:{6*CS}
    """)
    for j in range(6):
        k(f'v_alignbit_b32 v{56+j}, v{41+j}, v{40+j}, 16')
    k(f"""
    ds_write_b128 v11, v[56:59] offset:{1*CS}
    ds_write_b128 v11, v[58:61] offset:{5*CS}
    """)
    for j in range(6):
        k(f'v_alignbit_b32 v{64+j}, v{42+j}, v{41+j}, 16')
    k(f"""
    ds_write_b128 v11, v[64:67] offset:{3*CS}
    ds_write_b128 v11, v[66:69] offset:{7*CS}
    s_waitcnt vmcnt(4)
    """)
    quad_sum(k, 18)
    k(f"""
    v_cvt_pk_bf16_f32 v18, v18, v18
    v_lshlrev_b32 v18, 16, v18
    s_nop 0
    v_readlane_b32 s80, v18, 0       ; sa
    v_readlane_b32 s81, v18, 4       ; ca
    v_readlane_b32 s82, v18, 8       ; ga
    s_nop 1
    v_mov_b32 v32, s81
    v_add_f32 v32, 1.0, v32
    v_mov_b32 v33, v32
    v_mov_b32 v34, s80
    v_mov_b32 v35, s80
    s_waitcnt vmcnt(3)
    """)
    for j in range(4):
        k(f"""
        v_lshlrev_b32 v36, 16, v{12+j}
        v_and_b32 v37, 0xffff0000, v{12+j}
        v_pk_fma_f32 v[36:37], v[36:37], v[32:33], v[34:35]
        v_cvt_pk_bf16_f32 v{12+j}, v36, v37""")
    k(f"""
    ds_write_b128 v11, v[12:15] offset:{HOFF+480}
    s_waitcnt vmcnt(2)
    v_lshlrev_b32 v20, 16, v20
    s_nop 0
    v_readfirstlane_b32 s83, v20     ; Dskip
    s_waitcnt lgkmcnt(0)
    s_barrier
    """)
    k.stamp(2)
    first = [True] * 8

    def rd_f(p, rr):
        return f'ds_read_b128 v[{FB+4*p}:{FB+3+4*p}], v2 offset:{3584-512*p+64*(1-rr)}'

    def rd_g(q, rr):
        return f'ds_read_b128 v[{FB+32+4*q}:{FB+35+4*q}], v3 offset:{512*q+64*(1-rr)}'

    def mf(p, q):
        i = p + q
        a = ACC + 4 * i
        c = '0' if first[i] else f'v[{a}:{a+3}]'
        first[i] = False
        k(f'v_mfma_f32_16x16x32_bf16 v[{a}:{a+3}], v[{FB+4*p}:{FB+3+4*p}], v[{FB+32+4*q}:{FB+35+4*q}], {c}')

    for m in range(8):
        k(rd_g(m, 0))
        k(rd_f(7 - m, 0))
    issued_after = 0
    for st in range(8):
        p = 7 - st
        k(f's_waitcnt lgkmcnt({min(15, 16-(2*st+2)+issued_after)})')
        for q in range(st + 1):
            mf(p, q)
        k(rd_f(p, 1))
        issued_after += 1
    for q in range(8):
        k(rd_g(q, 1))
    for q in range(8):
        k(f's_waitcnt lgkmcnt({7-q})')
        for p in range(7 - q, -1, -1):
            mf(p, q)
    k.stamp(3)
    k(f"""
    v_lshlrev_b32 v8, 4, v1          ; lane*16
    s_barrier
    """)
    for w in range(4):
        k(f"""
        s_cmp_eq_u32 s4, {w}
        s_cbranch_scc0 k2_red_{w}""")
        for i in range(8):
            o = i >> 1
            if o == w:
                continue
            src = (w - o - 1) % 4
            k(f'ds_write_b128 v8, v[{ACC+4*i}:{ACC+4*i+3}] offset:{(i*3+src)*1024}')
        for j in range(8):
            k(f'v_mov_b32 v{40+j}, v{ACC+8*w+j}')
        k(f'k2_red_{w}:')
    k(f'''
    s_mul_i32 s12, s4, 6144
    v_add_u32 v9, s12, v8
    v_and_b32 v21, 15, v1
    v_lshrrev_b32 v22, 4, v1
    v_lshlrev_b32 v23, 5, v21
    v_lshl_add_u32 v23, v22, 3, v23
    s_lshl_b32 s12, s4, 10
    v_add_u32 v10, s12, v23
    v_lshrrev_b32 v11, 1, v21
    v_lshlrev_b32 v11, 6, v11
    v_and_b32 v12, 1, v22
    v_lshl_add_u32 v11, v12, 5, v11
    v_and_b32 v12, 1, v21
    v_lshl_add_u32 v11, v12, 4, v11
    v_lshrrev_b32 v12, 1, v22
    v_lshl_add_u32 v11, v12, 3, v11
    s_waitcnt lgkmcnt(0)
    s_barrier
    ds_read_b64 v[12:13], v10 offset:{HOFF+480}
    ds_read_b64 v[14:15], v10 offset:{HOFF+480+512}
    ''')
    for j in range(6):
        k(f'ds_read_b128 v[{48+4*j}:{51+4*j}], v9 offset:{1024*j}')
    k(f'''
    v_mov_b32 v16, s83
    v_mov_b32 v17, s83
    v_mov_b32 v18, s82
    v_mov_b32 v19, s82
    s_waitcnt lgkmcnt(0) vmcnt(0)
    ''')
    for t in range(2):
        o = 40 + 4 * t
        for j in range(3):
            s = 48 + 12 * t + 4 * j
            k(f'''
            v_pk_add_f32 v[{o}:{o+1}], v[{o}:{o+1}], v[{s}:{s+1}]
            v_pk_add_f32 v[{o+2}:{o+3}], v[{o+2}:{o+3}], v[{s+2}:{s+3}]''')
        for hh in range(2):
            hv = 12 + 2 * t + hh
            xv = XR + 2 * t + hh
            y = o + 2 * hh
            k(f'''
            v_lshlrev_b32 v20, 16, v{hv}
            v_and_b32 v21, 0xffff0000, v{hv}
            v_pk_fma_f32 v[{y}:{y+1}], v[20:21], v[16:17], v[{y}:{y+1}]
            v_lshlrev_b32 v22, 16, v{xv}
            v_and_b32 v23, 0xffff0000, v{xv}
            v_pk_fma_f32 v[{y}:{y+1}], v[{y}:{y+1}], v[18:19], v[22:23]
            v_cvt_pk_bf16_f32 v{24+2*t+hh}, v{y}, v{y+1}
            ''')
        k(f'buffer_store_dwordx2 v[{24+2*t}:{25+2*t}], v11, s[76:79], s13 offen offset:{512*t}')
    k.stamp(4)
    k('s_waitcnt vmcnt(0)')
    k.stamp(5)
    k.stamp_flush(1)
    k('s_endpgm')


def make_k2():
    total = N_WP + N_MISC + N_CONV + N_WSF + 8
    k = Kern('conv_kernel', total, 256, K2_LDS)
    k(f"""
    s_cmp_ge_u32 s2, {total}
    s_cbranch_scc1 k2_exit
    """)
    k.stamp_s = 88
    k.stamp_v = 100
    k.stamp(0)
    load_ptrs(k)
    k(f"""
    s_waitcnt lgkmcnt(0)
    s_cmp_ge_u32 s2, {B_MISC+N_MISC}
    s_cbranch_scc1 k2_code
    s_cmp_ge_u32 s2, {B_MISC}
    s_cbranch_scc1 k2_misc
    s_cmp_ge_u32 s2, {B_WSF}
    s_cbranch_scc1 k2_wsf
    s_cmp_ge_u32 s2, {B_WP}
    s_cbranch_scc1 k2_wp
    """)
    role_conv(k)
    k('k2_wp:')
    role_wp(k)
    k('k2_wsf:')
    role_wsf(k)
    k('k2_misc:')
    role_misc(k)
    k('k2_code:')
    code_touch(k, 'gemm_kernel', KG_CODE_BYTES, 'k2ct')
    k('k2_exit:\ns_endpgm')
    return k
```

```python
import os
from asmlib import Kern
from layout import WS, XS
from gen_k1 import f32, load_ptrs, srd, srd_ws

SC = 'sc1'
SPIN_MAX = 100000


NS = 5
SLOT = 12288
PANEL = 65536
CONST = PANEL + 81920
SCR = CONST + 1024
KG_LDS = SCR + 1024
TAB = 98304
ZERO = TAB + 4 * 4096
CORR = ZERO + 1024
NK = 20
VB = [28, 44]
ACC2 = 60
ACC1 = 92
GRAM = 124
SUM = 132
ONES = 140
C0 = -2.0 * 0.7978845608028654 * 1.4426950408889634
C1 = C0 * 0.044715


def gelu4(k, regs, t0=162):
    T = [t0 + 2 * g for g in range(len(regs))]
    z = list(zip(regs, T))
    for x, t in z:
        k(f'v_pk_mul_f32 v[{t}:{t+1}], v[{x}:{x+1}], v[{x}:{x+1}]')
    for x, t in z:
        k(f'v_pk_fma_f32 v[{t}:{t+1}], v[{t}:{t+1}], s[72:73], v[176:177]')
    for x, t in z:
        k(f'v_pk_mul_f32 v[{t}:{t+1}], v[{t}:{t+1}], v[{x}:{x+1}]')
    for x, t in z:
        k(f'v_exp_f32 v{t}, v{t}\nv_exp_f32 v{t+1}, v{t+1}')
    for x, t in z:
        k(f'v_pk_add_f32 v[{t}:{t+1}], v[{t}:{t+1}], s[74:75]')
    for x, t in z:
        k(f'v_rcp_f32 v{t}, v{t}\nv_rcp_f32 v{t+1}, v{t+1}')
    for x, t in z:
        k(f'v_pk_mul_f32 v[{x}:{x+1}], v[{x}:{x+1}], v[{t}:{t+1}]')


def a_dma(st):
    return [f"""s_add_u32 m0, s10, {(st % NS)*SLOT}
    buffer_load_dwordx4 v12, s[60:63], s12 offen lds""",
            'buffer_load_dwordx4 v3, s[56:59], s11 offen offset:1024 lds',
            f"""buffer_load_dwordx4 v4, s[56:59], s11 offen offset:2048 lds
    s_add_u32 s11, s11, {32*XS}
    s_add_u32 s12, s12, {108*1024}"""]


def a_panel(kk):
    return f"""s_add_u32 m0, s15, {kk*1024}
    buffer_load_dwordx4 v12, s[60:63], s13 offen lds
    s_add_u32 s13, s13, {108*1024}"""


def a_frags(st):
    base = (st % NS) * SLOT
    L = []
    for a in range(2):
        x = 8 * st + 4 * a
        L.append(f'ds_read_b64_tr_b16 a[{x}:{x+1}], v{6+a} offset:{base}')
        L.append(f'ds_read_b64_tr_b16 a[{x+2}:{x+3}], v{6+a} offset:{base+1024}')
    B = VB[st & 1]
    for n in range(4):
        L.append(f'ds_read_b128 v[{B+4*n}:{B+4*n+3}], v12 offset:{base+3072*n}')
    return L


def flag_store(k, soff):
    k(f"""
    v_mov_b32 v15, 0
    v_mov_b32 v16, 1
    s_mov_b64 exec, 1
    buffer_store_dword v16, v15, s[84:87], s{soff} offen {SC}
    s_mov_b64 exec, -1
    """)


def phase_a(k):
    xo, xs = WS['X1T']
    srd(k, 56, 'ws', xs + 1024, xo - 1024)
    srd_ws(k, 60, 'WPF')
    srd_ws(k, 64, 'X1F')
    srd_ws(k, 76, 'CSP')
    srd_ws(k, 80, 'BIP')
    k(f"""
    s_lshl_b32 s9, s54, 2
    s_add_u32 s9, s9, s4
    s_mul_i32 s10, s4, 3072
    s_lshl_b32 s11, s54, 8
    s_lshr_b32 s5, s55, 1
    s_mul_i32 s5, s5, 7
    s_min_u32 s5, s5, 47             ; base
    s_and_b32 s6, s55, 1             ; type
    s_lshl_b32 s7, s6, 2
    s_add_u32 s70, s5, s7            ; z2base
    s_mul_i32 s7, s6, 3
    s_add_u32 s71, s5, s7            ; z1base
    s_sub_u32 s68, 3, s6             ; z2max
    s_add_u32 s69, s6, 2             ; z1max
    s_min_u32 s12, s4, s68
    s_add_u32 s12, s12, s70
    s_add_u32 s12, s12, 54
    s_lshl_b32 s12, s12, 10          ; z2 slot w
    s_min_u32 s13, s4, s69
    s_add_u32 s13, s13, s71
    s_lshl_b32 s13, s13, 10          ; z1 slot w
    s_mul_i32 s15, s4, 20480
    s_add_u32 s15, s15, {PANEL}
    s_and_b32 s3, s4, 1
    s_lshl_b32 s3, s3, 3
    v_lshlrev_b32 v16, 1, v14
    v_add_u32 v16, s3, v16
    v_xor_b32 v16, v16, v13
    v_lshlrev_b32 v16, 4, v16
    v_mul_u32_u24 v3, {XS}, v14
    v_add_u32 v3, v3, v16
    s_mul_i32 s3, s4, {8*XS}
    v_add_u32 v3, s3, v3
    v_add_u32 v4, {4*XS-1024}, v3
    """)
    issued = []

    def emit(l, tag):
        k(l)
        issued.append(tag)

    def wait_for(tags, extra=''):
        idx = [i for i, t in enumerate(issued) if t in tags]
        n = len(issued) - 1 - max(idx)
        k(f's_waitcnt vmcnt({n}) {extra}')

    for st in range(NS):
        for l in a_dma(st):
            emit(l, ('a', st))
    k(f"""
    v_bfe_u32 v17, v0, 4, 2
    v_min_u32 v18, s68, v17
    v_add_u32 v18, s70, v18
    v_add_u32 v18, 54, v18
    v_min_u32 v19, s69, v17
    v_add_u32 v19, s71, v19
    v_and_b32 v17, 64, v0
    v_cmp_eq_u32 vcc, 0, v17
    v_cndmask_b32 v17, v19, v18, vcc ; phi'
    v_lshrrev_b32 v18, 1, v17
    v_lshlrev_b32 v18, 5, v18
    v_and_b32 v17, 1, v17
    v_lshl_add_u32 v18, v17, 2, v18
    v_lshrrev_b32 v17, 2, v13
    v_lshl_add_u32 v18, v17, 3, v18
    v_and_b32 v17, 3, v13
    v_add_u32 v18, v18, v17
    v_lshlrev_b32 v18, 2, v18
    s_mov_b32 s14, {1728*4}
    s_mov_b32 s7, {2*1728*4}
    s_mov_b32 s3, {3*1728*4}
    s_cmp_ge_u32 s4, 2
    s_cbranch_scc1 kgA_cb
    buffer_load_dword v20, v18, s[76:79], 0 offen
    buffer_load_dword v21, v18, s[76:79], s14 offen
    buffer_load_dword v22, v18, s[76:79], s7 offen
    buffer_load_dword v23, v18, s[76:79], s3 offen
    s_branch kgA_cj
kgA_cb:
    buffer_load_dword v20, v18, s[80:83], 0 offen
    buffer_load_dword v21, v18, s[80:83], s14 offen
    buffer_load_dword v22, v18, s[80:83], s7 offen
    buffer_load_dword v23, v18, s[80:83], s3 offen
kgA_cj:
    s_lshl_b32 s3, s9, 11
    v_add_u32 v5, s3, v12
    v_lshrrev_b32 v218, 1, v5
    v_bfe_u32 v16, v1, 2, 2
    v_bfe_u32 v17, v1, 1, 1
    s_lshl_b32 s3, s4, 2
    v_add_u32 v17, s3, v17
    v_and_b32 v18, 1, v14
    v_lshlrev_b32 v18, 3, v18
    v_lshl_add_u32 v18, v16, 1, v18
    v_xor_b32 v17, v17, v18
    v_lshlrev_b32 v6, 4, v17
    v_lshl_add_u32 v6, v16, 8, v6
    v_mul_u32_u24 v18, 3072, v14
    v_add_u32 v6, v6, v18
    v_and_b32 v18, 1, v1
    v_lshl_add_u32 v6, v18, 3, v6
    v_add_u32 v6, 1024, v6
    v_xor_b32 v7, 32, v6
    s_mov_b32 s72, {f32(C1)}
    s_mov_b32 s73, {f32(C1)}
    s_mov_b32 s74, 1.0
    s_mov_b32 s75, 1.0
    v_mov_b32 v176, {f32(C0)}
    v_mov_b32 v177, {f32(C0)}
    """)
    issued += [('c', 0)] * 4
    for r in range(4):
        k(f'v_mov_b32 v{ONES+r}, 0x3f803f80')
    srd_ws(k, 76, 'STAT')
    srd_ws(k, 80, 'Z1F')
    srd_ws(k, 92, 'Z2F')
    srd_ws(k, 84, 'FLG')
    k.stamp(1)
    wait_for([('a', 0)])
    k('s_barrier')
    for l in a_frags(0):
        k(l)
    k.stamp(2)
    for kk in range(NK):
        fill = []
        if kk + 1 < NK:
            wait_for([('a', kk + 1)], 'lgkmcnt(0)')
            k('s_barrier')
            fill = [(None, l) for l in a_frags(kk + 1)]
            if kk + NS < NK:
                fill += [(('a', kk + NS), l) for l in a_dma(kk + NS)]
        else:
            k('s_waitcnt lgkmcnt(0)')
        fill.append((('p', 0), a_panel(kk)))
        B = VB[kk & 1]
        z = kk == 0
        M = []
        for a in range(2):
            x = f'a[{8*kk+4*a}:{8*kk+4*a+3}]'
            for n in range(4):
                acc = ACC2 + 4 * (4 * a + n)
                M.append(f'v_mfma_f32_16x16x32_bf16 v[{acc}:{acc+3}], {x}, v[{B+4*n}:{B+4*n+3}], ' + ('0' if z else f'v[{acc}:{acc+3}]'))
            g = GRAM + 4 * a
            s_ = SUM + 4 * a
            M.append(f'v_mfma_f32_16x16x32_bf16 v[{g}:{g+3}], {x}, {x}, ' + ('0' if z else f'v[{g}:{g+3}]'))
            M.append(f'v_mfma_f32_16x16x32_bf16 v[{s_}:{s_+3}], {x}, v[{ONES}:{ONES+3}], ' + ('0' if z else f'v[{s_}:{s_+3}]'))
        for n, mm in enumerate(M):
            k(mm)
            if n < len(fill):
                t, l = fill[n]
                k(l)
                if t:
                    issued.append(t)
        if kk == 6:
            k(f"""
            v_add_f32 v20, v20, v21
            v_add_f32 v22, v22, v23
            v_add_f32 v20, v20, v22
            v_lshlrev_b32 v16, 2, v0
            v_add_u32 v16, {CONST}, v16
            ds_write_b32 v16, v20
            """)
    k.stamp(3)
    k(f"""
    v_mul_u32_u24 v16, 80, v14
    v_lshlrev_b32 v17, 2, v13
    v_add_u32 v17, {CONST}, v17
    v_lshlrev_b32 v15, 4, v14
    v_add_u32 v15, {CONST}, v15
    """)
    for a in range(2):
        for r in range(4):
            g = GRAM + 4 * a + r
            k(f'ds_bpermute_b32 v{g}, v16, v{g} offset:{4*r}')
    for n in range(4):
        k(f"""
        ds_read_b32 v{144+4*n}, v17 offset:{64*n}
        ds_read_b32 v{146+4*n}, v17 offset:{512+64*n}""")
    k('s_waitcnt lgkmcnt(8)')
    for e in range(8):
        g = GRAM + e
        s_ = SUM + e
        t = 162 + (e & 3)
        k(f"""
        v_mul_f32 v{s_}, {f32(1.0/640)}, v{s_}
        v_mov_b32 v{t}, {f32(1e-5)}
        v_fmac_f32 v{t}, {f32(1.0/640)}, v{g}
        v_fma_f32 v{t}, -v{s_}, v{s_}, v{t}
        v_max_f32 v{t}, {f32(1e-5)}, v{t}
        v_rsq_f32 v{g}, v{t}
        v_mul_f32 v{s_}, -v{s_}, v{g}
        """)
    k(f"""
    v_and_b32 v18, 3, v13
    v_lshrrev_b32 v19, 2, v13
    v_lshl_add_u32 v19, v19, 4, v13
    v_lshlrev_b32 v19, 2, v19
    v_cmp_eq_u32 s[56:57], 1, v18
    v_cmp_eq_u32 s[58:59], 2, v18
    v_cmp_eq_u32 vcc, 3, v18
    """)
    for a in range(2):
        for (src, dst) in ((GRAM + 4 * a, 20 + 4 * a), (SUM + 4 * a, 22 + 4 * a)):
            k(f"""
            v_cndmask_b32 v{dst}, v{src}, v{src+1}, s[56:57]
            v_cndmask_b32 v{dst}, v{dst}, v{src+2}, s[58:59]
            v_cndmask_b32 v{dst}, v{dst}, v{src+3}, vcc
            ds_bpermute_b32 v{dst}, v19, v{dst}
            """)
    for n in range(4):
        k(f"""
        ds_read_b128 v[{180+8*n}:{183+8*n}], v15 offset:{256+64*n}
        ds_read_b128 v[{184+8*n}:{187+8*n}], v15 offset:{768+64*n}""")
    k('s_waitcnt lgkmcnt(12)')
    for n in range(4):
        k(f'v_mov_b32 v{145+4*n}, v{144+4*n}\nv_mov_b32 v{147+4*n}, v{146+4*n}')
    for e in range(16):
        k(f'v_mov_b32 v{28+e}, 0')
    k(f"""
    s_mul_i32 s3, s9, 54
    s_add_u32 s3, s3, s70
    """)
    for n in range(4):
        regs = []
        for a in range(2):
            acc = ACC2 + 4 * (4 * a + n)
            for p in range(2):
                x = acc + 2 * p
                g = GRAM + 4 * a + 2 * p
                s_ = SUM + 4 * a + 2 * p
                t = 162 + 2 * (2 * a + p)
                k(f"""
                v_pk_fma_f32 v[{t}:{t+1}], v[{144+4*n}:{145+4*n}], v[{s_}:{s_+1}], v[{146+4*n}:{147+4*n}]
                v_pk_fma_f32 v[{x}:{x+1}], v[{x}:{x+1}], v[{g}:{g+1}], v[{t}:{t+1}]""")
                regs.append(x)
        gelu4(k, regs)
        o = 44 + 4 * n
        for j, x in enumerate(regs):
            k(f'v_cvt_pk_bf16_f32 v{o+j}, v{x}, v{x+1}')
        k(f"""
        s_min_u32 s5, s68, {n}
        s_add_u32 s5, s5, s3
        s_lshl_b32 s5, s5, 10""")
        emit(f'buffer_store_dwordx4 v[{o}:{o+3}], v12, s[92:95], s5 offen {SC}', ('s', 0))
        lab = f'kgA_ns{n}'
        if n == 3:
            k(f's_cmp_eq_u32 s68, 3\ns_cbranch_scc0 {lab}')
        elif n < 2:
            k(f's_cmp_eq_u32 s55, 14\ns_cbranch_scc1 {lab}')
        for j, x in enumerate(regs):
            k(f"""
            v_pk_add_f32 v[{28+2*j}:{29+2*j}], v[{28+2*j}:{29+2*j}], v[{x}:{x+1}]
            v_pk_fma_f32 v[{36+2*j}:{37+2*j}], v[{x}:{x+1}], v[{x}:{x+1}], v[{36+2*j}:{37+2*j}]""")
        if n != 2:
            k(f'{lab}:')
    for n in (8, 4, 2, 1):
        for v in range(28, 44):
            k(f'v_add_f32_dpp v{v}, v{v}, v{v} row_ror:{n} row_mask:0xf bank_mask:0xf')
    for e in range(8):
        k(f'v_mov_b32 v{144+2*e}, v{28+e}\nv_mov_b32 v{145+2*e}, v{36+e}')
    k(f"""
    s_lshl_b32 s5, s4, 8
    s_add_u32 s5, s5, {SCR}
    v_lshlrev_b32 v15, 6, v14
    v_add_u32 v15, s5, v15
    v_lshl_add_u32 v16, v13, 2, v15
    v_cmp_eq_u32 vcc, 0, v13
    s_and_saveexec_b64 s[56:57], vcc
    ds_write_b128 v15, v[144:147]
    ds_write_b128 v15, v[148:151] offset:16
    ds_write_b128 v15, v[152:155] offset:32
    ds_write_b128 v15, v[156:159] offset:48
    s_mov_b64 exec, s[56:57]
    s_waitcnt lgkmcnt(0)
    ds_read_b32 v17, v16
    v_lshlrev_b32 v16, 2, v1
    s_lshl_b32 s5, s9, 8
    v_mov_b32 v21, v20
    v_mov_b32 v23, v22
    v_mov_b32 v25, v24
    v_mov_b32 v27, v26
    v_add_u32 v8, {PANEL}, v12
    v_add_u32 v9, {PANEL+40960}, v12
    s_waitcnt lgkmcnt(0)
    """)
    emit(f'buffer_atomic_add_f32 v17, v16, s[76:79], s5 offen {SC}', ('s', 0))
    k.stamp(4)
    b_setup(k)
    bpl = b_prefetch_list()
    wait_for([('p', 0)])
    k('s_barrier')

    def p_reads(kk):
        B = VB[kk & 1]
        return [f'ds_read_b128 v[{B+4*n}:{B+4*n+3}], v{8+(n>>1)} offset:{(n&1)*20480+1024*kk}' for n in range(4)]

    for l in p_reads(0):
        k(l)
    for kk in range(NK):
        nxt = p_reads(kk + 1) if kk + 1 < NK else []
        k('s_waitcnt lgkmcnt(0)')
        B = VB[kk & 1]
        m = 0
        for a in range(2):
            x = f'a[{8*kk+4*a}:{8*kk+4*a+3}]'
            for n in range(4):
                acc = ACC1 + 4 * (4 * a + n)
                k(f'v_mfma_f32_16x16x32_bf16 v[{acc}:{acc+3}], v[{B+4*n}:{B+4*n+3}], {x}, ' + ('0' if kk == 0 else f'v[{acc}:{acc+3}]'))
                if m < len(nxt):
                    k(nxt[m])
                if m in (5, 7) and bpl and kk >= 2:
                    emit(bpl.pop(0), ('b', 0))
                m += 1
    assert not bpl
    k.stamp(5)
    k(f"""
    s_lshl_b32 s3, s9, 4
    s_add_u32 s3, s3, s55
    s_lshl_b32 s3, s3, 2
    """)
    wait_for([('s', 0)])
    flag_store(k, 3)
    k('s_barrier')
    k.stamp(6)
    for n in range(4):
        regs = []
        for a in range(2):
            acc = ACC1 + 4 * (4 * a + n)
            r = 20 + 4 * a
            for p in range(2):
                x = acc + 2 * p
                t = 162 + 2 * (2 * a + p)
                k(f"""
                v_pk_fma_f32 v[{t}:{t+1}], v[{180+8*n+2*p}:{181+8*n+2*p}], v[{r+2}:{r+3}], v[{184+8*n+2*p}:{185+8*n+2*p}]
                v_pk_fma_f32 v[{x}:{x+1}], v[{x}:{x+1}], v[{r}:{r+1}], v[{t}:{t+1}]""")
                regs.append(x)
        gelu4(k, regs)
        k(f"""
        s_min_u32 s3, s69, {n}
        s_add_u32 s3, s3, s71
        s_lshl_b32 s3, s3, 16
        """)
        for a in range(2):
            acc = ACC1 + 4 * (4 * a + n)
            k(f"""
            v_cvt_pk_bf16_f32 v{acc}, v{acc}, v{acc+1}
            v_cvt_pk_bf16_f32 v{acc+1}, v{acc+2}, v{acc+3}
            buffer_store_dwordx2 v[{acc}:{acc+1}], v218, s[80:83], s3 offen offset:{512*a} {SC}""")
    for kk in range(NK):
        k(f"""
        s_cmp_eq_u32 s55, {kk & 15}
        s_cbranch_scc0 kgA_nd{kk}
        s_mov_b32 s3, {kk*128*1024}
        buffer_store_dwordx4 a[{8*kk}:{8*kk+3}], v5, s[64:67], s3 offen {SC}
        buffer_store_dwordx4 a[{8*kk+4}:{8*kk+7}], v5, s[64:67], s3 offen offset:1024 {SC}
kgA_nd{kk}:
        """)
    k.stamp(7)
    k(f"""
    s_lshl_b32 s54, s9, 4
    s_add_u32 s54, s54, s55
    s_lshl_b32 s54, s54, 2
    s_add_u32 s54, s54, 8192
    """)
    k.stamp(8)


WSLOT = 8192
NWS = 3
DIST = int(os.environ.get('KG_DIST', 3))
NSET = DIST + 1
ZBL = [('v', 48 + 28 * n) for n in range(4)] + [('a', 128 + 28 * n) for n in range(4)]
ZB = ZBL[:NSET]
WB = [16, 32]


def zr(Z, b):
    return f'{Z[0]}[{Z[1]+4*b}:{Z[1]+4*b+3}]'


def wdma(P):
    slot = P % NWS
    L = []
    for m in range(8):
        c = m >> 1
        rowc = 32 * (c >> 1) + 4 * (c & 1)
        L.append(f'''s_add_u32 m0, s96, {slot*32768+1024*m}
    s_add_u32 s14, s97, {rowc*4096 + 128*P}
    buffer_load_dwordx4 v{220+(m&1)}, s[88:91], s14 offen lds''')
    return L


def b_setup(k):
    srd(k, 88, 'wsp', 2048 * 4096)
    k(f"""
    v_lshrrev_b32 v16, 3, v1
    v_lshrrev_b32 v17, 2, v16
    v_lshlrev_b32 v17, 3, v17
    v_and_b32 v16, 3, v16
    v_add_u32 v17, v17, v16
    v_lshlrev_b32 v17, 12, v17
    v_and_b32 v16, 7, v1
    v_xor_b32 v16, v16, v14
    v_lshl_add_u32 v220, v16, 4, v17
    v_xor_b32 v221, 64, v220
    v_add_u32 v221, {16*4096}, v221
    s_lshl_b32 s96, s4, 13
    s_lshl_b32 s97, s98, 18
    s_lshl_b32 s3, s4, 10
    s_add_u32 s97, s97, s3
    s_lshl_b32 s7, s2, 15
    v_lshlrev_b32 v219, 4, v0
    """)


def b_prefetch_list():
    L = wdma(0) + wdma(1)
    for j in range(8):
        L.append(f"""buffer_load_dwordx4 v[{224+4*(j&3)}:{227+4*(j&3)}], v219, s[88:91], s7 offen
    s_add_u32 s7, s7, 4096""")
    return L


def zloads(ks):
    Z = ZB[ks % NSET]
    L = []
    for b in range(7):
        v = 12 if b < 4 else 3
        L.append(f'buffer_load_dwordx4 {zr(Z, b)}, v{v}, s[60:63], s12 offen offset:{1024*(b%4)} {SC}')
    L[-1] += f'\ns_add_u32 s12, s12, {54*1024}'
    return L


def wreads(ks):
    slot = (ks >> 1) % NWS
    W = WB[ks & 1]
    va = (6 if slot < 2 else 222) + (ks & 1)
    return [f'ds_read_b128 v[{W+4*c}:{W+4*c+3}], v{va} offset:{(slot%2)*32768+2048*c}' for c in range(4)]


def poll_loop(k, body, tag, sleep=2):
    pre = int(os.environ.get('KG_PRE' + tag, 0))
    sleep = int(os.environ.get('KG_SLP' + tag, sleep))
    if pre:
        k(f's_sleep {pre}')
    k(f"""
    s_mov_b32 s3, 0
kg_poll{tag}:
    {body}
    s_cmp_eq_u64 vcc, 0
    s_cbranch_scc1 kg_rdy{tag}
    s_add_u32 s3, s3, 1
    s_cmp_lt_u32 s3, {SPIN_MAX}
    s_cbranch_scc0 kg_rdy{tag}
    s_sleep {sleep}
    s_branch kg_poll{tag}
kg_rdy{tag}:
    """)


RB = [160, 168]
MB = [176, 180]
ACCM = 112


def tabreads(ks):
    R = RB[ks & 1]
    M = MB[ks & 1]
    return [f'ds_read_b128 v[{R}:{R+3}], v4 offset:{128*ks}',
            f'ds_read_b128 v[{R+4}:{R+7}], v4 offset:{128*ks+16}',
            f'ds_read_b128 v[{M}:{M+3}], v5 offset:{64*ks}']


def scale_ops(ks):
    W = WB[ks & 1]
    R = RB[ks & 1]
    L = []
    for c in range(4):
        for d in range(4):
            w = W + 4 * c + d
            t = 184 + 2 * ((4 * c + d) % 4)
            L.append(f"""v_lshlrev_b32 v{t}, 16, v{w}
    v_and_b32 v{t+1}, 0xffff0000, v{w}
    v_pk_mul_f32 v[{t}:{t+1}], v[{t}:{t+1}], v[{R+2*d}:{R+2*d+1}]
    v_cvt_pk_bf16_f32 v{w}, v{t}, v{t+1}""")
    return L


def phase_b(k):
    srd_ws(k, 60, 'Z2F')
    srd_ws(k, 64, 'Z1F')
    srd_ws(k, 68, 'PF')
    srd(k, 72, 'bsp', 4096)
    k(f"""
    s_mul_i32 s8, s99, 7
    s_min_u32 s8, s8, 47             ; phi0
    v_add_u32 v3, 4096, v12
    v_lshrrev_b32 v8, 2, v13
    v_lshlrev_b32 v8, 3, v8
    v_and_b32 v9, 3, v13
    v_add_u32 v8, v8, v9             ; row_local
    v_lshrrev_b32 v11, 1, v13
    v_xor_b32 v11, v11, v14
    v_lshlrev_b32 v11, 4, v11
    v_lshl_add_u32 v6, v13, 7, v11
    v_add_u32 v6, s96, v6
    v_xor_b32 v7, 64, v6
    v_add_u32 v222, 65536, v6
    v_add_u32 v223, 65536, v7
    s_mul_i32 s12, s4, {16*54}
    s_add_u32 s12, s12, s8
    s_lshl_b32 s12, s12, 10
    s_lshl_b32 s9, s98, 2
    s_add_u32 s9, s9, s4             ; tau
    s_lshl_b32 s13, s9, 10
    v_add_u32 v10, s13, v12
    v_lshrrev_b32 v217, 1, v10
    s_lshr_b32 s13, s4, 1
    s_lshl_b32 s13, s13, 5
    s_and_b32 s15, s4, 1
    s_lshl_b32 s15, s15, 2
    s_add_u32 s13, s13, s15
    s_lshl_b32 s15, s98, 6
    s_add_u32 s13, s13, s15
    s_lshl_b32 s13, s13, 1
    v_lshlrev_b32 v9, 1, v8
    buffer_load_ushort v206, v9, s[72:75], s13 offen
    s_lshl_b32 s10, s4, 12
    s_add_u32 s10, s10, {TAB}
    v_lshlrev_b32 v4, 5, v14
    v_add_u32 v4, s10, v4
    v_lshlrev_b32 v5, 4, v14
    v_mov_b32 v16, {ZERO}
    s_add_u32 s5, s10, 2048
    v_mov_b32 v17, s5
    v_cmp_eq_u32 vcc, 0, v13
    v_cndmask_b32 v16, v16, v17, vcc
    v_add_u32 v17, 1024, v17
    v_cmp_eq_u32 vcc, 1, v13
    v_cndmask_b32 v16, v16, v17, vcc
    v_add_u32 v5, v5, v16
    v_mov_b32 v16, 0
    v_mov_b32 v17, 0
    v_mov_b32 v18, 0
    v_mov_b32 v19, 0
    v_add_u32 v15, {ZERO}, v12
    ds_write_b128 v15, v[16:19]
    s_lshl_b32 s5, s4, 10
    s_lshr_b32 s6, s9, 1
    s_lshl_b32 s6, s6, 6
    s_lshl_b32 s7, s99, 3
    s_add_u32 s6, s6, s7
    v_and_b32 v2, 1, v1
    v_lshlrev_b32 v2, 2, v2
    s_waitcnt lgkmcnt(0)
    """)
    k('s_add_u32 s11, s6, 8192')
    poll_loop(k, f"""buffer_load_dwordx4 v[48:51], v12, s[84:87], s5 offen {SC}
    s_waitcnt vmcnt(0)
    v_min_u32 v48, v48, v49
    v_min3_u32 v48, v48, v50, v51
    v_cmp_eq_u32 vcc, 0, v48""", 'B', 16)
    flag_store(k, 54)
    for l in wreads(0):
        k(l)
    k.stamp(9)
    issued = [('f', 0)]

    def emit(l, tag):
        k(l)
        issued.append(tag)

    k('s_lshl_b32 s5, s4, 12\nv_lshlrev_b32 v15, 6, v1')
    for n in range(4):
        emit(f'buffer_load_dwordx4 v[{132+4*n}:{135+4*n}], v15, s[76:79], s5 offen offset:{16*n} {SC}', ('s', 0))
    for ks in range(2):
        for l in zloads(ks):
            emit(l, ('z', ks))
    def wait_for(tags, extra=''):
        idx = [i for i, t in enumerate(issued) if t in tags]
        n = len(issued) - 1 - max(idx)
        k(f's_waitcnt vmcnt({n}) {extra}')

    wait_for([('s', 0)])
    for e in range(8):
        m = 132 + 2 * e
        k(f"""
        v_mul_f32 v{m}, {f32(1.0/864)}, v{m}
        v_mov_b32 v15, {f32(1e-5)}
        v_fmac_f32 v15, {f32(1.0/864)}, v{m+1}
        v_fma_f32 v15, -v{m}, v{m}, v15
        v_max_f32 v15, {f32(1e-5)}, v15
        v_rsq_f32 v{148+e}, v15
        """)
    for d in range(4):
        m0, m1 = 132 + 4 * d, 134 + 4 * d
        k(f"""
        v_cvt_pk_bf16_f32 v{156+d}, v{m0}, v{m1}
        v_lshlrev_b32 v{m0+1}, 16, v{156+d}
        v_and_b32 v{m1+1}, 0xffff0000, v{156+d}
        v_sub_f32 v{m0}, v{m0}, v{m0+1}
        v_sub_f32 v{m1}, v{m1}, v{m1+1}
        v_cvt_pk_bf16_f32 v{184+d}, v{m0}, v{m1}
        """)
    k(f"""
    v_lshlrev_b32 v15, 5, v1
    v_add_u32 v15, s10, v15
    ds_write_b128 v15, v[148:151]
    ds_write_b128 v15, v[152:155] offset:16
    v_add_u32 v15, s10, v12
    ds_write_b128 v15, v[156:159] offset:2048
    ds_write_b128 v15, v[184:187] offset:3072
    s_waitcnt lgkmcnt(0)
    """)
    for l in tabreads(0):
        k(l)
    k('s_waitcnt lgkmcnt(0)')
    for l in scale_ops(0):
        k(l)
    nz = 2
    for ks in range(16):
        Z = ZB[ks % NSET]
        W = WB[ks & 1]
        M = MB[ks & 1]
        need = [('z', ks)] if not os.environ.get('KG_NOZ') else [('z', min(ks, 3))]
        if ks + 1 < 16 and (ks + 1) >> 1 >= 2 and not os.environ.get('KG_NOW'):
            need.append(('w', (ks + 1) >> 1))
        wait_for(need, 'lgkmcnt(0)' if os.environ.get('KG_NOSCALE') else '')
        early = []
        if ks + 1 < 16:
            early += [(None, l) for l in wreads(ks + 1) + tabreads(ks + 1)]
        mem = []
        cnt2 = 0 if not os.environ.get('KG_NOZ') else 2 if ks > 1 else 0
        while nz <= min(ks + DIST, 15) and cnt2 < 2:
            mem += [(('z', nz), l) for l in zloads(nz)]
            nz += 1
            cnt2 += 1
        if ks % 2 == 0 and (ks >> 1) + 2 < 8 and not os.environ.get('KG_NOW'):
            P = (ks >> 1) + 2
            mem += [(('w', P), l) for l in wdma(P)]
        sc = scale_ops(ks + 1) if (ks + 1 < 16 and not os.environ.get('KG_NOSCALE')) else []
        MF = []
        for c in range(4):
            for b in range(7):
                a = 4 * (7 * c + b)
                cc = '0' if ks == 0 else f'a[{a}:{a+3}]'
                MF.append(f'v_mfma_f32_16x16x32_bf16 a[{a}:{a+3}], {zr(Z, b)}, v[{W+4*c}:{W+4*c+3}], {cc}')
            a = ACCM + 4 * c
            cc = '0' if ks == 0 else f'a[{a}:{a+3}]'
            MF.append(f'v_mfma_f32_16x16x32_bf16 a[{a}:{a+3}], v[{M}:{M+3}], v[{W+4*c}:{W+4*c+3}], {cc}')
        mi = 0
        for n, mm in enumerate(MF):
            k(mm)
            if n < len(early):
                k(early[n][1])
            if mi < len(mem) and (n >= len(early) or len(mem) > 24):
                t, l = mem[mi]
                k(l)
                issued.append(t)
                mi += 1
            if n == 13 and sc:
                k('s_waitcnt lgkmcnt(0)')
            if 14 <= n < 30 and sc:
                k(sc[n - 14])
        assert mi == len(mem), (ks, mi, len(mem))
    k.stamp(10)
    poll_loop(k, f"""buffer_load_dword v15, v2, s[84:87], s11 offen {SC}
    s_waitcnt vmcnt(0)
    v_cmp_eq_u32 vcc, 0, v15""", 'Z', 4)
    for b in range(7):
        k(f"""
        s_add_u32 s13, s8, {b}
        s_lshl_b32 s{76+b}, s13, 16
        buffer_load_dwordx2 v[{192+2*b}:{193+2*b}], v217, s[64:67], s{76+b} offen {SC}""")
    for c in range(4):
        k(f'v_accvgpr_read_b32 v{16+2*c}, a{ACCM+4*c}\nv_accvgpr_read_b32 v{17+2*c}, a{ACCM+4*c+1}')
    k(f"""
    s_lshl_b32 s5, s4, 8
    s_add_u32 s5, s5, {CORR}
    v_lshlrev_b32 v15, 2, v13
    v_add_u32 v11, s5, v15
    v_add_f32 v16, v16, v17
    v_add_f32 v18, v18, v19
    v_add_f32 v20, v20, v21
    v_add_f32 v22, v22, v23
    s_mov_b64 exec, 0xffff
    ds_write_b32 v11, v16
    ds_write_b32 v11, v18 offset:64
    ds_write_b32 v11, v20 offset:128
    ds_write_b32 v11, v22 offset:192
    s_mov_b64 exec, -1
    s_barrier
    """)
    for w in range(4):
        k(f"""
        s_cmp_eq_u32 s4, {w}
        s_cbranch_scc0 kgB_red_{w}""")
        for c in range(4):
            if c == w:
                continue
            src = (w - c - 1) % 4
            k(f'v_add_u32 v11, {(c*3+src)*7168}, v12')
            for b in range(7):
                a = 4 * (7 * c + b)
                k(f'ds_write_b128 v11, a[{a}:{a+3}] offset:{1024*b}')
        for n in range(28):
            k(f'v_accvgpr_read_b32 v{16+n}, a{28*w+n}')
        k(f'kgB_red_{w}:')
    k(f"""
    s_mul_i32 s14, s4, {3*7168}
    v_add_u32 v11, s14, v12
    s_lshl_b32 s5, s4, 6
    s_add_u32 s5, s5, {CORR}
    v_add_u32 v15, s5, v15
    s_waitcnt lgkmcnt(0)
    s_barrier
    ds_read_b32 v140, v15
    ds_read_b32 v141, v15 offset:256
    ds_read_b32 v142, v15 offset:512
    ds_read_b32 v143, v15 offset:768
    """)
    for b in range(3):
        for s in range(3):
            r = 48 + 12 * b + 4 * s
            k(f'ds_read_b128 v[{r}:{r+3}], v11 offset:{s*7168+1024*b}')
    k(f"""
    s_waitcnt lgkmcnt(9) vmcnt(0)
    v_lshlrev_b32 v206, 16, v206
    v_add_f32 v140, v140, v141
    v_add_f32 v142, v142, v143
    v_sub_f32 v206, v206, v140
    v_sub_f32 v206, v206, v142
    v_mov_b32 v207, v206
    """)
    for b in range(3, 7):
        for s in range(3):
            r = 48 + 12 * b + 4 * s
            k(f'ds_read_b128 v[{r}:{r+3}], v11 offset:{s*7168+1024*b}')
    for b in range(7):
        k(f's_waitcnt lgkmcnt({min(15, 18-3*b)})')
        o = 16 + 4 * b
        r = 48 + 12 * b
        for p in range(2):
            k(f"""
            v_pk_add_f32 v[{o+2*p}:{o+2*p+1}], v[{o+2*p}:{o+2*p+1}], v[{r+2*p}:{r+2*p+1}]
            v_pk_add_f32 v[{r+4+2*p}:{r+4+2*p+1}], v[{r+4+2*p}:{r+4+2*p+1}], v[{r+8+2*p}:{r+8+2*p+1}]
            v_pk_add_f32 v[{o+2*p}:{o+2*p+1}], v[{o+2*p}:{o+2*p+1}], v[206:207]
            v_lshlrev_b32 v{r}, 16, v{192+2*b+p}
            v_and_b32 v{r+1}, 0xffff0000, v{192+2*b+p}
            v_pk_add_f32 v[{o+2*p}:{o+2*p+1}], v[{o+2*p}:{o+2*p+1}], v[{r+4+2*p}:{r+4+2*p+1}]
            v_pk_mul_f32 v[{o+2*p}:{o+2*p+1}], v[{o+2*p}:{o+2*p+1}], v[{r}:{r+1}]
            v_cvt_pk_bf16_f32 v{192+2*b+p}, v{o+2*p}, v{o+2*p+1}
            """)
    k(f"""
    s_add_u32 s5, s8, 1
    s_lshr_b32 s5, s5, 1
    s_lshl_b32 s5, s5, 17
    s_add_u32 s6, s5, {1<<17}
    s_add_u32 s7, s5, {2<<17}
    s_and_b32 s13, s8, 1
    s_cmp_eq_u32 s13, 0
    s_cbranch_scc0 kgB_odd
    s_add_u32 s13, s5, {3<<17}
    buffer_store_dwordx4 v[192:195], v10, s[68:71], s5 offen {SC}
    buffer_store_dwordx4 v[196:199], v10, s[68:71], s6 offen {SC}
    buffer_store_dwordx4 v[200:203], v10, s[68:71], s7 offen {SC}
    buffer_store_dwordx2 v[204:205], v10, s[68:71], s13 offen {SC}
    s_branch kgB_st
kgB_odd:
    s_sub_u32 s13, s5, {1<<17}
    buffer_store_dwordx4 v[194:197], v10, s[68:71], s5 offen {SC}
    buffer_store_dwordx4 v[198:201], v10, s[68:71], s6 offen {SC}
    buffer_store_dwordx4 v[202:205], v10, s[68:71], s7 offen {SC}
    buffer_store_dwordx2 v[192:193], v10, s[68:71], s13 offen offset:8 {SC}
kgB_st:
    """)
    k(f"""
    s_lshl_b32 s3, s98, 3
    s_add_u32 s3, s3, s99
    s_lshl_b32 s3, s3, 2
    s_add_u32 s3, s3, s4
    s_lshl_b32 s3, s3, 2
    s_add_u32 s3, s3, 4096
    v_mov_b32 v15, 0
    v_mov_b32 v16, 1
    s_waitcnt vmcnt(0)
    s_mov_b64 exec, 1
    buffer_store_dword v16, v15, s[84:87], s3 offen {SC}
    s_mov_b64 exec, -1
    """)
    k.stamp(11)
    c_prefetch_setup(k)
    for l in c_prefetch_list():
        k(l)


WOB = 80
PSET = [16 + 16 * n for n in range(4)]


def c_prefetch_setup(k):
    srd_ws(k, 56, 'WOF')
    k(f"""
    s_mul_i32 s5, s4, {7*40}
    s_mul_i32 s6, s99, 5
    s_add_u32 s5, s5, s6
    s_lshl_b32 s5, s5, 10
    """)


def c_prefetch_list():
    L = []
    for ks in range(7):
        for b in range(5):
            v = 12 if b < 4 else 3
            a = WOB + 20 * ks + 4 * b
            L.append(f'buffer_load_dwordx4 a[{a}:{a+3}], v{v}, s[56:59], s5 offen offset:{1024*(b%4)}')
        L[-1] += f'\ns_add_u32 s5, s5, {40*1024}'
    return L


def ploads(ks):
    P = PSET[ks % 4]
    L = [f'buffer_load_dwordx4 v[{P+4*c}:{P+4*c+3}], v12, s[60:63], s12 offen offset:{1024*c} {SC}' for c in range(4)]
    L[-1] += f'\ns_add_u32 s12, s12, {128*1024}'
    return L


def phase_c(k):
    srd_ws(k, 60, 'PF')
    srd_ws(k, 64, 'X1F')
    srd_ws(k, 68, 'MODF')
    srd(k, 72, 'out', 2048 * 1280)
    k(f'''
    s_mul_i32 s8, s99, 5             ; delta0
    v_mul_u32_u24 v4, 1280, v8
    v_lshl_add_u32 v4, v14, 4, v4
    v_lshlrev_b32 v5, 5, v14
    s_mul_i32 s12, s4, {7*128}
    s_lshl_b32 s10, s98, 2
    s_add_u32 s12, s12, s10
    s_lshl_b32 s12, s12, 10
    s_lshr_b32 s14, s4, 1
    s_lshl_b32 s14, s14, 5
    s_and_b32 s15, s4, 1
    s_lshl_b32 s15, s15, 2
    s_add_u32 s14, s14, s15
    s_lshl_b32 s15, s98, 6
    s_add_u32 s14, s14, s15
    s_mul_i32 s13, s14, 1280
    ''')
    for b in range(5):
        k(f'''
        s_add_u32 s14, s8, {b}
        s_lshr_b32 s15, s14, 1           ; dblk
        s_and_b32 s14, s14, 1            ; h
        s_lshl_b32 s5, s15, 17
        s_lshl_b32 s6, s14, 3
        s_add_u32 s{76+b}, s5, s6        ; x1f soffset
        s_lshl_b32 s5, s15, 6
        s_add_u32 s5, s5, s6
        s_add_u32 s{88+b}, s5, s13
        s_lshl_b32 s5, s5, 1
        s_add_u32 s5, s5, {5*640*4}
        buffer_load_dwordx4 v[{228+4*b}:{231+4*b}], v5, s[68:71], s5 offen
        ''')
    k(f'''
    s_lshl_b32 s3, s98, 7
    s_lshl_b32 s5, s4, 5
    s_add_u32 s3, s3, s5
    s_add_u32 s3, s3, 4096
    v_lshlrev_b32 v16, 2, v1
    v_add_u32 v16, s3, v16
    s_lshr_b32 s5, s8, 1
    s_add_u32 s5, s5, 8
    v_add_u32 v17, s5, v1
    v_and_b32 v17, 15, v17
    v_lshlrev_b32 v18, 2, v17
    s_lshr_b32 s5, s9, 1
    s_lshl_b32 s5, s5, 6
    s_add_u32 s5, s5, 8192
    v_add_u32 v18, s5, v18
    v_cmp_gt_u32 vcc, 8, v1
    v_cndmask_b32 v16, v18, v16, vcc
    ''')
    k('s_mov_b64 exec, 0x7ff')
    poll_loop(k, f"""buffer_load_dword v15, v16, s[84:87], 0 offen {SC}
    s_waitcnt vmcnt(0)
    v_cmp_eq_u32 vcc, 0, v15""", 'C', 2)
    k('s_mov_b64 exec, -1')
    k.stamp(12)
    issued = []

    def emit(l, tag):
        k(l)
        issued.append(tag)

    for ks in range(3):
        for l in ploads(ks):
            emit(l, ks)
    for b in range(5):
        emit(f'buffer_load_dwordx2 v[{196+2*b}:{197+2*b}], v10, s[64:67], s{76+b} offen {SC}', -1)
    np_ = 3
    for ks in range(7):
        P = PSET[ks % 4]
        last = max(i for i, t in enumerate(issued) if t == ks)
        k(f's_waitcnt vmcnt({len(issued) - 1 - last})')
        todo = []
        if np_ <= min(ks + 3, 6):
            todo = [(np_, l) for l in ploads(np_)]
            np_ += 1
        m = cnt = 0
        for c in range(4):
            for b in range(5):
                a = 4 * (5 * c + b)
                w = WOB + 20 * ks + 4 * b
                cc = '0' if ks == 0 else f'a[{a}:{a+3}]'
                k(f'v_mfma_f32_16x16x32_bf16 a[{a}:{a+3}], a[{w}:{w+3}], v[{P+4*c}:{P+4*c+3}], {cc}')
                m += 1
                if m % 2 == 0 and cnt < len(todo):
                    t, l = todo[cnt]
                    k(l)
                    issued.append(t)
                    cnt += 1
    k.stamp(13)
    k('s_barrier')
    for w in range(4):
        k(f'''
        s_cmp_eq_u32 s4, {w}
        s_cbranch_scc0 kgC_red_{w}''')
        for c in range(4):
            if c == w:
                continue
            src = (w - c - 1) % 4
            for b in range(5):
                a = 4 * (5 * c + b)
                k(f'ds_write_b128 v12, a[{a}:{a+3}] offset:{(c*3+src)*5120+1024*b}')
        for n in range(20):
            k(f'v_accvgpr_read_b32 v{16+n}, a{20*w+n}')
        k(f'kgC_red_{w}:')
    k(f'''
    s_mul_i32 s14, s4, {3*5120}
    v_add_u32 v11, s14, v12
    s_waitcnt lgkmcnt(0)
    s_barrier
    ''')
    for b in range(5):
        for s in range(3):
            r = 48 + 12 * b + 4 * s
            k(f'ds_read_b128 v[{r}:{r+3}], v11 offset:{s*5120+1024*b}')
    for b in range(5):
        k(f's_waitcnt lgkmcnt({12-3*b})')
        o = 16 + 4 * b
        r = 48 + 12 * b
        for p in range(2):
            k(f'''
            v_pk_add_f32 v[{o+2*p}:{o+2*p+1}], v[{o+2*p}:{o+2*p+1}], v[{r+2*p}:{r+2*p+1}]
            v_pk_add_f32 v[{r+4+2*p}:{r+4+2*p+1}], v[{r+4+2*p}:{r+4+2*p+1}], v[{r+8+2*p}:{r+8+2*p+1}]
            v_lshlrev_b32 v{r}, 16, v{196+2*b+p}
            v_and_b32 v{r+1}, 0xffff0000, v{196+2*b+p}
            v_pk_add_f32 v[{o+2*p}:{o+2*p+1}], v[{o+2*p}:{o+2*p+1}], v[{r+4+2*p}:{r+4+2*p+1}]
            v_pk_fma_f32 v[{o+2*p}:{o+2*p+1}], v[{o+2*p}:{o+2*p+1}], v[{228+4*b+2*p}:{229+4*b+2*p}], v[{r}:{r+1}]
            v_cvt_pk_bf16_f32 v{196+2*b+p}, v{o+2*p}, v{o+2*p+1}
            ''')
        k(f'buffer_store_dwordx2 v[{196+2*b}:{197+2*b}], v4, s[72:75], s{88+b} offen')
    k.stamp(14)


def make_kg():
    k = Kern('gemm_kernel', 256, 256, KG_LDS)
    k('''
    s_cmp_ge_u32 s2, 256
    s_cbranch_scc1 kg_exit
    ''')
    k.stamp(0)
    load_ptrs(k)
    k(f'''
    s_and_b32 s3, s2, 7              ; xcd
    s_lshr_b32 s5, s2, 3             ; kx
    s_lshr_b32 s6, s3, 1             ; xh
    s_and_b32 s7, s3, 1              ; xl
    s_lshl_b32 s54, s6, 2
    s_and_b32 s8, s5, 3
    s_add_u32 s54, s54, s8
    s_lshl_b32 s55, s7, 3
    s_lshr_b32 s8, s5, 2
    s_add_u32 s55, s55, s8
    s_lshl_b32 s98, s6, 3
    s_and_b32 s8, s5, 7
    s_add_u32 s98, s98, s8
    s_lshl_b32 s99, s7, 2
    s_lshr_b32 s8, s5, 3
    s_add_u32 s99, s99, s8
    v_and_b32 v1, 63, v0
    v_lshrrev_b32 v15, 6, v0
    v_lshlrev_b32 v12, 4, v1
    v_and_b32 v13, 15, v1
    v_lshrrev_b32 v14, 4, v1
    v_readfirstlane_b32 s4, v15
    s_waitcnt lgkmcnt(0)
    ''')
    phase_a(k)
    phase_b(k)
    phase_c(k)
    if os.environ.get('STAMP'):
        k('s_waitcnt vmcnt(0)')
    k.stamp(15)
    k.stamp_flush(2)
    k('kg_exit:\ns_endpgm')
    return k
```

```python
import os
from asmlib import Kern
from layout import WS, XS
from gen_k1 import f32, load_ptrs, srd, srd_ws

SC = 'sc1'
SPIN_MAX = 100000


NS = 5
SLOT = 12288
PANEL = 65536
CONST = PANEL + 81920
SCR = CONST + 1024
KG_LDS = SCR + 1024
TAB = 98304
ZERO = TAB + 4 * 4096
CORR = ZERO + 1024
NK = 20
FK = int(os.environ.get('KG_FK', 4))
VB = [28, 44]
ACC2 = 60
ACC1 = 92
GRAM = 124
SUM = 132
ONES = 140
C0 = -2.0 * 0.7978845608028654 * 1.4426950408889634
C1 = C0 * 0.044715


def gelu4(k, regs, t0=162):
    T = [t0 + 2 * g for g in range(len(regs))]
    z = list(zip(regs, T))
    for x, t in z:
        k(f'v_pk_mul_f32 v[{t}:{t+1}], v[{x}:{x+1}], v[{x}:{x+1}]')
    for x, t in z:
        k(f'v_pk_fma_f32 v[{t}:{t+1}], v[{t}:{t+1}], s[72:73], v[176:177]')
    for x, t in z:
        k(f'v_pk_mul_f32 v[{t}:{t+1}], v[{t}:{t+1}], v[{x}:{x+1}]')
    for x, t in z:
        k(f'v_exp_f32 v{t}, v{t}\nv_exp_f32 v{t+1}, v{t+1}')
    for x, t in z:
        k(f'v_pk_add_f32 v[{t}:{t+1}], v[{t}:{t+1}], s[74:75]')
    for x, t in z:
        k(f'v_rcp_f32 v{t}, v{t}\nv_rcp_f32 v{t+1}, v{t+1}')
    for x, t in z:
        k(f'v_pk_mul_f32 v[{x}:{x+1}], v[{x}:{x+1}], v[{t}:{t+1}]')


def a_dma(st):
    return [f"""s_add_u32 m0, s10, {(st % NS)*SLOT}
    buffer_load_dwordx4 v12, s[60:63], s12 offen lds""",
            'buffer_load_dwordx4 v3, s[56:59], s11 offen offset:1024 lds',
            f"""buffer_load_dwordx4 v4, s[56:59], s11 offen offset:2048 lds
    s_add_u32 s11, s11, {32*XS}
    s_add_u32 s12, s12, {108*1024}"""]


def a_panel(kk):
    return f"""s_add_u32 m0, s15, {kk*1024}
    buffer_load_dwordx4 v12, s[60:63], s13 offen lds
    s_add_u32 s13, s13, {108*1024}"""


def a_frags(st):
    base = (st % NS) * SLOT
    L = []
    for a in range(2):
        x = 8 * st + 4 * a
        L.append(f'ds_read_b64_tr_b16 a[{x}:{x+1}], v{6+a} offset:{base}')
        L.append(f'ds_read_b64_tr_b16 a[{x+2}:{x+3}], v{6+a} offset:{base+1024}')
    B = VB[st & 1]
    for n in range(4):
        L.append(f'ds_read_b128 v[{B+4*n}:{B+4*n+3}], v12 offset:{base+3072*n}')
    return L


def flag_store(k, soff):
    k(f"""
    v_mov_b32 v15, 0
    v_mov_b32 v16, 1
    s_mov_b64 exec, 1
    buffer_store_dword v16, v15, s[84:87], s{soff} offen {SC}
    s_mov_b64 exec, -1
    """)


def phase_a(k):
    xo, xs = WS['X1T']
    srd(k, 56, 'ws', xs + 1024, xo - 1024)
    srd_ws(k, 60, 'WPF')
    srd_ws(k, 64, 'X1F')
    srd_ws(k, 76, 'CSP')
    srd_ws(k, 80, 'BIP')
    k(f"""
    s_lshl_b32 s9, s54, 2
    s_add_u32 s9, s9, s4
    s_mul_i32 s10, s4, 3072
    s_lshl_b32 s11, s54, 8
    s_lshr_b32 s5, s55, 1
    s_mul_i32 s5, s5, 7
    s_min_u32 s5, s5, 47             ; base
    s_and_b32 s6, s55, 1             ; type
    s_lshl_b32 s7, s6, 2
    s_add_u32 s70, s5, s7            ; z2base
    s_mul_i32 s7, s6, 3
    s_add_u32 s71, s5, s7            ; z1base
    s_sub_u32 s68, 3, s6             ; z2max
    s_add_u32 s69, s6, 2             ; z1max
    s_min_u32 s12, s4, s68
    s_add_u32 s12, s12, s70
    s_add_u32 s12, s12, 54
    s_lshl_b32 s12, s12, 10          ; z2 slot w
    s_min_u32 s13, s4, s69
    s_add_u32 s13, s13, s71
    s_lshl_b32 s13, s13, 10          ; z1 slot w
    s_mul_i32 s15, s4, 20480
    s_add_u32 s15, s15, {PANEL}
    s_and_b32 s3, s4, 1
    s_lshl_b32 s3, s3, 3
    v_lshlrev_b32 v16, 1, v14
    v_add_u32 v16, s3, v16
    v_xor_b32 v16, v16, v13
    v_lshlrev_b32 v16, 4, v16
    v_mul_u32_u24 v3, {XS}, v14
    v_add_u32 v3, v3, v16
    s_mul_i32 s3, s4, {8*XS}
    v_add_u32 v3, s3, v3
    v_add_u32 v4, {4*XS-1024}, v3
    """)
    issued = []

    def emit(l, tag):
        k(l)
        issued.append(tag)

    def wait_for(tags, extra=''):
        idx = [i for i, t in enumerate(issued) if t in tags]
        n = len(issued) - 1 - max(idx)
        k(f's_waitcnt vmcnt({n}) {extra}')

    for st in range(NS):
        for l in a_dma(st):
            emit(l, ('a', st))
    k(f"""
    v_bfe_u32 v17, v0, 4, 2
    v_min_u32 v18, s68, v17
    v_add_u32 v18, s70, v18
    v_add_u32 v18, 54, v18
    v_min_u32 v19, s69, v17
    v_add_u32 v19, s71, v19
    v_and_b32 v17, 64, v0
    v_cmp_eq_u32 vcc, 0, v17
    v_cndmask_b32 v17, v19, v18, vcc ; phi'
    v_lshrrev_b32 v18, 1, v17
    v_lshlrev_b32 v18, 5, v18
    v_and_b32 v17, 1, v17
    v_lshl_add_u32 v18, v17, 2, v18
    v_lshrrev_b32 v17, 2, v13
    v_lshl_add_u32 v18, v17, 3, v18
    v_and_b32 v17, 3, v13
    v_add_u32 v18, v18, v17
    v_lshlrev_b32 v18, 2, v18
    s_mov_b32 s14, {1728*4}
    s_mov_b32 s7, {2*1728*4}
    s_mov_b32 s3, {3*1728*4}
    s_cmp_ge_u32 s4, 2
    s_cbranch_scc1 kgA_cb
    buffer_load_dword v20, v18, s[76:79], 0 offen
    buffer_load_dword v21, v18, s[76:79], s14 offen
    buffer_load_dword v22, v18, s[76:79], s7 offen
    buffer_load_dword v23, v18, s[76:79], s3 offen
    s_branch kgA_cj
kgA_cb:
    buffer_load_dword v20, v18, s[80:83], 0 offen
    buffer_load_dword v21, v18, s[80:83], s14 offen
    buffer_load_dword v22, v18, s[80:83], s7 offen
    buffer_load_dword v23, v18, s[80:83], s3 offen
kgA_cj:
    s_lshl_b32 s3, s9, 11
    v_add_u32 v5, s3, v12
    v_lshrrev_b32 v218, 1, v5
    v_bfe_u32 v16, v1, 2, 2
    v_bfe_u32 v17, v1, 1, 1
    s_lshl_b32 s3, s4, 2
    v_add_u32 v17, s3, v17
    v_and_b32 v18, 1, v14
    v_lshlrev_b32 v18, 3, v18
    v_lshl_add_u32 v18, v16, 1, v18
    v_xor_b32 v17, v17, v18
    v_lshlrev_b32 v6, 4, v17
    v_lshl_add_u32 v6, v16, 8, v6
    v_mul_u32_u24 v18, 3072, v14
    v_add_u32 v6, v6, v18
    v_and_b32 v18, 1, v1
    v_lshl_add_u32 v6, v18, 3, v6
    v_add_u32 v6, 1024, v6
    v_xor_b32 v7, 32, v6
    s_mov_b32 s72, {f32(C1)}
    s_mov_b32 s73, {f32(C1)}
    s_mov_b32 s74, 1.0
    s_mov_b32 s75, 1.0
    v_mov_b32 v176, {f32(C0)}
    v_mov_b32 v177, {f32(C0)}
    """)
    issued += [('c', 0)] * 4
    for r in range(4):
        k(f'v_mov_b32 v{ONES+r}, 0x3f803f80')
    srd_ws(k, 76, 'STAT')
    srd_ws(k, 80, 'Z1F')
    srd_ws(k, 92, 'Z2F')
    srd_ws(k, 84, 'FLG')
    k.stamp(1)
    wait_for([('a', 0)])
    k('s_barrier')
    for l in a_frags(0):
        k(l)
    k.stamp(2)
    for kk in range(NK):
        fill = []
        if kk + 1 < NK:
            wait_for([('a', kk + 1)], 'lgkmcnt(0)')
            k('s_barrier')
            fill = [(None, l) for l in a_frags(kk + 1)]
            if kk + NS < NK:
                fill += [(('a', kk + NS), l) for l in a_dma(kk + NS)]
        else:
            k('s_waitcnt lgkmcnt(0)')
        fill.append((('p', 0), a_panel(kk)))
        B = VB[kk & 1]
        z = kk == 0
        M = []
        for a in range(2):
            x = f'a[{8*kk+4*a}:{8*kk+4*a+3}]'
            for n in range(4):
                acc = ACC2 + 4 * (4 * a + n)
                M.append(f'v_mfma_f32_16x16x32_bf16 v[{acc}:{acc+3}], {x}, v[{B+4*n}:{B+4*n+3}], ' + ('0' if z else f'v[{acc}:{acc+3}]'))
            g = GRAM + 4 * a
            s_ = SUM + 4 * a
            M.append(f'v_mfma_f32_16x16x32_bf16 v[{g}:{g+3}], {x}, {x}, ' + ('0' if z else f'v[{g}:{g+3}]'))
            M.append(f'v_mfma_f32_16x16x32_bf16 v[{s_}:{s_+3}], {x}, v[{ONES}:{ONES+3}], ' + ('0' if z else f'v[{s_}:{s_+3}]'))
        for n, mm in enumerate(M):
            k(mm)
            if n < len(fill):
                t, l = fill[n]
                k(l)
                if t:
                    issued.append(t)
        if kk == 6:
            k(f"""
            v_add_f32 v20, v20, v21
            v_add_f32 v22, v22, v23
            v_add_f32 v20, v20, v22
            v_lshlrev_b32 v16, 2, v0
            v_add_u32 v16, {CONST}, v16
            ds_write_b32 v16, v20
            """)
    k.stamp(3)
    k(f"""
    v_mul_u32_u24 v16, 80, v14
    v_lshlrev_b32 v17, 2, v13
    v_add_u32 v17, {CONST}, v17
    v_lshlrev_b32 v15, 4, v14
    v_add_u32 v15, {CONST}, v15
    """)
    for a in range(2):
        for r in range(4):
            g = GRAM + 4 * a + r
            k(f'ds_bpermute_b32 v{g}, v16, v{g} offset:{4*r}')
    for n in range(4):
        k(f"""
        ds_read_b32 v{144+4*n}, v17 offset:{64*n}
        ds_read_b32 v{146+4*n}, v17 offset:{512+64*n}""")
    k('s_waitcnt lgkmcnt(8)')
    for e in range(8):
        g = GRAM + e
        s_ = SUM + e
        t = 162 + (e & 3)
        k(f"""
        v_mul_f32 v{s_}, {f32(1.0/640)}, v{s_}
        v_mov_b32 v{t}, {f32(1e-5)}
        v_fmac_f32 v{t}, {f32(1.0/640)}, v{g}
        v_fma_f32 v{t}, -v{s_}, v{s_}, v{t}
        v_max_f32 v{t}, {f32(1e-5)}, v{t}
        v_rsq_f32 v{g}, v{t}
        v_mul_f32 v{s_}, -v{s_}, v{g}
        """)
    k(f"""
    v_and_b32 v18, 3, v13
    v_lshrrev_b32 v19, 2, v13
    v_lshl_add_u32 v19, v19, 4, v13
    v_lshlrev_b32 v19, 2, v19
    v_cmp_eq_u32 s[56:57], 1, v18
    v_cmp_eq_u32 s[58:59], 2, v18
    v_cmp_eq_u32 vcc, 3, v18
    """)
    for a in range(2):
        for (src, dst) in ((GRAM + 4 * a, 20 + 4 * a), (SUM + 4 * a, 22 + 4 * a)):
            k(f"""
            v_cndmask_b32 v{dst}, v{src}, v{src+1}, s[56:57]
            v_cndmask_b32 v{dst}, v{dst}, v{src+2}, s[58:59]
            v_cndmask_b32 v{dst}, v{dst}, v{src+3}, vcc
            ds_bpermute_b32 v{dst}, v19, v{dst}
            """)
    for n in range(4):
        k(f"""
        ds_read_b128 v[{180+8*n}:{183+8*n}], v15 offset:{256+64*n}
        ds_read_b128 v[{184+8*n}:{187+8*n}], v15 offset:{768+64*n}""")
    k('s_waitcnt lgkmcnt(12)')
    for n in range(4):
        k(f'v_mov_b32 v{145+4*n}, v{144+4*n}\nv_mov_b32 v{147+4*n}, v{146+4*n}')
    for e in range(16):
        k(f'v_mov_b32 v{28+e}, 0')
    k(f"""
    s_mul_i32 s3, s9, 54
    s_add_u32 s3, s3, s70
    """)
    for n in range(4):
        regs = []
        for a in range(2):
            acc = ACC2 + 4 * (4 * a + n)
            for p in range(2):
                x = acc + 2 * p
                g = GRAM + 4 * a + 2 * p
                s_ = SUM + 4 * a + 2 * p
                t = 162 + 2 * (2 * a + p)
                k(f"""
                v_pk_fma_f32 v[{t}:{t+1}], v[{144+4*n}:{145+4*n}], v[{s_}:{s_+1}], v[{146+4*n}:{147+4*n}]
                v_pk_fma_f32 v[{x}:{x+1}], v[{x}:{x+1}], v[{g}:{g+1}], v[{t}:{t+1}]""")
                regs.append(x)
        gelu4(k, regs)
        o = 44 + 4 * n
        for j, x in enumerate(regs):
            k(f'v_cvt_pk_bf16_f32 v{o+j}, v{x}, v{x+1}')
        k(f"""
        s_min_u32 s5, s68, {n}
        s_add_u32 s5, s5, s3
        s_lshl_b32 s5, s5, 10""")
        emit(f'buffer_store_dwordx4 v[{o}:{o+3}], v12, s[92:95], s5 offen {SC}', ('s', 0))
        lab = f'kgA_ns{n}'
        if n == 3:
            k(f's_cmp_eq_u32 s68, 3\ns_cbranch_scc0 {lab}')
        elif n < 2:
            k(f's_cmp_eq_u32 s55, 14\ns_cbranch_scc1 {lab}')
        for j, x in enumerate(regs):
            k(f"""
            v_pk_add_f32 v[{28+2*j}:{29+2*j}], v[{28+2*j}:{29+2*j}], v[{x}:{x+1}]
            v_pk_fma_f32 v[{36+2*j}:{37+2*j}], v[{x}:{x+1}], v[{x}:{x+1}], v[{36+2*j}:{37+2*j}]""")
        if n != 2:
            k(f'{lab}:')
    for n in (8, 4, 2, 1):
        for v in range(28, 44):
            k(f'v_add_f32_dpp v{v}, v{v}, v{v} row_ror:{n} row_mask:0xf bank_mask:0xf')
    for e in range(8):
        k(f'v_mov_b32 v{144+2*e}, v{28+e}\nv_mov_b32 v{145+2*e}, v{36+e}')
    k(f"""
    s_lshl_b32 s5, s4, 8
    s_add_u32 s5, s5, {SCR}
    v_lshlrev_b32 v15, 6, v14
    v_add_u32 v15, s5, v15
    v_lshl_add_u32 v16, v13, 2, v15
    v_cmp_eq_u32 vcc, 0, v13
    s_and_saveexec_b64 s[56:57], vcc
    ds_write_b128 v15, v[144:147]
    ds_write_b128 v15, v[148:151] offset:16
    ds_write_b128 v15, v[152:155] offset:32
    ds_write_b128 v15, v[156:159] offset:48
    s_mov_b64 exec, s[56:57]
    s_waitcnt lgkmcnt(0)
    ds_read_b32 v17, v16
    v_lshlrev_b32 v16, 2, v1
    s_lshl_b32 s5, s9, 8
    v_mov_b32 v21, v20
    v_mov_b32 v23, v22
    v_mov_b32 v25, v24
    v_mov_b32 v27, v26
    v_add_u32 v8, {PANEL}, v12
    v_add_u32 v9, {PANEL+40960}, v12
    s_waitcnt lgkmcnt(0)
    """)
    emit(f'buffer_atomic_add_f32 v17, v16, s[76:79], s5 offen {SC}', ('s', 0))
    k.stamp(4)
    b_setup(k)
    bpl = b_prefetch_list()
    wait_for([('p', 0)])
    k('s_barrier')

    def p_reads(kk):
        B = VB[kk & 1]
        return [f'ds_read_b128 v[{B+4*n}:{B+4*n+3}], v{8+(n>>1)} offset:{(n&1)*20480+1024*kk}' for n in range(4)]

    for l in p_reads(0):
        k(l)
    for kk in range(NK):
        nxt = p_reads(kk + 1) if kk + 1 < NK else []
        k('s_waitcnt lgkmcnt(0)')
        B = VB[kk & 1]
        m = 0
        for a in range(2):
            x = f'a[{8*kk+4*a}:{8*kk+4*a+3}]'
            for n in range(4):
                acc = ACC1 + 4 * (4 * a + n)
                k(f'v_mfma_f32_16x16x32_bf16 v[{acc}:{acc+3}], v[{B+4*n}:{B+4*n+3}], {x}, ' + ('0' if kk == 0 else f'v[{acc}:{acc+3}]'))
                if m < len(nxt):
                    k(nxt[m])
                if m in (5, 7) and bpl and kk >= FK + 1:
                    emit(bpl.pop(0), ('b', 0))
                m += 1
        if kk == FK:
            k(f"""
            s_lshl_b32 s3, s9, 4
            s_add_u32 s3, s3, s55
            s_lshl_b32 s3, s3, 2
            """)
            wait_for([('s', 0)])
            flag_store(k, 3)
            issued.append(('f', 0))
    assert not bpl
    k.stamp(5)
    k('s_barrier')
    k.stamp(6)
    for n in range(4):
        regs = []
        for a in range(2):
            acc = ACC1 + 4 * (4 * a + n)
            r = 20 + 4 * a
            for p in range(2):
                x = acc + 2 * p
                t = 162 + 2 * (2 * a + p)
                k(f"""
                v_pk_fma_f32 v[{t}:{t+1}], v[{180+8*n+2*p}:{181+8*n+2*p}], v[{r+2}:{r+3}], v[{184+8*n+2*p}:{185+8*n+2*p}]
                v_pk_fma_f32 v[{x}:{x+1}], v[{x}:{x+1}], v[{r}:{r+1}], v[{t}:{t+1}]""")
                regs.append(x)
        gelu4(k, regs)
        k(f"""
        s_min_u32 s3, s69, {n}
        s_add_u32 s3, s3, s71
        s_lshl_b32 s3, s3, 16
        """)
        for a in range(2):
            acc = ACC1 + 4 * (4 * a + n)
            k(f"""
            v_cvt_pk_bf16_f32 v{acc}, v{acc}, v{acc+1}
            v_cvt_pk_bf16_f32 v{acc+1}, v{acc+2}, v{acc+3}
            buffer_store_dwordx2 v[{acc}:{acc+1}], v218, s[80:83], s3 offen offset:{512*a} {SC}""")
    for kk in range(NK):
        k(f"""
        s_cmp_eq_u32 s55, {kk & 15}
        s_cbranch_scc0 kgA_nd{kk}
        s_mov_b32 s3, {kk*128*1024}
        buffer_store_dwordx4 a[{8*kk}:{8*kk+3}], v5, s[64:67], s3 offen {SC}
        buffer_store_dwordx4 a[{8*kk+4}:{8*kk+7}], v5, s[64:67], s3 offen offset:1024 {SC}
kgA_nd{kk}:
        """)
    k.stamp(7)
    k(f"""
    s_lshl_b32 s54, s9, 4
    s_add_u32 s54, s54, s55
    s_lshl_b32 s54, s54, 2
    s_add_u32 s54, s54, 8192
    """)
    k.stamp(8)


WSLOT = 8192
NWS = 3
DIST = int(os.environ.get('KG_DIST', 3))
NSET = DIST + 1
ZBL = [('v', 48 + 28 * n) for n in range(4)] + [('a', 128 + 28 * n) for n in range(4)]
ZB = ZBL[:NSET]
WB = [16, 32]


def zr(Z, b):
    return f'{Z[0]}[{Z[1]+4*b}:{Z[1]+4*b+3}]'


def wdma(P):
    slot = P % NWS
    L = []
    for m in range(8):
        c = m >> 1
        rowc = 32 * (c >> 1) + 4 * (c & 1)
        L.append(f'''s_add_u32 m0, s96, {slot*32768+1024*m}
    s_add_u32 s14, s97, {rowc*4096 + 128*P}
    buffer_load_dwordx4 v{220+(m&1)}, s[88:91], s14 offen lds''')
    return L


def b_setup(k):
    srd(k, 88, 'wsp', 2048 * 4096)
    k(f"""
    v_lshrrev_b32 v16, 3, v1
    v_lshrrev_b32 v17, 2, v16
    v_lshlrev_b32 v17, 3, v17
    v_and_b32 v16, 3, v16
    v_add_u32 v17, v17, v16
    v_lshlrev_b32 v17, 12, v17
    v_and_b32 v16, 7, v1
    v_xor_b32 v16, v16, v14
    v_lshl_add_u32 v220, v16, 4, v17
    v_xor_b32 v221, 64, v220
    v_add_u32 v221, {16*4096}, v221
    s_lshl_b32 s96, s4, 13
    s_lshl_b32 s97, s98, 18
    s_lshl_b32 s3, s4, 10
    s_add_u32 s97, s97, s3
    s_lshl_b32 s7, s2, 15
    v_lshlrev_b32 v219, 4, v0
    """)


def b_prefetch_list():
    L = wdma(0) + wdma(1)
    for j in range(8):
        L.append(f"""buffer_load_dwordx4 v[{224+4*(j&3)}:{227+4*(j&3)}], v219, s[88:91], s7 offen
    s_add_u32 s7, s7, 4096""")
    return L


def zloads(ks):
    Z = ZB[ks % NSET]
    L = []
    for b in range(7):
        v = 12 if b < 4 else 3
        L.append(f'buffer_load_dwordx4 {zr(Z, b)}, v{v}, s[60:63], s12 offen offset:{1024*(b%4)} {SC}')
    L[-1] += f'\ns_add_u32 s12, s12, {54*1024}'
    return L


def wreads(ks):
    slot = (ks >> 1) % NWS
    W = WB[ks & 1]
    va = (6 if slot < 2 else 222) + (ks & 1)
    return [f'ds_read_b128 v[{W+4*c}:{W+4*c+3}], v{va} offset:{(slot%2)*32768+2048*c}' for c in range(4)]


def poll_loop(k, body, tag, sleep=2):
    pre = int(os.environ.get('KG_PRE' + tag, 0))
    sleep = int(os.environ.get('KG_SLP' + tag, sleep))
    if pre:
        k(f's_sleep {pre}')
    k(f"""
    s_mov_b32 s3, 0
kg_poll{tag}:
    {body}
    s_cmp_eq_u64 vcc, 0
    s_cbranch_scc1 kg_rdy{tag}
    s_add_u32 s3, s3, 1
    s_cmp_lt_u32 s3, {SPIN_MAX}
    s_cbranch_scc0 kg_rdy{tag}
    s_sleep {sleep}
    s_branch kg_poll{tag}
kg_rdy{tag}:
    """)


RB = [160, 168]
MB = [176, 180]
ACCM = 112


def tabreads(ks):
    R = RB[ks & 1]
    M = MB[ks & 1]
    return [f'ds_read_b128 v[{R}:{R+3}], v4 offset:{128*ks}',
            f'ds_read_b128 v[{R+4}:{R+7}], v4 offset:{128*ks+16}',
            f'ds_read_b128 v[{M}:{M+3}], v5 offset:{64*ks}']


def scale_ops(ks):
    W = WB[ks & 1]
    R = RB[ks & 1]
    L = []
    for c in range(4):
        for d in range(4):
            w = W + 4 * c + d
            t = 184 + 2 * ((4 * c + d) % 4)
            L.append(f"""v_lshlrev_b32 v{t}, 16, v{w}
    v_and_b32 v{t+1}, 0xffff0000, v{w}
    v_pk_mul_f32 v[{t}:{t+1}], v[{t}:{t+1}], v[{R+2*d}:{R+2*d+1}]
    v_cvt_pk_bf16_f32 v{w}, v{t}, v{t+1}""")
    return L


def phase_b(k):
    srd_ws(k, 60, 'Z2F')
    srd_ws(k, 64, 'Z1F')
    srd_ws(k, 68, 'PF')
    srd(k, 72, 'bsp', 4096)
    k(f"""
    s_mul_i32 s8, s99, 7
    s_min_u32 s8, s8, 47             ; phi0
    v_add_u32 v3, 4096, v12
    v_lshrrev_b32 v8, 2, v13
    v_lshlrev_b32 v8, 3, v8
    v_and_b32 v9, 3, v13
    v_add_u32 v8, v8, v9             ; row_local
    v_lshrrev_b32 v11, 1, v13
    v_xor_b32 v11, v11, v14
    v_lshlrev_b32 v11, 4, v11
    v_lshl_add_u32 v6, v13, 7, v11
    v_add_u32 v6, s96, v6
    v_xor_b32 v7, 64, v6
    v_add_u32 v222, 65536, v6
    v_add_u32 v223, 65536, v7
    s_mul_i32 s12, s4, {16*54}
    s_add_u32 s12, s12, s8
    s_lshl_b32 s12, s12, 10
    s_lshl_b32 s9, s98, 2
    s_add_u32 s9, s9, s4             ; tau
    s_lshl_b32 s13, s9, 10
    v_add_u32 v10, s13, v12
    v_lshrrev_b32 v217, 1, v10
    s_lshr_b32 s13, s4, 1
    s_lshl_b32 s13, s13, 5
    s_and_b32 s15, s4, 1
    s_lshl_b32 s15, s15, 2
    s_add_u32 s13, s13, s15
    s_lshl_b32 s15, s98, 6
    s_add_u32 s13, s13, s15
    s_lshl_b32 s13, s13, 1
    v_lshlrev_b32 v9, 1, v8
    buffer_load_ushort v206, v9, s[72:75], s13 offen
    s_lshl_b32 s10, s4, 12
    s_add_u32 s10, s10, {TAB}
    v_lshlrev_b32 v4, 5, v14
    v_add_u32 v4, s10, v4
    v_lshlrev_b32 v5, 4, v14
    v_mov_b32 v16, {ZERO}
    s_add_u32 s5, s10, 2048
    v_mov_b32 v17, s5
    v_cmp_eq_u32 vcc, 0, v13
    v_cndmask_b32 v16, v16, v17, vcc
    v_add_u32 v17, 1024, v17
    v_cmp_eq_u32 vcc, 1, v13
    v_cndmask_b32 v16, v16, v17, vcc
    v_add_u32 v5, v5, v16
    v_mov_b32 v16, 0
    v_mov_b32 v17, 0
    v_mov_b32 v18, 0
    v_mov_b32 v19, 0
    v_add_u32 v15, {ZERO}, v12
    ds_write_b128 v15, v[16:19]
    s_lshl_b32 s5, s4, 10
    s_lshr_b32 s6, s9, 1
    s_lshl_b32 s6, s6, 6
    s_lshl_b32 s7, s99, 3
    s_add_u32 s6, s6, s7
    v_and_b32 v2, 1, v1
    v_lshlrev_b32 v2, 2, v2
    s_waitcnt lgkmcnt(0)
    """)
    k('s_add_u32 s11, s6, 8192')
    poll_loop(k, f"""buffer_load_dwordx4 v[48:51], v12, s[84:87], s5 offen {SC}
    s_waitcnt vmcnt(0)
    v_min_u32 v48, v48, v49
    v_min3_u32 v48, v48, v50, v51
    v_cmp_eq_u32 vcc, 0, v48""", 'B', 16)
    flag_store(k, 54)
    for l in wreads(0):
        k(l)
    k.stamp(9)
    issued = [('f', 0)]

    def emit(l, tag):
        k(l)
        issued.append(tag)

    k('s_lshl_b32 s5, s4, 12\nv_lshlrev_b32 v15, 6, v1')
    for n in range(4):
        emit(f'buffer_load_dwordx4 v[{132+4*n}:{135+4*n}], v15, s[76:79], s5 offen offset:{16*n} {SC}', ('s', 0))
    for ks in range(2):
        for l in zloads(ks):
            emit(l, ('z', ks))
    def wait_for(tags, extra=''):
        idx = [i for i, t in enumerate(issued) if t in tags]
        n = len(issued) - 1 - max(idx)
        k(f's_waitcnt vmcnt({n}) {extra}')

    wait_for([('s', 0)])
    for e in range(8):
        m = 132 + 2 * e
        k(f"""
        v_mul_f32 v{m}, {f32(1.0/864)}, v{m}
        v_mov_b32 v15, {f32(1e-5)}
        v_fmac_f32 v15, {f32(1.0/864)}, v{m+1}
        v_fma_f32 v15, -v{m}, v{m}, v15
        v_max_f32 v15, {f32(1e-5)}, v15
        v_rsq_f32 v{148+e}, v15
        """)
    for d in range(4):
        m0, m1 = 132 + 4 * d, 134 + 4 * d
        k(f"""
        v_cvt_pk_bf16_f32 v{156+d}, v{m0}, v{m1}
        v_lshlrev_b32 v{m0+1}, 16, v{156+d}
        v_and_b32 v{m1+1}, 0xffff0000, v{156+d}
        v_sub_f32 v{m0}, v{m0}, v{m0+1}
        v_sub_f32 v{m1}, v{m1}, v{m1+1}
        v_cvt_pk_bf16_f32 v{184+d}, v{m0}, v{m1}
        """)
    k(f"""
    v_lshlrev_b32 v15, 5, v1
    v_add_u32 v15, s10, v15
    ds_write_b128 v15, v[148:151]
    ds_write_b128 v15, v[152:155] offset:16
    v_add_u32 v15, s10, v12
    ds_write_b128 v15, v[156:159] offset:2048
    ds_write_b128 v15, v[184:187] offset:3072
    s_waitcnt lgkmcnt(0)
    """)
    for l in tabreads(0):
        k(l)
    k('s_waitcnt lgkmcnt(0)')
    for l in scale_ops(0):
        k(l)
    nz = 2
    for ks in range(16):
        Z = ZB[ks % NSET]
        W = WB[ks & 1]
        M = MB[ks & 1]
        need = [('z', ks)] if not os.environ.get('KG_NOZ') else [('z', min(ks, 3))]
        if ks + 1 < 16 and (ks + 1) >> 1 >= 2 and not os.environ.get('KG_NOW'):
            need.append(('w', (ks + 1) >> 1))
        wait_for(need, 'lgkmcnt(0)' if os.environ.get('KG_NOSCALE') else '')
        early = []
        if ks + 1 < 16:
            early += [(None, l) for l in wreads(ks + 1) + tabreads(ks + 1)]
        mem = []
        cnt2 = 0 if not os.environ.get('KG_NOZ') else 2 if ks > 1 else 0
        while nz <= min(ks + DIST, 15) and cnt2 < 2:
            mem += [(('z', nz), l) for l in zloads(nz)]
            nz += 1
            cnt2 += 1
        if ks % 2 == 0 and (ks >> 1) + 2 < 8 and not os.environ.get('KG_NOW'):
            P = (ks >> 1) + 2
            mem += [(('w', P), l) for l in wdma(P)]
        sc = scale_ops(ks + 1) if (ks + 1 < 16 and not os.environ.get('KG_NOSCALE')) else []
        MF = []
        for c in range(4):
            for b in range(7):
                a = 4 * (7 * c + b)
                cc = '0' if ks == 0 else f'a[{a}:{a+3}]'
                MF.append(f'v_mfma_f32_16x16x32_bf16 a[{a}:{a+3}], {zr(Z, b)}, v[{W+4*c}:{W+4*c+3}], {cc}')
            a = ACCM + 4 * c
            cc = '0' if ks == 0 else f'a[{a}:{a+3}]'
            MF.append(f'v_mfma_f32_16x16x32_bf16 a[{a}:{a+3}], v[{M}:{M+3}], v[{W+4*c}:{W+4*c+3}], {cc}')
        mi = 0
        for n, mm in enumerate(MF):
            k(mm)
            if n < len(early):
                k(early[n][1])
            if mi < len(mem) and (n >= len(early) or len(mem) > 24):
                t, l = mem[mi]
                k(l)
                issued.append(t)
                mi += 1
            if n == 13 and sc:
                k('s_waitcnt lgkmcnt(0)')
            if 14 <= n < 30 and sc:
                k(sc[n - 14])
        assert mi == len(mem), (ks, mi, len(mem))
    k.stamp(10)
    poll_loop(k, f"""buffer_load_dword v15, v2, s[84:87], s11 offen {SC}
    s_waitcnt vmcnt(0)
    v_cmp_eq_u32 vcc, 0, v15""", 'Z', 4)
    for b in range(7):
        k(f"""
        s_add_u32 s13, s8, {b}
        s_lshl_b32 s{76+b}, s13, 16
        buffer_load_dwordx2 v[{192+2*b}:{193+2*b}], v217, s[64:67], s{76+b} offen {SC}""")
    for c in range(4):
        k(f'v_accvgpr_read_b32 v{16+2*c}, a{ACCM+4*c}\nv_accvgpr_read_b32 v{17+2*c}, a{ACCM+4*c+1}')
    k(f"""
    s_lshl_b32 s5, s4, 8
    s_add_u32 s5, s5, {CORR}
    v_lshlrev_b32 v15, 2, v13
    v_add_u32 v11, s5, v15
    v_add_f32 v16, v16, v17
    v_add_f32 v18, v18, v19
    v_add_f32 v20, v20, v21
    v_add_f32 v22, v22, v23
    s_mov_b64 exec, 0xffff
    ds_write_b32 v11, v16
    ds_write_b32 v11, v18 offset:64
    ds_write_b32 v11, v20 offset:128
    ds_write_b32 v11, v22 offset:192
    s_mov_b64 exec, -1
    s_barrier
    """)
    for w in range(4):
        k(f"""
        s_cmp_eq_u32 s4, {w}
        s_cbranch_scc0 kgB_red_{w}""")
        for c in range(4):
            if c == w:
                continue
            src = (w - c - 1) % 4
            k(f'v_add_u32 v11, {(c*3+src)*7168}, v12')
            for b in range(7):
                a = 4 * (7 * c + b)
                k(f'ds_write_b128 v11, a[{a}:{a+3}] offset:{1024*b}')
        for n in range(28):
            k(f'v_accvgpr_read_b32 v{16+n}, a{28*w+n}')
        k(f'kgB_red_{w}:')
    k(f"""
    s_mul_i32 s14, s4, {3*7168}
    v_add_u32 v11, s14, v12
    s_lshl_b32 s5, s4, 6
    s_add_u32 s5, s5, {CORR}
    v_add_u32 v15, s5, v15
    s_waitcnt lgkmcnt(0)
    s_barrier
    ds_read_b32 v140, v15
    ds_read_b32 v141, v15 offset:256
    ds_read_b32 v142, v15 offset:512
    ds_read_b32 v143, v15 offset:768
    """)
    for b in range(3):
        for s in range(3):
            r = 48 + 12 * b + 4 * s
            k(f'ds_read_b128 v[{r}:{r+3}], v11 offset:{s*7168+1024*b}')
    k(f"""
    s_waitcnt lgkmcnt(9) vmcnt(0)
    v_lshlrev_b32 v206, 16, v206
    v_add_f32 v140, v140, v141
    v_add_f32 v142, v142, v143
    v_sub_f32 v206, v206, v140
    v_sub_f32 v206, v206, v142
    v_mov_b32 v207, v206
    """)
    for b in range(3, 7):
        for s in range(3):
            r = 48 + 12 * b + 4 * s
            k(f'ds_read_b128 v[{r}:{r+3}], v11 offset:{s*7168+1024*b}')
    for b in range(7):
        k(f's_waitcnt lgkmcnt({min(15, 18-3*b)})')
        o = 16 + 4 * b
        r = 48 + 12 * b
        for p in range(2):
            k(f"""
            v_pk_add_f32 v[{o+2*p}:{o+2*p+1}], v[{o+2*p}:{o+2*p+1}], v[{r+2*p}:{r+2*p+1}]
            v_pk_add_f32 v[{r+4+2*p}:{r+4+2*p+1}], v[{r+4+2*p}:{r+4+2*p+1}], v[{r+8+2*p}:{r+8+2*p+1}]
            v_pk_add_f32 v[{o+2*p}:{o+2*p+1}], v[{o+2*p}:{o+2*p+1}], v[206:207]
            v_lshlrev_b32 v{r}, 16, v{192+2*b+p}
            v_and_b32 v{r+1}, 0xffff0000, v{192+2*b+p}
            v_pk_add_f32 v[{o+2*p}:{o+2*p+1}], v[{o+2*p}:{o+2*p+1}], v[{r+4+2*p}:{r+4+2*p+1}]
            v_pk_mul_f32 v[{o+2*p}:{o+2*p+1}], v[{o+2*p}:{o+2*p+1}], v[{r}:{r+1}]
            v_cvt_pk_bf16_f32 v{192+2*b+p}, v{o+2*p}, v{o+2*p+1}
            """)
    k(f"""
    s_add_u32 s5, s8, 1
    s_lshr_b32 s5, s5, 1
    s_lshl_b32 s5, s5, 17
    s_add_u32 s6, s5, {1<<17}
    s_add_u32 s7, s5, {2<<17}
    s_and_b32 s13, s8, 1
    s_cmp_eq_u32 s13, 0
    s_cbranch_scc0 kgB_odd
    s_add_u32 s13, s5, {3<<17}
    buffer_store_dwordx4 v[192:195], v10, s[68:71], s5 offen {SC}
    buffer_store_dwordx4 v[196:199], v10, s[68:71], s6 offen {SC}
    buffer_store_dwordx4 v[200:203], v10, s[68:71], s7 offen {SC}
    buffer_store_dwordx2 v[204:205], v10, s[68:71], s13 offen {SC}
    s_branch kgB_st
kgB_odd:
    s_sub_u32 s13, s5, {1<<17}
    buffer_store_dwordx4 v[194:197], v10, s[68:71], s5 offen {SC}
    buffer_store_dwordx4 v[198:201], v10, s[68:71], s6 offen {SC}
    buffer_store_dwordx4 v[202:205], v10, s[68:71], s7 offen {SC}
    buffer_store_dwordx2 v[192:193], v10, s[68:71], s13 offen offset:8 {SC}
kgB_st:
    """)
    k(f"""
    s_lshl_b32 s3, s98, 3
    s_add_u32 s3, s3, s99
    s_lshl_b32 s3, s3, 2
    s_add_u32 s3, s3, s4
    s_lshl_b32 s3, s3, 2
    s_add_u32 s3, s3, 4096
    v_mov_b32 v15, 0
    v_mov_b32 v16, 1
    s_waitcnt vmcnt(0)
    s_mov_b64 exec, 1
    buffer_store_dword v16, v15, s[84:87], s3 offen {SC}
    s_mov_b64 exec, -1
    """)
    k.stamp(11)
    c_prefetch_setup(k)
    for l in c_prefetch_list():
        k(l)


WOB = 80
PSET = [16 + 16 * n for n in range(4)]


def c_prefetch_setup(k):
    srd_ws(k, 56, 'WOF')
    k(f"""
    s_mul_i32 s5, s4, {7*40}
    s_mul_i32 s6, s99, 5
    s_add_u32 s5, s5, s6
    s_lshl_b32 s5, s5, 10
    """)


def c_prefetch_list():
    L = []
    for ks in range(7):
        for b in range(5):
            v = 12 if b < 4 else 3
            a = WOB + 20 * ks + 4 * b
            L.append(f'buffer_load_dwordx4 a[{a}:{a+3}], v{v}, s[56:59], s5 offen offset:{1024*(b%4)}')
        L[-1] += f'\ns_add_u32 s5, s5, {40*1024}'
    return L


def ploads(ks):
    P = PSET[ks % 4]
    L = [f'buffer_load_dwordx4 v[{P+4*c}:{P+4*c+3}], v12, s[60:63], s12 offen offset:{1024*c} {SC}' for c in range(4)]
    L[-1] += f'\ns_add_u32 s12, s12, {128*1024}'
    return L


def phase_c(k):
    srd_ws(k, 60, 'PF')
    srd_ws(k, 64, 'X1F')
    srd_ws(k, 68, 'MODF')
    srd(k, 72, 'out', 2048 * 1280)
    k(f'''
    s_mul_i32 s8, s99, 5             ; delta0
    v_mul_u32_u24 v4, 1280, v8
    v_lshl_add_u32 v4, v14, 4, v4
    v_lshlrev_b32 v5, 5, v14
    s_mul_i32 s12, s4, {7*128}
    s_lshl_b32 s10, s98, 2
    s_add_u32 s12, s12, s10
    s_lshl_b32 s12, s12, 10
    s_lshr_b32 s14, s4, 1
    s_lshl_b32 s14, s14, 5
    s_and_b32 s15, s4, 1
    s_lshl_b32 s15, s15, 2
    s_add_u32 s14, s14, s15
    s_lshl_b32 s15, s98, 6
    s_add_u32 s14, s14, s15
    s_mul_i32 s13, s14, 1280
    ''')
    for b in range(5):
        k(f'''
        s_add_u32 s14, s8, {b}
        s_lshr_b32 s15, s14, 1           ; dblk
        s_and_b32 s14, s14, 1            ; h
        s_lshl_b32 s5, s15, 17
        s_lshl_b32 s6, s14, 3
        s_add_u32 s{76+b}, s5, s6        ; x1f soffset
        s_lshl_b32 s5, s15, 6
        s_add_u32 s5, s5, s6
        s_add_u32 s{88+b}, s5, s13
        s_lshl_b32 s5, s5, 1
        s_add_u32 s5, s5, {5*640*4}
        buffer_load_dwordx4 v[{228+4*b}:{231+4*b}], v5, s[68:71], s5 offen
        ''')
    k(f'''
    s_lshl_b32 s3, s98, 7
    s_lshl_b32 s5, s4, 5
    s_add_u32 s3, s3, s5
    s_add_u32 s3, s3, 4096
    v_lshlrev_b32 v16, 2, v1
    v_add_u32 v16, s3, v16
    s_lshr_b32 s5, s8, 1
    s_add_u32 s5, s5, 8
    v_add_u32 v17, s5, v1
    v_and_b32 v17, 15, v17
    v_lshlrev_b32 v18, 2, v17
    s_lshr_b32 s5, s9, 1
    s_lshl_b32 s5, s5, 6
    s_add_u32 s5, s5, 8192
    v_add_u32 v18, s5, v18
    v_cmp_gt_u32 vcc, 8, v1
    v_cndmask_b32 v16, v18, v16, vcc
    ''')
    k('s_mov_b64 exec, 0x7ff')
    poll_loop(k, f"""buffer_load_dword v15, v16, s[84:87], 0 offen {SC}
    s_waitcnt vmcnt(0)
    v_cmp_eq_u32 vcc, 0, v15""", 'C', 2)
    k('s_mov_b64 exec, -1')
    k.stamp(12)
    issued = []

    def emit(l, tag):
        k(l)
        issued.append(tag)

    for ks in range(3):
        for l in ploads(ks):
            emit(l, ks)
    for b in range(5):
        emit(f'buffer_load_dwordx2 v[{196+2*b}:{197+2*b}], v10, s[64:67], s{76+b} offen {SC}', -1)
    np_ = 3
    for ks in range(7):
        P = PSET[ks % 4]
        last = max(i for i, t in enumerate(issued) if t == ks)
        k(f's_waitcnt vmcnt({len(issued) - 1 - last})')
        todo = []
        if np_ <= min(ks + 3, 6):
            todo = [(np_, l) for l in ploads(np_)]
            np_ += 1
        m = cnt = 0
        for c in range(4):
            for b in range(5):
                a = 4 * (5 * c + b)
                w = WOB + 20 * ks + 4 * b
                cc = '0' if ks == 0 else f'a[{a}:{a+3}]'
                k(f'v_mfma_f32_16x16x32_bf16 a[{a}:{a+3}], a[{w}:{w+3}], v[{P+4*c}:{P+4*c+3}], {cc}')
                m += 1
                if m % 2 == 0 and cnt < len(todo):
                    t, l = todo[cnt]
                    k(l)
                    issued.append(t)
                    cnt += 1
    k.stamp(13)
    k('s_barrier')
    for w in range(4):
        k(f'''
        s_cmp_eq_u32 s4, {w}
        s_cbranch_scc0 kgC_red_{w}''')
        for c in range(4):
            if c == w:
                continue
            src = (w - c - 1) % 4
            for b in range(5):
                a = 4 * (5 * c + b)
                k(f'ds_write_b128 v12, a[{a}:{a+3}] offset:{(c*3+src)*5120+1024*b}')
        for n in range(20):
            k(f'v_accvgpr_read_b32 v{16+n}, a{20*w+n}')
        k(f'kgC_red_{w}:')
    k(f'''
    s_mul_i32 s14, s4, {3*5120}
    v_add_u32 v11, s14, v12
    s_waitcnt lgkmcnt(0)
    s_barrier
    ''')
    for b in range(5):
        for s in range(3):
            r = 48 + 12 * b + 4 * s
            k(f'ds_read_b128 v[{r}:{r+3}], v11 offset:{s*5120+1024*b}')
    for b in range(5):
        k(f's_waitcnt lgkmcnt({12-3*b})')
        o = 16 + 4 * b
        r = 48 + 12 * b
        for p in range(2):
            k(f'''
            v_pk_add_f32 v[{o+2*p}:{o+2*p+1}], v[{o+2*p}:{o+2*p+1}], v[{r+2*p}:{r+2*p+1}]
            v_pk_add_f32 v[{r+4+2*p}:{r+4+2*p+1}], v[{r+4+2*p}:{r+4+2*p+1}], v[{r+8+2*p}:{r+8+2*p+1}]
            v_lshlrev_b32 v{r}, 16, v{196+2*b+p}
            v_and_b32 v{r+1}, 0xffff0000, v{196+2*b+p}
            v_pk_add_f32 v[{o+2*p}:{o+2*p+1}], v[{o+2*p}:{o+2*p+1}], v[{r+4+2*p}:{r+4+2*p+1}]
            v_pk_fma_f32 v[{o+2*p}:{o+2*p+1}], v[{o+2*p}:{o+2*p+1}], v[{228+4*b+2*p}:{229+4*b+2*p}], v[{r}:{r+1}]
            v_cvt_pk_bf16_f32 v{196+2*b+p}, v{o+2*p}, v{o+2*p+1}
            ''')
        k(f'buffer_store_dwordx2 v[{196+2*b}:{197+2*b}], v4, s[72:75], s{88+b} offen')
    k.stamp(14)


def make_kg():
    k = Kern('gemm_kernel', 256, 256, KG_LDS)
    k('''
    s_cmp_ge_u32 s2, 256
    s_cbranch_scc1 kg_exit
    ''')
    k.stamp(0)
    load_ptrs(k)
    k(f'''
    s_and_b32 s3, s2, 7              ; xcd
    s_lshr_b32 s5, s2, 3             ; kx
    s_lshr_b32 s6, s3, 1             ; xh
    s_and_b32 s7, s3, 1              ; xl
    s_lshl_b32 s54, s6, 2
    s_and_b32 s8, s5, 3
    s_add_u32 s54, s54, s8
    s_lshl_b32 s55, s7, 3
    s_lshr_b32 s8, s5, 2
    s_add_u32 s55, s55, s8
    s_lshl_b32 s98, s6, 3
    s_and_b32 s8, s5, 7
    s_add_u32 s98, s98, s8
    s_lshl_b32 s99, s7, 2
    s_lshr_b32 s8, s5, 3
    s_add_u32 s99, s99, s8
    v_and_b32 v1, 63, v0
    v_lshrrev_b32 v15, 6, v0
    v_lshlrev_b32 v12, 4, v1
    v_and_b32 v13, 15, v1
    v_lshrrev_b32 v14, 4, v1
    v_readfirstlane_b32 s4, v15
    s_waitcnt lgkmcnt(0)
    ''')
    phase_a(k)
    phase_b(k)
    phase_c(k)
    if os.environ.get('STAMP'):
        k('s_waitcnt vmcnt(0)')
    k.stamp(15)
    k.stamp_flush(2)
    k('kg_exit:\ns_endpgm')
    return k
```

```python
from asmlib import Kern, code_touch
from layout import WS, KR_STRIDE, XS, LBS
from gen_k1 import f32, load_ptrs, srd, srd_ws

N_WP, N_MISC, N_CONV, N_WSF = 108, 16, 640, int(__import__('os').environ.get('K2_TOUCH', 0))
B_WP = N_CONV
B_WSF = B_WP + N_WP
B_MISC = B_WSF + N_WSF
KG_CODE_BYTES = 36864
CS = 4160
HOFF = 8 * CS
K2_LDS = 38912


def quad_sum(k, v):
    k(f'''
    v_add_f32_dpp v{v}, v{v}, v{v} quad_perm:[1,0,3,2] row_mask:0xf bank_mask:0xf
    v_add_f32_dpp v{v}, v{v}, v{v} quad_perm:[2,3,0,1] row_mask:0xf bank_mask:0xf
    ''')


def role_wp(k):
    RS = 192
    RED = 160 * RS
    srd(k, 56, 'win', 640 * 3456)
    srd_ws(k, 60, 'MODP')
    srd_ws(k, 64, 'WPF')
    srd_ws(k, 68, 'CSP')
    srd_ws(k, 72, 'BIP')
    k(f'''
    s_sub_u32 s3, s2, {B_WP}
    s_mul_i32 s4, s3, 2428
    s_lshr_b32 s4, s4, 16            ; dq
    s_mul_i32 s5, s4, 27
    s_sub_u32 s5, s3, s5             ; fb
    v_and_b32 v1, 7, v0              ; c8
    v_lshrrev_b32 v2, 3, v0          ; rg
    v_mul_u32_u24 v3, 3456, v2
    v_lshl_add_u32 v3, v1, 4, v3
    s_mul_i32 s6, s4, {160*3456}
    s_lshl_b32 s7, s5, 7
    s_add_u32 s6, s6, s7
    v_and_b32 v4, 3, v1
    v_mul_u32_u24 v4, 15360, v4
    v_lshrrev_b32 v5, 2, v1
    v_mul_u32_u24 v5, 2560, v5
    v_add_u32 v4, v4, v5
    v_lshl_add_u32 v4, v2, 2, v4
    s_mul_i32 s12, s4, 640
    s_add_u32 s12, s12, {3*2560}
    ''')
    for i in range(1, 5):
        k(f's_add_u32 s{6+i}, s6, {32*3456*i}')
    for i in range(5):
        k(f'buffer_load_dword v{28+i}, v4, s[60:63], s12 offen offset:{128*i}')
    for i in range(5):
        k(f'buffer_load_dwordx4 v[{8+4*i}:{11+4*i}], v3, s[56:59], s{6+i} offen')
    k(f'''
    v_mul_u32_u24 v6, {RS}, v2
    v_lshl_add_u32 v6, v1, 4, v6
    v_cmp_gt_u32 vcc, 4, v1
    s_waitcnt vmcnt(5)
    ''')
    for i in range(5):
        v = 28 + i
        quad_sum(k, v)
        k(f'''
        v_cvt_pk_bf16_f32 v{v}, v{v}, v{v}
        v_lshlrev_b32 v{v}, 16, v{v}
        v_mov_b32_dpp v5, v{v} row_half_mirror row_mask:0xf bank_mask:0xf
        v_cndmask_b32 v{34+4*i}, v{v}, v5, vcc      ; cb
        v_cndmask_b32 v{36+4*i}, v5, v{v}, vcc      ; sb
        v_add_f32 v{34+4*i}, 1.0, v{34+4*i}
        v_mov_b32 v{35+4*i}, v{34+4*i}
        v_mov_b32 v{37+4*i}, v{36+4*i}
        ''')
    for i in range(5):
        k(f's_waitcnt vmcnt({4-i})')
        for j in range(4):
            r = 8 + 4 * i + j
            k(f'''
            v_lshlrev_b32 v72, 16, v{r}
            v_and_b32 v73, 0xffff0000, v{r}
            v_pk_mul_f32 v[74:75], v[72:73], v[{34+4*i}:{35+4*i}]
            ''')
            if i == 0:
                k(f'v_pk_mul_f32 v[{64+2*j}:{65+2*j}], v[72:73], v[{36+4*i}:{37+4*i}]')
            else:
                k(f'v_pk_fma_f32 v[{64+2*j}:{65+2*j}], v[72:73], v[{36+4*i}:{37+4*i}], v[{64+2*j}:{65+2*j}]')
            k(f'v_cvt_pk_bf16_f32 v{r}, v74, v75')
            if i == 0:
                k(f'''
                v_lshlrev_b32 v{56+2*j}, 16, v{r}
                v_and_b32 v{57+2*j}, 0xffff0000, v{r}''')
            else:
                k(f'''
                v_lshlrev_b32 v76, 16, v{r}
                v_and_b32 v77, 0xffff0000, v{r}
                v_pk_add_f32 v[{56+2*j}:{57+2*j}], v[{56+2*j}:{57+2*j}], v[76:77]''')
        k(f'ds_write_b128 v6, v[{8+4*i}:{11+4*i}] offset:{32*RS*i}')
    for j in range(16):
        k(f'v_add_f32_dpp v{56+j}, v{56+j}, v{56+j} row_ror:8 row_mask:0xf bank_mask:0xf')
    k(f'''
    v_lshrrev_b32 v5, 4, v0
    v_lshlrev_b32 v5, 8, v5
    v_lshl_add_u32 v5, v1, 5, v5
    ds_write_b128 v5, v[56:59] offset:{RED}
    ds_write_b128 v5, v[60:63] offset:{RED+16}
    ds_write_b128 v5, v[64:67] offset:{RED+4096}
    ds_write_b128 v5, v[68:71] offset:{RED+4096+16}
    v_and_b32 v40, 63, v0            ; lane
    v_lshrrev_b32 v41, 6, v0
    v_lshrrev_b32 v42, 4, v40        ; kq
    v_bfe_u32 v43, v40, 2, 2         ; rr
    v_and_b32 v44, 3, v40            ; c
    v_lshl_add_u32 v7, v42, 3, v43
    v_mul_u32_u24 v7, {RS}, v7
    v_lshl_add_u32 v7, v44, 4, v7    ; + 16c
    v_lshrrev_b32 v45, 1, v41
    v_lshl_add_u32 v7, v45, 6, v7    ; + 64 blk
    v_and_b32 v45, 1, v41
    v_lshl_add_u32 v7, v45, 3, v7    ; + 8a
    v_lshlrev_b32 v46, 4, v40
    v_lshl_add_u32 v46, v41, 10, v46
    s_mul_i32 s6, s4, {5*108}
    s_lshl_b32 s7, s5, 2
    s_add_u32 s6, s6, s7
    s_lshl_b32 s6, s6, 10
    s_waitcnt lgkmcnt(0)
    s_barrier
    ''')
    for j in range(5):
        k(f'''
        ds_read_b64_tr_b16 v[{8+4*j}:{9+4*j}], v7 offset:{32*RS*j}
        ds_read_b64_tr_b16 v[{10+4*j}:{11+4*j}], v7 offset:{32*RS*j+4*RS}''')
    for j in range(5):
        k(f'''
        s_waitcnt lgkmcnt({8-2*j})
        buffer_store_dwordx4 v[{8+4*j}:{11+4*j}], v46, s[64:67], s6 offen
        s_add_u32 s6, s6, {108*1024}''')
    k(f'''
    v_cmp_gt_u32 vcc, 128, v0
    s_and_saveexec_b64 s[14:15], vcc
    s_cbranch_execz k2_wp_end
    v_lshlrev_b32 v6, 2, v40
    v_lshl_add_u32 v5, v41, 12, v6
    ''')
    for i in range(16):
        k(f'ds_read_b32 v{48+i}, v5 offset:{RED+256*i}')
    k('s_waitcnt lgkmcnt(0)')
    for s in (8, 4, 2, 1):
        for i in range(s):
            k(f'v_add_f32 v{48+i}, v{48+i}, v{48+i+s}')
    k(f'''
    s_mul_i32 s6, s4, {1728*4}
    s_lshl_b32 s7, s5, 8
    s_add_u32 s6, s6, s7
    v_readfirstlane_b32 s8, v41
    s_cmp_eq_u32 s8, 0
    s_cbranch_scc0 k2_wp_b
    buffer_store_dword v48, v6, s[68:71], s6 offen
    s_endpgm
k2_wp_b:
    buffer_store_dword v48, v6, s[72:75], s6 offen
k2_wp_end:
    s_endpgm
    ''')


def role_misc(k):
    srd_ws(k, 56, 'STAT')
    srd_ws(k, 60, 'MODP')
    srd_ws(k, 64, 'MODF')
    srd_ws(k, 68, 'FLG')
    k(f"""
    s_sub_u32 s3, s2, {B_MISC}
    s_lshl_b32 s4, s3, 12
    s_sub_u32 s9, s4, 16384
    v_lshlrev_b32 v1, 4, v0
    v_mov_b32 v4, 0
    v_mov_b32 v5, 0
    v_mov_b32 v6, 0
    v_mov_b32 v7, 0
    s_cmp_ge_u32 s3, 4
    s_cbranch_scc1 k2_misc_b
    buffer_store_dwordx4 v[4:7], v1, s[56:59], s4 offen
    s_branch k2_misc_a
k2_misc_b:
    s_cmp_ge_u32 s3, 7
    s_cbranch_scc1 k2_misc_a
    buffer_store_dwordx4 v[4:7], v1, s[68:71], s9 offen
k2_misc_a:
    s_cmp_ge_u32 s3, 15
    s_cbranch_scc1 k2_misc_end
    v_lshlrev_b32 v2, 2, v0
    s_lshl_b32 s5, s3, 10
    s_add_u32 s6, s5, 15360
    s_add_u32 s7, s5, 30720
    s_add_u32 s8, s5, 46080
    buffer_load_dword v8, v2, s[60:63], s5 offen
    buffer_load_dword v9, v2, s[60:63], s6 offen
    buffer_load_dword v10, v2, s[60:63], s7 offen
    buffer_load_dword v11, v2, s[60:63], s8 offen
    s_waitcnt vmcnt(0)
    v_add_f32 v8, v8, v9
    v_add_f32 v10, v10, v11
    v_add_f32 v8, v8, v10
    v_cvt_pk_bf16_f32 v8, v8, v8
    v_lshlrev_b32 v8, 16, v8
    buffer_store_dword v8, v2, s[64:67], s5 offen
k2_misc_end:
    s_endpgm
    """)


def role_wsf(k):
    srd(k, 56, 'wsp', 2048 * 4096)
    k(f"""
    s_sub_u32 s3, s2, {B_WSF}
    s_lshl_b32 s3, s3, 16
    v_lshlrev_b32 v1, 4, v0
    """)
    for j in range(16):
        k(f"""
        buffer_load_dwordx4 v[{4+4*j}:{7+4*j}], v1, s[56:59], s3 offen
        s_add_u32 s3, s3, 4096""")
    k('s_waitcnt vmcnt(0)\ns_endpgm')


def role_conv(k):
    srd_ws(k, 56, 'KR')
    srd_ws(k, 60, 'XNT')
    srd_ws(k, 64, 'XT')
    srd_ws(k, 68, 'MODP')
    srd(k, 72, 'Dskip', 1280)
    srd_ws(k, 76, 'X1T')
    FB = 8
    ACC = 72
    XR = 4
    k(f"""
    s_and_b32 s3, s2, 7
    s_lshl_b32 s3, s3, 2
    s_lshr_b32 s4, s2, 3
    s_and_b32 s5, s4, 3
    s_add_u32 s3, s3, s5
    s_lshr_b32 s4, s4, 2
    s_lshl_b32 s4, s4, 5
    s_add_u32 s3, s3, s4             ; d = 32(k>>2) + 4xcd + (k&3)
    v_and_b32 v1, 63, v0             ; lane
    v_lshrrev_b32 v8, 6, v0
    v_lshlrev_b32 v11, 4, v0
    v_readfirstlane_b32 s4, v8       ; wave
    s_mul_i32 s5, s3, {KR_STRIDE}
    s_mul_i32 s6, s3, {XS}
    buffer_load_dwordx4 v[40:43], v11, s[56:59], s5 offen
    buffer_load_dwordx4 v[44:47], v11, s[56:59], s5 offen offset:16
    v_and_b32 v16, 3, v1
    v_mul_u32_u24 v16, 15360, v16
    v_bfe_u32 v17, v1, 2, 2
    v_min_u32 v17, 2, v17
    v_mul_u32_u24 v17, 2560, v17
    v_add_u32 v16, v16, v17
    s_lshl_b32 s10, s3, 2
    buffer_load_dword v18, v16, s[68:71], s10 offen
    v_lshrrev_b32 v9, 1, v0
    v_mul_u32_u24 v9, {LBS}, v9
    v_and_b32 v10, 1, v0
    v_lshl_add_u32 v9, v10, 4, v9
    s_lshl_b32 s7, s3, 5
    buffer_load_dwordx4 v[12:15], v9, s[60:63], s7 offen
    v_mov_b32 v19, 0
    s_lshl_b32 s11, s3, 1
    buffer_load_ushort v20, v19, s[72:75], s11 offen
    v_and_b32 v21, 15, v1            ; n / b
    v_lshrrev_b32 v22, 4, v1         ; q / kq
    v_mul_u32_u24 v23, {LBS}, v21
    v_lshl_add_u32 v23, v22, 3, v23  ; n*20480 + 8q
    s_mul_i32 s8, s4, {32*LBS}
    s_add_u32 s8, s8, s7
    s_add_u32 s9, s8, {16*LBS}
    buffer_load_dwordx2 v[4:5], v23, s[64:67], s8 offen
    buffer_load_dwordx2 v[6:7], v23, s[64:67], s9 offen
    s_lshl_b32 s12, s4, 10
    s_add_u32 s13, s6, s12
    v_mov_b32 v24, 0
    v_mov_b32 v25, 0
    v_mov_b32 v26, 0
    v_mov_b32 v27, 0
    v_and_b32 v28, 7, v0
    v_mul_u32_u24 v28, {CS}, v28
    ds_write_b128 v28, v[24:27] offset:4096
    v_min_u32 v29, 29, v1
    v_lshlrev_b32 v29, 4, v29
    ds_write_b128 v29, v[24:27] offset:{HOFF}
    v_sub_u32 v30, 15, v21           ; b'
    v_and_b32 v31, 7, v30
    v_mul_u32_u24 v2, {CS}, v31
    v_lshrrev_b32 v30, 3, v30
    v_add_u32 v30, v30, v22
    v_lshl_add_u32 v2, v30, 4, v2
    s_lshl_b32 s14, s4, 7
    s_sub_u32 s14, 384, s14          ; 448 - 128w - 64
    v_add_u32 v2, s14, v2
    v_lshlrev_b32 v3, 5, v21
    v_lshl_add_u32 v3, v22, 4, v3
    s_add_u32 s15, s14, {HOFF}
    v_add_u32 v3, s15, v3
    s_waitcnt vmcnt(5)
    """)
    k.stamp(1)
    k(f"""
    ds_write_b128 v11, v[40:43] offset:{0*CS}
    ds_write_b128 v11, v[42:45] offset:{4*CS}
    """)
    for j in range(6):
        k(f'v_mov_b32 v{48+j}, v{41+j}')
    k(f"""
    ds_write_b128 v11, v[48:51] offset:{2*CS}
    ds_write_b128 v11, v[50:53] offset:{6*CS}
    """)
    for j in range(6):
        k(f'v_alignbit_b32 v{56+j}, v{41+j}, v{40+j}, 16')
    k(f"""
    ds_write_b128 v11, v[56:59] offset:{1*CS}
    ds_write_b128 v11, v[58:61] offset:{5*CS}
    """)
    for j in range(6):
        k(f'v_alignbit_b32 v{64+j}, v{42+j}, v{41+j}, 16')
    k(f"""
    ds_write_b128 v11, v[64:67] offset:{3*CS}
    ds_write_b128 v11, v[66:69] offset:{7*CS}
    s_waitcnt vmcnt(4)
    """)
    quad_sum(k, 18)
    k(f"""
    v_cvt_pk_bf16_f32 v18, v18, v18
    v_lshlrev_b32 v18, 16, v18
    s_nop 0
    v_readlane_b32 s80, v18, 0       ; sa
    v_readlane_b32 s81, v18, 4       ; ca
    v_readlane_b32 s82, v18, 8       ; ga
    s_nop 1
    v_mov_b32 v32, s81
    v_add_f32 v32, 1.0, v32
    v_mov_b32 v33, v32
    v_mov_b32 v34, s80
    v_mov_b32 v35, s80
    s_waitcnt vmcnt(3)
    """)
    for j in range(4):
        k(f"""
        v_lshlrev_b32 v36, 16, v{12+j}
        v_and_b32 v37, 0xffff0000, v{12+j}
        v_pk_fma_f32 v[36:37], v[36:37], v[32:33], v[34:35]
        v_cvt_pk_bf16_f32 v{12+j}, v36, v37""")
    k(f"""
    ds_write_b128 v11, v[12:15] offset:{HOFF+480}
    s_waitcnt vmcnt(2)
    v_lshlrev_b32 v20, 16, v20
    s_nop 0
    v_readfirstlane_b32 s83, v20     ; Dskip
    s_waitcnt lgkmcnt(0)
    s_barrier
    """)
    k.stamp(2)
    first = [True] * 8

    def rd_f(p, rr):
        return f'ds_read_b128 v[{FB+4*p}:{FB+3+4*p}], v2 offset:{3584-512*p+64*(1-rr)}'

    def rd_g(q, rr):
        return f'ds_read_b128 v[{FB+32+4*q}:{FB+35+4*q}], v3 offset:{512*q+64*(1-rr)}'

    def mf(p, q):
        i = p + q
        a = ACC + 4 * i
        c = '0' if first[i] else f'v[{a}:{a+3}]'
        first[i] = False
        k(f'v_mfma_f32_16x16x32_bf16 v[{a}:{a+3}], v[{FB+4*p}:{FB+3+4*p}], v[{FB+32+4*q}:{FB+35+4*q}], {c}')

    for m in range(8):
        k(rd_g(m, 0))
        k(rd_f(7 - m, 0))
    issued_after = 0
    for st in range(8):
        p = 7 - st
        k(f's_waitcnt lgkmcnt({min(15, 16-(2*st+2)+issued_after)})')
        for q in range(st + 1):
            mf(p, q)
        k(rd_f(p, 1))
        issued_after += 1
    for q in range(8):
        k(rd_g(q, 1))
    for q in range(8):
        k(f's_waitcnt lgkmcnt({7-q})')
        for p in range(7 - q, -1, -1):
            mf(p, q)
    k.stamp(3)
    k(f"""
    v_lshlrev_b32 v8, 4, v1          ; lane*16
    s_barrier
    """)
    for w in range(4):
        k(f"""
        s_cmp_eq_u32 s4, {w}
        s_cbranch_scc0 k2_red_{w}""")
        for i in range(8):
            o = i >> 1
            if o == w:
                continue
            src = (w - o - 1) % 4
            k(f'ds_write_b128 v8, v[{ACC+4*i}:{ACC+4*i+3}] offset:{(i*3+src)*1024}')
        for j in range(8):
            k(f'v_mov_b32 v{40+j}, v{ACC+8*w+j}')
        k(f'k2_red_{w}:')
    k(f'''
    s_mul_i32 s12, s4, 6144
    v_add_u32 v9, s12, v8
    v_and_b32 v21, 15, v1
    v_lshrrev_b32 v22, 4, v1
    v_lshlrev_b32 v23, 5, v21
    v_lshl_add_u32 v23, v22, 3, v23
    s_lshl_b32 s12, s4, 10
    v_add_u32 v10, s12, v23
    v_lshrrev_b32 v11, 1, v21
    v_lshlrev_b32 v11, 6, v11
    v_and_b32 v12, 1, v22
    v_lshl_add_u32 v11, v12, 5, v11
    v_and_b32 v12, 1, v21
    v_lshl_add_u32 v11, v12, 4, v11
    v_lshrrev_b32 v12, 1, v22
    v_lshl_add_u32 v11, v12, 3, v11
    s_waitcnt lgkmcnt(0)
    s_barrier
    ds_read_b64 v[12:13], v10 offset:{HOFF+480}
    ds_read_b64 v[14:15], v10 offset:{HOFF+480+512}
    ''')
    for j in range(6):
        k(f'ds_read_b128 v[{48+4*j}:{51+4*j}], v9 offset:{1024*j}')
    k(f'''
    v_mov_b32 v16, s83
    v_mov_b32 v17, s83
    v_mov_b32 v18, s82
    v_mov_b32 v19, s82
    s_waitcnt lgkmcnt(0) vmcnt(0)
    ''')
    for t in range(2):
        o = 40 + 4 * t
        for j in range(3):
            s = 48 + 12 * t + 4 * j
            k(f'''
            v_pk_add_f32 v[{o}:{o+1}], v[{o}:{o+1}], v[{s}:{s+1}]
            v_pk_add_f32 v[{o+2}:{o+3}], v[{o+2}:{o+3}], v[{s+2}:{s+3}]''')
        for hh in range(2):
            hv = 12 + 2 * t + hh
            xv = XR + 2 * t + hh
            y = o + 2 * hh
            k(f'''
            v_lshlrev_b32 v20, 16, v{hv}
            v_and_b32 v21, 0xffff0000, v{hv}
            v_pk_fma_f32 v[{y}:{y+1}], v[20:21], v[16:17], v[{y}:{y+1}]
            v_lshlrev_b32 v22, 16, v{xv}
            v_and_b32 v23, 0xffff0000, v{xv}
            v_pk_fma_f32 v[{y}:{y+1}], v[{y}:{y+1}], v[18:19], v[22:23]
            v_cvt_pk_bf16_f32 v{24+2*t+hh}, v{y}, v{y+1}
            ''')
        k(f'buffer_store_dwordx2 v[{24+2*t}:{25+2*t}], v11, s[76:79], s13 offen offset:{512*t}')
    k.stamp(4)
    k('s_waitcnt vmcnt(0)')
    k.stamp(5)
    k.stamp_flush(1)
    k('s_endpgm')


def tlb_touch(k):
    from layout import WS_END
    end = WS['DBG'][0]
    srd(k, 56, 'ws', end)
    srd(k, 60, 'out', 2048 * 1280)
    srd(k, 64, 'wsp', 2048 * 4096)
    k("""
    v_lshlrev_b32 v2, 16, v0
    buffer_load_dword v40, v2, s[60:63], 0 offen
    buffer_load_dword v41, v2, s[64:67], 0 offen
    """)
    n = (end + (1 << 24) - 1) >> 24
    for j in range(n):
        k(f"""s_mov_b32 s6, {j << 24}
        buffer_load_dword v{42+j}, v2, s[56:59], s6 offen""")


def make_k2():
    total = N_WP + N_MISC + N_CONV + N_WSF + int(__import__('os').environ.get('K2_NCT', 8))
    k = Kern('conv_kernel', total, 256, K2_LDS)
    k(f"""
    s_cmp_ge_u32 s2, {total}
    s_cbranch_scc1 k2_exit
    """)
    k.stamp_s = 88
    k.stamp_v = 100
    k.stamp(0)
    load_ptrs(k)
    k(f"""
    s_waitcnt lgkmcnt(0)
    s_cmp_ge_u32 s2, {B_MISC+N_MISC}
    s_cbranch_scc1 k2_code
    s_cmp_ge_u32 s2, {B_MISC}
    s_cbranch_scc1 k2_misc
    s_cmp_ge_u32 s2, {B_WSF}
    s_cbranch_scc1 k2_wsf
    s_cmp_ge_u32 s2, {B_WP}
    s_cbranch_scc1 k2_wp
    """)
    role_conv(k)
    k('k2_wp:')
    role_wp(k)
    k('k2_wsf:')
    role_wsf(k)
    k('k2_misc:')
    role_misc(k)
    k('k2_code:')
    code_touch(k, 'gemm_kernel', KG_CODE_BYTES, 'k2ct', tlb_touch if __import__('os').environ.get('TLBT', '0') == '1' else None)
    k('k2_exit:\ns_endpgm')
    return k
```

```python
from asmlib import Kern, code_touch
from layout import WS, KR_STRIDE, XS, LBS
import struct


def f32(x):
    return '0x%08x' % struct.unpack('<I', struct.pack('<f', x))[0]


PTR = {n: 16 + 2 * i for i, n in enumerate(
    ['u', 'Are', 'Aim', 'Bre', 'Bim', 'Cre', 'Cim', 'logdt', 'Dskip', 'Bx', 'win', 'wsp', 'bsp', 'wout', 'c', 'wmod',
     'out', 'dbg', 'ws'])}

LOG2E = 1.4426950408889634
INV2PI = 0.15915494309189535


def load_ptrs(k):
    k('''
    s_load_dwordx16 s[16:31], s[0:1], 0
    s_load_dwordx16 s[32:47], s[0:1], 64
    s_load_dwordx4 s[48:51], s[0:1], 128
    s_load_dwordx2 s[52:53], s[0:1], 144
    ''')


def srd(k, d, ptr, size, off=0):
    p = PTR[ptr]
    if off:
        k(f'''
        s_add_u32 s{d}, s{p}, {off}
        s_addc_u32 s{d+1}, s{p+1}, 0''')
    else:
        k(f'''
        s_mov_b32 s{d}, s{p}
        s_mov_b32 s{d+1}, s{p+1}''')
    k(f'''
    s_mov_b32 s{d+2}, {size}
    s_mov_b32 s{d+3}, 0x00020000''')


def srd_ws(k, d, name):
    off, size = WS[name]
    srd(k, d, 'ws', size, off)


def dpp_sum16(k, v):
    for n in (8, 4, 2, 1):
        k(f'v_add_f32_dpp v{v}, v{v}, v{v} row_ror:{n} row_mask:0xf bank_mask:0xf')


N_LN1, N_MOD, N_WOF, N_KG = 128, 240, 54, 640
B_LN1 = N_KG
B_MOD = B_LN1 + N_LN1
B_WOF = B_MOD + N_MOD
K1_LDS = 32768


def role_ln1(k):
    RS = 1344
    srd(k, 56, 'u', 2048 * 1280)
    srd_ws(k, 60, 'XT')
    srd_ws(k, 64, 'XNT')
    k(f'''
    v_and_b32 v1, 15, v0
    v_lshrrev_b32 v2, 4, v0
    s_sub_u32 s9, s2, {B_LN1}
    s_mul_i32 s3, s9, {16*1280}
    v_mul_u32_u24 v3, 1280, v2
    v_lshl_add_u32 v3, v1, 4, v3
    ''')
    for i in range(5):
        k(f'buffer_load_dwordx4 v[{8+4*i}:{11+4*i}], v3, s[56:59], s3 offen offset:{256*i}')
    k(f'''
    v_mul_u32_u24 v4, {RS}, v2
    v_lshl_add_u32 v4, v1, 4, v4
    v_and_b32 v88, 63, v0            ; lane
    v_lshrrev_b32 v89, 6, v0         ; wave
    v_lshrrev_b32 v90, 4, v88        ; g
    v_bfe_u32 v91, v88, 2, 2         ; rr
    v_and_b32 v92, 3, v88            ; c
    v_lshrrev_b32 v93, 1, v90        ; g>>1
    v_and_b32 v94, 1, v90            ; g&1
    v_lshl_add_u32 v5, v93, 3, v91
    v_mul_u32_u24 v5, {RS}, v5
    v_lshl_add_u32 v5, v94, 5, v5
    v_lshl_add_u32 v5, v92, 3, v5
    v_lshl_add_u32 v5, v89, 6, v5
    v_and_b32 v6, 15, v88            ; i
    v_lshl_add_u32 v6, v94, 4, v6
    v_lshl_add_u32 v6, v89, 5, v6    ; d_local = 32w + 16(g&1) + i
    v_lshlrev_b32 v6, 5, v6
    v_lshl_add_u32 v6, v93, 4, v6
    s_mul_i32 s4, s9, {LBS}
    ''')
    for it in range(1, 5):
        k(f's_add_u32 s{4+it}, s4, {128*32*it}')
    for i in range(5):
        k(f'''s_waitcnt vmcnt({4-i})
        ds_write_b128 v4, v[{8+4*i}:{11+4*i}] offset:{256*i}''')
    k('''
    s_waitcnt lgkmcnt(0)
    s_barrier
    ''')

    def transpose(srdn, base):
        for it in range(5):
            k(f'''
            ds_read_b64_tr_b16 v[{base+4*it}:{base+4*it+1}], v5 offset:{256*it}
            ds_read_b64_tr_b16 v[{base+4*it+2}:{base+4*it+3}], v5 offset:{256*it+4*RS}''')
        for it in range(5):
            k(f'''
            s_waitcnt lgkmcnt({8-2*it})
            buffer_store_dwordx4 v[{base+4*it}:{base+4*it+3}], v6, s[{srdn}:{srdn+3}], s{4+it} offen''')

    k.stamp(1)
    transpose(60, 68)
    k.stamp(2)
    for j in range(20):
        k(f'''
        v_lshlrev_b32 v{28+2*j}, 16, v{8+j}
        v_and_b32 v{29+2*j}, 0xffff0000, v{8+j}''')
    k('v_pk_add_f32 v[8:9], v[28:29], v[30:31]')
    k('v_pk_add_f32 v[10:11], v[32:33], v[34:35]')
    for j in range(4, 20):
        a = 8 + 2 * (j & 1)
        k(f'v_pk_add_f32 v[{a}:{a+1}], v[{a}:{a+1}], v[{28+2*j}:{29+2*j}]')
    k('''
    v_pk_add_f32 v[8:9], v[8:9], v[10:11]
    v_add_f32 v8, v8, v9''')
    dpp_sum16(k, 8)
    k(f'''
    v_mul_f32 v10, {f32(-1.0/640)}, v8
    v_mov_b32 v11, v10''')
    for j in range(20):
        k(f'v_pk_add_f32 v[{28+2*j}:{29+2*j}], v[{28+2*j}:{29+2*j}], v[10:11]')
    k('v_pk_mul_f32 v[8:9], v[28:29], v[28:29]')
    k('v_pk_mul_f32 v[12:13], v[30:31], v[30:31]')
    for j in range(2, 20):
        a = 8 + 4 * (j & 1)
        k(f'v_pk_fma_f32 v[{a}:{a+1}], v[{28+2*j}:{29+2*j}], v[{28+2*j}:{29+2*j}], v[{a}:{a+1}]')
    k('''
    v_pk_add_f32 v[8:9], v[8:9], v[12:13]
    v_add_f32 v8, v8, v9''')
    dpp_sum16(k, 8)
    k(f'''
    v_mov_b32 v9, {f32(1e-5)}
    v_fmac_f32 v9, {f32(1.0/640)}, v8
    v_rsq_f32 v10, v9
    s_nop 0
    v_mov_b32 v11, v10''')
    for j in range(20):
        k(f'v_pk_mul_f32 v[{28+2*j}:{29+2*j}], v[{28+2*j}:{29+2*j}], v[10:11]')
    for j in range(20):
        k(f'v_cvt_pk_bf16_f32 v{8+j}, v{28+2*j}, v{29+2*j}')
    k('s_barrier')
    for i in range(5):
        k(f'ds_write_b128 v4, v[{8+4*i}:{11+4*i}] offset:{256*i}')
    k('''
    s_waitcnt lgkmcnt(0)
    s_barrier
    ''')
    k.stamp(3)
    transpose(64, 28)
    k.stamp(4)
    k('s_waitcnt vmcnt(0)')
    k.stamp(5)
    k.stamp_flush(0)
    k('s_endpgm')


def role_mod(k):
    srd(k, 56, 'wmod', 640 * 7680)
    srd(k, 60, 'c', 1280)
    srd_ws(k, 64, 'MODP')
    k(f'''
    s_sub_u32 s3, s2, {B_MOD}
    s_mul_i32 s4, s3, 1093
    s_lshr_b32 s4, s4, 16            ; ks
    s_mul_i32 s5, s4, 60
    s_sub_u32 s5, s3, s5             ; cb
    v_and_b32 v1, 7, v0
    v_lshrrev_b32 v2, 3, v0          ; rg
    v_mul_u32_u24 v3, 7680, v2
    v_lshl_add_u32 v3, v1, 4, v3
    s_mul_i32 s6, s4, {160*7680}
    s_lshl_b32 s7, s5, 7
    s_add_u32 s6, s6, s7
    v_lshlrev_b32 v4, 1, v2
    s_mul_i32 s12, s4, 320
    ''')
    for i in range(1, 5):
        k(f's_add_u32 s{6+i}, s6, {32*7680*i}')
    for i in range(5):
        k(f'buffer_load_ushort v{28+i}, v4, s[60:63], s12 offen offset:{64*i}')
    for i in range(5):
        k(f'buffer_load_dwordx4 v[{8+4*i}:{11+4*i}], v3, s[56:59], s{6+i} offen')
    k('s_waitcnt vmcnt(5)')
    k.stamp(1)
    for i in range(5):
        c = 28 + i
        k(f'''
        v_lshlrev_b32 v{c}, 16, v{c}
        v_mul_f32 v5, {f32(-LOG2E)}, v{c}
        v_exp_f32 v5, v5
        s_nop 0
        v_add_f32 v5, 1.0, v5
        v_rcp_f32 v5, v5
        s_nop 0
        v_mul_f32 v5, v{c}, v5
        v_cvt_pk_bf16_f32 v5, v5, v5
        v_lshlrev_b32 v{34+2*i}, 16, v5
        v_lshlrev_b32 v{35+2*i}, 16, v5
        ''')
    for i in range(5):
        k(f's_waitcnt vmcnt({4-i})')
        for j in range(4):
            r = 8 + 4 * i + j
            k(f'''
            v_lshlrev_b32 v52, 16, v{r}
            v_and_b32 v53, 0xffff0000, v{r}''')
            if i == 0:
                k(f'v_pk_mul_f32 v[{44+2*j}:{45+2*j}], v[52:53], v[34:35]')
            else:
                k(f'v_pk_fma_f32 v[{44+2*j}:{45+2*j}], v[52:53], v[{34+2*i}:{35+2*i}], v[{44+2*j}:{45+2*j}]')
    k.stamp(2)
    for j in range(8):
        k(f'v_add_f32_dpp v{44+j}, v{44+j}, v{44+j} row_ror:8 row_mask:0xf bank_mask:0xf')
    k(f'''
    v_lshrrev_b32 v5, 4, v0
    v_lshlrev_b32 v5, 8, v5
    v_lshl_add_u32 v5, v1, 5, v5
    ds_write_b128 v5, v[44:47]
    ds_write_b128 v5, v[48:51] offset:16
    s_waitcnt lgkmcnt(0)
    s_barrier
    v_cmp_gt_u32 vcc, 64, v0
    s_and_saveexec_b64 s[14:15], vcc
    s_cbranch_execz k1_mod_end
    v_lshlrev_b32 v6, 2, v0
    ''')
    for i in range(16):
        k(f'ds_read_b32 v{8+i}, v6 offset:{256*i}')
    k('s_waitcnt lgkmcnt(0)')
    for s in (8, 4, 2, 1):
        for i in range(s):
            k(f'v_add_f32 v{8+i}, v{8+i}, v{8+i+s}')
    k(f'''
    s_mul_i32 s6, s4, {3840*4}
    s_lshl_b32 s7, s5, 8
    s_add_u32 s6, s6, s7
    buffer_store_dword v8, v6, s[64:67], s6 offen
k1_mod_end:
    ''')
    k.stamp(4)
    k('s_waitcnt vmcnt(0)')
    k.stamp(5)
    k.stamp_flush(0)
    k('s_endpgm')


def role_wof(k):
    RS = 704
    srd(k, 56, 'wout', 864 * 1280)
    srd_ws(k, 60, 'WOF')
    k(f'''
    s_sub_u32 s3, s2, {B_WOF}
    s_lshr_b32 s4, s3, 1             ; beta
    s_and_b32 s5, s3, 1              ; half
    v_and_b32 v1, 7, v0
    v_lshrrev_b32 v2, 3, v0          ; row 0..31
    v_mul_u32_u24 v3, 1280, v2
    v_lshl_add_u32 v3, v1, 4, v3
    s_mul_i32 s6, s4, {32*1280}
    s_mul_i32 s7, s5, 640
    s_add_u32 s6, s6, s7
    ''')
    for i in range(5):
        k(f'buffer_load_dwordx4 v[{8+4*i}:{11+4*i}], v3, s[56:59], s6 offen offset:{128*i}')
    k(f'''
    v_mul_u32_u24 v4, {RS}, v2
    v_lshl_add_u32 v4, v1, 4, v4
    v_and_b32 v40, 63, v0            ; lane
    v_lshrrev_b32 v41, 6, v0         ; wave
    v_lshrrev_b32 v42, 4, v40        ; kq
    v_bfe_u32 v43, v40, 2, 2         ; rr
    v_and_b32 v44, 3, v40            ; c
    v_lshl_add_u32 v5, v42, 3, v43
    v_mul_u32_u24 v5, {RS}, v5
    v_lshl_add_u32 v5, v44, 4, v5    ; +16c
    v_lshlrev_b32 v6, 4, v40
    v_readfirstlane_b32 s8, v41
    ''')
    for i in range(5):
        k(f'''s_waitcnt vmcnt({4-i})
        ds_write_b128 v4, v[{8+4*i}:{11+4*i}] offset:{128*i}''')
    k(f'''
    s_mul_i32 s8, s8, 5              ; dl0
    s_mul_i32 s9, s4, 40
    s_mul_i32 s10, s5, 20
    s_add_u32 s9, s9, s10
    s_add_u32 s9, s9, s8
    s_lshl_b32 s9, s9, 10
    s_waitcnt lgkmcnt(0)
    s_barrier
    ''')
    for j in range(5):
        k(f'''
        s_add_u32 s10, s8, {j}
        s_lshr_b32 s11, s10, 1
        s_lshl_b32 s11, s11, 6
        s_and_b32 s10, s10, 1
        s_lshl_b32 s10, s10, 3
        s_add_u32 s10, s10, s11
        v_add_u32 v7, s10, v5
        ds_read_b64_tr_b16 v[{8+4*j}:{9+4*j}], v7
        ds_read_b64_tr_b16 v[{10+4*j}:{11+4*j}], v7 offset:{4*RS}
        ''')
    for j in range(5):
        k(f'''
        s_waitcnt lgkmcnt({8-2*j})
        buffer_store_dwordx4 v[{8+4*j}:{11+4*j}], v6, s[60:63], s9 offen offset:{1024*j if j < 4 else 0}''' if j < 4 else f'''
        s_waitcnt lgkmcnt(0)
        s_add_u32 s9, s9, 4096
        buffer_store_dwordx4 v[{8+4*j}:{11+4*j}], v6, s[60:63], s9 offen''')
    k('s_endpgm')


KG_RS = 544
KG_UL = 0
KG_VL = 41 * KG_RS
KG_T = KG_VL + 16 * KG_RS


def role_kgen(k):
    for n, (name) in enumerate(['Are', 'Aim', 'Bre', 'Bim', 'Cre', 'Cim']):
        srd(k, 56 + 4 * n, name, 640 * 256)
    srd(k, 80, 'logdt', 1280)
    srd_ws(k, 84, 'KR')
    k(f'''
    s_mov_b32 s3, s2   ; d
    v_and_b32 v1, 127, v0            ; n
    v_lshlrev_b32 v2, 1, v1
    s_lshl_b32 s4, s3, 8
    s_lshl_b32 s5, s3, 1
    v_mov_b32 v3, 0
    buffer_load_ushort v16, v3, s[80:83], s5 offen
    ''')
    for n in range(6):
        k(f'buffer_load_ushort v{10+n}, v2, s[{56+4*n}:{59+4*n}], s4 offen')
    k(f'''
    v_lshrrev_b32 v4, 6, v0
    v_lshlrev_b32 v5, 2, v1
    v_readfirstlane_b32 s6, v4
    s_waitcnt vmcnt(0)
    ''')
    k.stamp(1)
    for n in range(7):
        k(f'v_lshlrev_b32 v{10+n}, 16, v{10+n}')
    k(f'''
    v_mul_f32 v16, {f32(LOG2E)}, v16
    v_exp_f32 v16, v16
    s_nop 0
    v_cvt_pk_bf16_f32 v16, v16, v16
    v_lshlrev_b32 v16, 16, v16       ; dt
    v_mul_f32 v10, v16, v10
    v_mul_f32 v10, {f32(LOG2E)}, v10  ; a2
    v_mul_f32 v11, v16, v11
    v_mul_f32 v11, {f32(INV2PI)}, v11 ; w (rev/step)
    v_mul_f32 v12, v16, v12          ; dBr
    v_mul_f32 v13, v16, v13          ; dBi
    v_mul_f32 v18, v14, v12
    v_fma_f32 v18, -v15, v13, v18    ; Wr
    v_mul_f32 v19, v14, v13
    v_fma_f32 v19, v15, v12, v19     ; Wi
    v_mul_f32 v6, v18, v18
    v_fma_f32 v6, v19, v19, v6
    v_max_f32 v6, {f32(1e-36)}, v6
    v_log_f32 v6, v6
    s_nop 0
    v_mul_f32 v7, 0.25, v6
    v_exp_f32 v8, v7                 ; sv = |W|^(1/2)
    v_exp_f32 v7, -v7                ; 1/sv
    s_nop 0
    v_mul_f32 v18, v18, v7
    v_mul_f32 v19, v19, v7           ; W' = W/sv in v[18:19]
    '''.replace('0.25', f32(0.25)))

    def pw(dst, e):
        k(f'''
        v_mul_f32 v6, {f32(float(e))}, v10
        v_mul_f32 v7, {f32(float(e))}, v11
        v_exp_f32 v6, v6
        v_fract_f32 v7, v7
        v_cos_f32 v{dst}, v7
        v_sin_f32 v{dst+1}, v7
        s_nop 0
        v_mul_f32 v{dst}, v{dst}, v6
        v_mul_f32 v{dst+1}, v{dst+1}, v6
        ''')

    def cmul(d, x, y):
        k(f'''
        v_pk_mul_f32 v[{d}:{d+1}], v[{x}:{x+1}], v[{y}:{y+1}] op_sel:[0,0] op_sel_hi:[0,1]
        v_pk_fma_f32 v[{d}:{d+1}], v[{x}:{x+1}], v[{y}:{y+1}], v[{d}:{d+1}] op_sel:[1,1,0] op_sel_hi:[1,0,1] neg_lo:[0,1,0]
        ''')

    tmpc = [0]

    def outU(row, x):
        t = 60 + (tmpc[0] % 8)
        tmpc[0] += 1
        k(f'''
        v_cvt_pk_f16_f32 v{t}, v{x}, -v{x+1}
        ds_write_b32 v5, v{t} offset:{KG_UL + row*KG_RS}''')

    def outV(row, x):
        t = 60 + (tmpc[0] % 8)
        tmpc[0] += 1
        k(f'''
        v_cvt_pk_f16_f32 v{t}, v{x}, v{x+1}
        ds_write_b32 v5, v{t} offset:{KG_VL + row*KG_RS}''')

    k('''
    s_cmp_ge_u32 s6, 2
    s_cbranch_scc1 k1_kg_g1
    ''')
    pw(20, 1)
    pw(22, 128)
    pw(24, 256)
    pw(26, 8)
    k('v_mov_b32 v28, v18\nv_mov_b32 v29, v19')
    outU(0, 28)
    k('v_mov_b32 v48, v8\nv_mov_b32 v49, 0')
    outV(0, 48)
    for r in range(1, 8):
        cmul(28 + 2 * r, 28 + 2 * (r - 1), 20)
        outU(r, 28 + 2 * r)
        a, b = (48, 50) if r % 2 else (50, 48)
        cmul(b, a, 26)
        outV(r, b)
    for r in range(8):
        t = 44 + 2 * (r & 1)
        cmul(t, 28 + 2 * r, 22)
        outU(8 + r, t)
        if r % 2 == 0:
            cmul(52, t, 24)
            outU(20 + r // 2, 52)
            cmul(54, 28 + 2 * r, 24)
            outU(16 + r // 2, 54)
    k('s_branch k1_kg_join')
    k('k1_kg_g1:')
    pw(20, 4)
    pw(22, 128)
    pw(24, 1024)
    pw(26, 8)
    pw(28, 64)
    k('v_mul_f32 v48, v28, v8\nv_mul_f32 v49, v29, v8')
    outV(8, 48)
    cur = 18
    for a in range(8):
        if a > 0:
            nxt = 30 + 2 * (a & 1)
            cmul(nxt, cur, 22)
            cur = nxt
            va, vb = (48, 50) if a % 2 else (50, 48)
            cmul(vb, va, 26)
            outV(8 + a, vb)
        t = 36 + 2 * (a & 1)
        cmul(t, cur, 24)
        outU(32 + a, t)
        if a == 0:
            cmul(40, t, 24)
            outU(40, 40)
        if a >= 4:
            outU(24 + 2 * (a - 4), cur)
            cmul(42, cur, 20)
            outU(24 + 2 * (a - 4) + 1, 42)
    k('k1_kg_join:')
    k.stamp(2)
    k(f'''
    v_and_b32 v6, 63, v0             ; lane
    v_and_b32 v7, 15, v6             ; i
    v_lshrrev_b32 v9, 4, v6          ; q
    v_mul_u32_u24 v10, {KG_RS}, v7
    v_lshl_add_u32 v10, v9, 4, v10   ; i*RS + 16q
    s_mul_i32 s7, s6, {16*KG_RS}
    v_add_u32 v11, s7, v10           ; A addr
    s_waitcnt lgkmcnt(0)
    s_barrier
    s_cmp_ge_u32 s6, 3
    s_cbranch_scc1 k1_kg_gather
    ''')
    for s in range(8):
        k(f'''
        ds_read_b128 v[{16+8*s}:{19+8*s}], v11 offset:{KG_UL+64*s}
        ds_read_b128 v[{20+8*s}:{23+8*s}], v10 offset:{KG_VL+64*s}''')
    k('''
    s_cmp_eq_u32 s6, 1
    s_cbranch_scc1 k1_kg_w1
    s_cmp_eq_u32 s6, 2
    s_cbranch_scc1 k1_kg_w2
    v_lshrrev_b32 v12, 1, v9
    v_lshlrev_b32 v12, 7, v12
    v_and_b32 v13, 1, v9
    v_lshl_add_u32 v12, v13, 2, v12
    v_lshl_add_u32 v12, v7, 3, v12
    v_add_u32 v13, 1, v12
    v_add_u32 v14, 2, v12
    v_add_u32 v15, 3, v12
    s_branch k1_kg_wj
k1_kg_w1:
    ; q<2: 256+64q+4i+r ; q>=2: 384+64(q-2)+2i+{0,1,32,33}
    v_lshlrev_b32 v12, 6, v9
    v_add_u32 v12, 256, v12
    v_lshl_add_u32 v13, v7, 2, v12
    v_lshl_add_u32 v14, v7, 1, v12
    v_cmp_gt_u32 vcc, 2, v9
    s_nop 1
    v_cndmask_b32 v12, v14, v13, vcc
    v_mov_b32 v14, 32
    v_cndmask_b32 v14, v14, 2, vcc
    v_add_u32 v13, 1, v12
    v_add_u32 v14, v14, v12
    v_add_u32 v15, 1, v14
    s_branch k1_kg_wj
k1_kg_w2:
    v_lshlrev_b32 v12, 6, v9
    v_add_u32 v12, 512, v12
    v_add_u32 v12, v12, v7
    v_add_u32 v13, 16, v12
    v_add_u32 v14, 32, v12
    v_add_u32 v15, 48, v12
k1_kg_wj:
    '''.replace('v_cndmask_b32 v14, v14, 2, vcc', 'v_cndmask_b32_e64 v14, v14, 2, vcc'))
    for r in range(4):
        k(f'v_lshlrev_b32 v{12+r}, 1, v{12+r}')
    for s in range(8):
        k(f's_waitcnt lgkmcnt({14-2*s})')
        c = '0' if s == 0 else 'v[80:83]'
        k(f'v_mfma_f32_16x16x32_f16 v[80:83], v[{16+8*s}:{19+8*s}], v[{20+8*s}:{23+8*s}], {c}')
    k(f'''
    v_cvt_pk_bf16_f32 v84, v80, v81
    v_cvt_pk_bf16_f32 v85, v82, v83
    ds_write_b16 v12, v84 offset:{KG_T}
    ds_write_b16_d16_hi v13, v84 offset:{KG_T}
    ds_write_b16 v14, v85 offset:{KG_T}
    ds_write_b16_d16_hi v15, v85 offset:{KG_T}
k1_kg_gather:
    ; l_e = 2047 - 8*tid - e
    v_lshlrev_b32 v6, 3, v0
    v_sub_u32 v6, 2047, v6
    ''')
    for e in range(8):
        k(f'''
        v_subrev_u32 v{16+e}, {e}, v6
        v_cvt_f32_u32 v{24+e}, v{16+e}''')
    for e in range(0, 8, 2):
        k(f'v_cvt_pk_bf16_f32 v{32+e//2}, v{24+e}, v{25+e}')
    for e in range(8):
        if e % 2 == 0:
            k(f'v_and_b32 v{24+e}, 0xffff, v{32+e//2}')
        else:
            k(f'v_lshrrev_b32 v{24+e}, 16, v{32+e//2}')
        k(f'''
        v_subrev_u32 v{24+e}, {0x4300-128}, v{24+e}
        v_cmp_gt_u32 vcc, 128, v{16+e}
        v_cndmask_b32 v{24+e}, v{24+e}, v{16+e}, vcc
        v_lshlrev_b32 v{24+e}, 1, v{24+e}
        ''')
    k('''
    s_waitcnt lgkmcnt(0)
    s_barrier
    ''')
    k.stamp(3)
    for e in range(8):
        k(f'ds_read_u16 v{44+e}, v{24+e} offset:{KG_T}')
    k(f'''
    s_mul_i32 s7, s3, {KR_STRIDE}
    v_lshlrev_b32 v6, 4, v0
    v_mov_b32 v40, 0
    v_mov_b32 v41, 0
    v_mov_b32 v42, 0
    v_mov_b32 v43, 0
    s_waitcnt lgkmcnt(0)
    v_lshl_or_b32 v36, v45, 16, v44
    v_lshl_or_b32 v37, v47, 16, v46
    v_lshl_or_b32 v38, v49, 16, v48
    v_lshl_or_b32 v39, v51, 16, v50
    buffer_store_dwordx4 v[36:39], v6, s[84:87], s7 offen
    v_cmp_gt_u32 vcc, 2, v0
    s_and_saveexec_b64 s[14:15], vcc
    s_cbranch_execz k1_kg_end
    s_add_u32 s7, s7, 4096
    buffer_store_dwordx4 v[40:43], v6, s[84:87], s7 offen
k1_kg_end:
    ''')
    k.stamp(4)
    k('s_waitcnt vmcnt(0)')
    k.stamp(5)
    k.stamp_flush(0)
    k('s_endpgm')


def make_k1():
    import os
    NT = 8
    total = N_LN1 + N_MOD + N_WOF + N_KG + NT
    k = Kern('prep_kernel', total, 256, K1_LDS)
    k(f"""
    s_cmp_lt_u32 s2, {NT}
    s_cbranch_scc1 k1_code
    s_cmp_ge_u32 s2, {total}
    s_cbranch_scc1 k1_exit
    s_sub_u32 s2, s2, {NT}
    """)
    k.stamp_s = 88
    k.stamp_v = 20
    k.stamp(0)
    load_ptrs(k)
    k(f"""
    s_waitcnt lgkmcnt(0)
    s_cmp_ge_u32 s2, {B_WOF}
    s_cbranch_scc1 k1_wof
    s_cmp_ge_u32 s2, {B_MOD}
    s_cbranch_scc1 k1_mod
    s_cmp_ge_u32 s2, {B_LN1}
    s_cbranch_scc1 k1_ln1
    s_branch k1_kgen
    """)
    k('k1_code:')
    k(f"""
    s_getpc_b64 s[4:5]
k1ct_here:
    s_sub_u32 s4, s4, k1ct_here-prep_kernel
    s_subb_u32 s5, s5, 0
    v_lshlrev_b32 v1, 4, v0
    """)
    for j in range(int(os.environ.get('K1_CT', 4))):
        k(f"""global_load_dwordx4 v[{4+4*(j%8)}:{7+4*(j%8)}], v1, s[4:5]
        s_add_u32 s4, s4, 4096
        s_addc_u32 s5, s5, 0""")
    k('s_waitcnt vmcnt(0)\ns_endpgm')
    k('k1_kgen:')
    role_kgen(k)
    k('k1_ln1:')
    role_ln1(k)
    k('k1_mod:')
    role_mod(k)
    k('k1_wof:')
    role_wof(k)
    k('k1_exit:\ns_endpgm')
    return k
```

```python
import os
from asmlib import Kern
from layout import WS, XS
from gen_k1 import f32, load_ptrs, srd, srd_ws

SC = 'sc1'
SPIN_MAX = 100000


NS = 5
SLOT = 12288
PANEL = 65536
CONST = PANEL + 81920
SCR = CONST + 1024
KG_LDS = SCR + 1024
TAB = 98304
ZERO = TAB + 4 * 4096
CORR = ZERO + 1024
NK = 20
FK = int(os.environ.get('KG_FK', 4))
VB = [28, 44]
ACC2 = 60
ACC1 = 92
GRAM = 124
SUM = 132
ONES = 140
C0 = -2.0 * 0.7978845608028654 * 1.4426950408889634
C1 = C0 * 0.044715


def gelu4(k, regs, t0=162):
    T = [t0 + 2 * g for g in range(len(regs))]
    z = list(zip(regs, T))
    for x, t in z:
        k(f'v_pk_mul_f32 v[{t}:{t+1}], v[{x}:{x+1}], v[{x}:{x+1}]')
    for x, t in z:
        k(f'v_pk_fma_f32 v[{t}:{t+1}], v[{t}:{t+1}], s[72:73], v[176:177]')
    for x, t in z:
        k(f'v_pk_mul_f32 v[{t}:{t+1}], v[{t}:{t+1}], v[{x}:{x+1}]')
    for x, t in z:
        k(f'v_exp_f32 v{t}, v{t}\nv_exp_f32 v{t+1}, v{t+1}')
    for x, t in z:
        k(f'v_pk_add_f32 v[{t}:{t+1}], v[{t}:{t+1}], s[74:75]')
    for x, t in z:
        k(f'v_rcp_f32 v{t}, v{t}\nv_rcp_f32 v{t+1}, v{t+1}')
    for x, t in z:
        k(f'v_pk_mul_f32 v[{x}:{x+1}], v[{x}:{x+1}], v[{t}:{t+1}]')


def a_dma(st):
    return [f"""s_add_u32 m0, s10, {(st % NS)*SLOT}
    buffer_load_dwordx4 v12, s[60:63], s12 offen lds""",
            'buffer_load_dwordx4 v3, s[56:59], s11 offen offset:1024 lds',
            f"""buffer_load_dwordx4 v4, s[56:59], s11 offen offset:2048 lds
    s_add_u32 s11, s11, {32*XS}
    s_add_u32 s12, s12, {108*1024}"""]


def a_panel(kk):
    return f"""s_add_u32 m0, s15, {kk*1024}
    buffer_load_dwordx4 v12, s[60:63], s13 offen lds
    s_add_u32 s13, s13, {108*1024}"""


def a_frags(st):
    base = (st % NS) * SLOT
    L = []
    for a in range(2):
        x = 8 * st + 4 * a
        L.append(f'ds_read_b64_tr_b16 a[{x}:{x+1}], v{6+a} offset:{base}')
        L.append(f'ds_read_b64_tr_b16 a[{x+2}:{x+3}], v{6+a} offset:{base+1024}')
    B = VB[st & 1]
    for n in range(4):
        L.append(f'ds_read_b128 v[{B+4*n}:{B+4*n+3}], v12 offset:{base+3072*n}')
    return L


def flag_store(k, soff):
    k(f"""
    v_mov_b32 v15, 0
    v_mov_b32 v16, 1
    s_mov_b64 exec, 1
    buffer_store_dword v16, v15, s[84:87], s{soff} offen {SC}
    s_mov_b64 exec, -1
    """)


def phase_a(k):
    xo, xs = WS['X1T']
    srd(k, 56, 'ws', xs + 1024, xo - 1024)
    srd_ws(k, 60, 'WPF')
    srd_ws(k, 64, 'X1F')
    srd_ws(k, 76, 'CSP')
    srd_ws(k, 80, 'BIP')
    k(f"""
    s_lshl_b32 s9, s54, 2
    s_add_u32 s9, s9, s4
    s_mul_i32 s10, s4, 3072
    s_lshl_b32 s11, s54, 8
    s_lshr_b32 s5, s55, 1
    s_mul_i32 s5, s5, 7
    s_min_u32 s5, s5, 47             ; base
    s_and_b32 s6, s55, 1             ; type
    s_lshl_b32 s7, s6, 2
    s_add_u32 s70, s5, s7            ; z2base
    s_mul_i32 s7, s6, 3
    s_add_u32 s71, s5, s7            ; z1base
    s_sub_u32 s68, 3, s6             ; z2max
    s_add_u32 s69, s6, 2             ; z1max
    s_min_u32 s12, s4, s68
    s_add_u32 s12, s12, s70
    s_add_u32 s12, s12, 54
    s_lshl_b32 s12, s12, 10          ; z2 slot w
    s_min_u32 s13, s4, s69
    s_add_u32 s13, s13, s71
    s_lshl_b32 s13, s13, 10          ; z1 slot w
    s_mul_i32 s15, s4, 20480
    s_add_u32 s15, s15, {PANEL}
    s_and_b32 s3, s4, 1
    s_lshl_b32 s3, s3, 3
    v_lshlrev_b32 v16, 1, v14
    v_add_u32 v16, s3, v16
    v_xor_b32 v16, v16, v13
    v_lshlrev_b32 v16, 4, v16
    v_mul_u32_u24 v3, {XS}, v14
    v_add_u32 v3, v3, v16
    s_mul_i32 s3, s4, {8*XS}
    v_add_u32 v3, s3, v3
    v_add_u32 v4, {4*XS-1024}, v3
    """)
    issued = []

    def emit(l, tag):
        k(l)
        issued.append(tag)

    def wait_for(tags, extra=''):
        idx = [i for i, t in enumerate(issued) if t in tags]
        n = len(issued) - 1 - max(idx)
        k(f's_waitcnt vmcnt({n}) {extra}')

    for st in range(NS):
        for l in a_dma(st):
            emit(l, ('a', st))
    k(f"""
    v_bfe_u32 v17, v0, 4, 2
    v_min_u32 v18, s68, v17
    v_add_u32 v18, s70, v18
    v_add_u32 v18, 54, v18
    v_min_u32 v19, s69, v17
    v_add_u32 v19, s71, v19
    v_and_b32 v17, 64, v0
    v_cmp_eq_u32 vcc, 0, v17
    v_cndmask_b32 v17, v19, v18, vcc ; phi'
    v_lshrrev_b32 v18, 1, v17
    v_lshlrev_b32 v18, 5, v18
    v_and_b32 v17, 1, v17
    v_lshl_add_u32 v18, v17, 2, v18
    v_lshrrev_b32 v17, 2, v13
    v_lshl_add_u32 v18, v17, 3, v18
    v_and_b32 v17, 3, v13
    v_add_u32 v18, v18, v17
    v_lshlrev_b32 v18, 2, v18
    s_mov_b32 s14, {1728*4}
    s_mov_b32 s7, {2*1728*4}
    s_mov_b32 s3, {3*1728*4}
    s_cmp_ge_u32 s4, 2
    s_cbranch_scc1 kgA_cb
    buffer_load_dword v20, v18, s[76:79], 0 offen
    buffer_load_dword v21, v18, s[76:79], s14 offen
    buffer_load_dword v22, v18, s[76:79], s7 offen
    buffer_load_dword v23, v18, s[76:79], s3 offen
    s_branch kgA_cj
kgA_cb:
    buffer_load_dword v20, v18, s[80:83], 0 offen
    buffer_load_dword v21, v18, s[80:83], s14 offen
    buffer_load_dword v22, v18, s[80:83], s7 offen
    buffer_load_dword v23, v18, s[80:83], s3 offen
kgA_cj:
    s_lshl_b32 s3, s9, 11
    v_add_u32 v5, s3, v12
    v_lshrrev_b32 v218, 1, v5
    v_bfe_u32 v16, v1, 2, 2
    v_bfe_u32 v17, v1, 1, 1
    s_lshl_b32 s3, s4, 2
    v_add_u32 v17, s3, v17
    v_and_b32 v18, 1, v14
    v_lshlrev_b32 v18, 3, v18
    v_lshl_add_u32 v18, v16, 1, v18
    v_xor_b32 v17, v17, v18
    v_lshlrev_b32 v6, 4, v17
    v_lshl_add_u32 v6, v16, 8, v6
    v_mul_u32_u24 v18, 3072, v14
    v_add_u32 v6, v6, v18
    v_and_b32 v18, 1, v1
    v_lshl_add_u32 v6, v18, 3, v6
    v_add_u32 v6, 1024, v6
    v_xor_b32 v7, 32, v6
    s_mov_b32 s72, {f32(C1)}
    s_mov_b32 s73, {f32(C1)}
    s_mov_b32 s74, 1.0
    s_mov_b32 s75, 1.0
    v_mov_b32 v176, {f32(C0)}
    v_mov_b32 v177, {f32(C0)}
    """)
    issued += [('c', 0)] * 4
    for r in range(4):
        k(f'v_mov_b32 v{ONES+r}, 0x3f803f80')
    srd_ws(k, 76, 'STAT')
    srd_ws(k, 80, 'Z1F')
    srd_ws(k, 92, 'Z2F')
    srd_ws(k, 84, 'FLG')
    k.stamp(1)
    wait_for([('a', 0)])
    k('s_barrier')
    for l in a_frags(0):
        k(l)
    k.stamp(2)
    for kk in range(NK):
        fill = []
        if kk + 1 < NK:
            wait_for([('a', kk + 1)], 'lgkmcnt(0)')
            k('s_barrier')
            fill = [(None, l) for l in a_frags(kk + 1)]
            if kk + NS < NK:
                fill += [(('a', kk + NS), l) for l in a_dma(kk + NS)]
        else:
            k('s_waitcnt lgkmcnt(0)')
        fill.append((('p', 0), a_panel(kk)))
        B = VB[kk & 1]
        z = kk == 0
        M = []
        for a in range(2):
            x = f'a[{8*kk+4*a}:{8*kk+4*a+3}]'
            for n in range(4):
                acc = ACC2 + 4 * (4 * a + n)
                M.append(f'v_mfma_f32_16x16x32_bf16 v[{acc}:{acc+3}], {x}, v[{B+4*n}:{B+4*n+3}], ' + ('0' if z else f'v[{acc}:{acc+3}]'))
            g = GRAM + 4 * a
            s_ = SUM + 4 * a
            M.append(f'v_mfma_f32_16x16x32_bf16 v[{g}:{g+3}], {x}, {x}, ' + ('0' if z else f'v[{g}:{g+3}]'))
            M.append(f'v_mfma_f32_16x16x32_bf16 v[{s_}:{s_+3}], {x}, v[{ONES}:{ONES+3}], ' + ('0' if z else f'v[{s_}:{s_+3}]'))
        for n, mm in enumerate(M):
            k(mm)
            if n < len(fill):
                t, l = fill[n]
                k(l)
                if t:
                    issued.append(t)
        if kk == 6:
            k(f"""
            v_add_f32 v20, v20, v21
            v_add_f32 v22, v22, v23
            v_add_f32 v20, v20, v22
            v_lshlrev_b32 v16, 2, v0
            v_add_u32 v16, {CONST}, v16
            ds_write_b32 v16, v20
            """)
    k.stamp(3)
    k(f"""
    v_mul_u32_u24 v16, 80, v14
    v_lshlrev_b32 v17, 2, v13
    v_add_u32 v17, {CONST}, v17
    v_lshlrev_b32 v15, 4, v14
    v_add_u32 v15, {CONST}, v15
    """)
    for a in range(2):
        for r in range(4):
            g = GRAM + 4 * a + r
            k(f'ds_bpermute_b32 v{g}, v16, v{g} offset:{4*r}')
    for n in range(4):
        k(f"""
        ds_read_b32 v{144+4*n}, v17 offset:{64*n}
        ds_read_b32 v{146+4*n}, v17 offset:{512+64*n}""")
    k('s_waitcnt lgkmcnt(8)')
    for e in range(8):
        g = GRAM + e
        s_ = SUM + e
        t = 162 + (e & 3)
        k(f"""
        v_mul_f32 v{s_}, {f32(1.0/640)}, v{s_}
        v_mov_b32 v{t}, {f32(1e-5)}
        v_fmac_f32 v{t}, {f32(1.0/640)}, v{g}
        v_fma_f32 v{t}, -v{s_}, v{s_}, v{t}
        v_max_f32 v{t}, {f32(1e-5)}, v{t}
        v_rsq_f32 v{g}, v{t}
        v_mul_f32 v{s_}, -v{s_}, v{g}
        """)
    k(f"""
    v_and_b32 v18, 3, v13
    v_lshrrev_b32 v19, 2, v13
    v_lshl_add_u32 v19, v19, 4, v13
    v_lshlrev_b32 v19, 2, v19
    v_cmp_eq_u32 s[56:57], 1, v18
    v_cmp_eq_u32 s[58:59], 2, v18
    v_cmp_eq_u32 vcc, 3, v18
    """)
    for a in range(2):
        for (src, dst) in ((GRAM + 4 * a, 20 + 4 * a), (SUM + 4 * a, 22 + 4 * a)):
            k(f"""
            v_cndmask_b32 v{dst}, v{src}, v{src+1}, s[56:57]
            v_cndmask_b32 v{dst}, v{dst}, v{src+2}, s[58:59]
            v_cndmask_b32 v{dst}, v{dst}, v{src+3}, vcc
            ds_bpermute_b32 v{dst}, v19, v{dst}
            """)
    for n in range(4):
        k(f"""
        ds_read_b128 v[{180+8*n}:{183+8*n}], v15 offset:{256+64*n}
        ds_read_b128 v[{184+8*n}:{187+8*n}], v15 offset:{768+64*n}""")
    k('s_waitcnt lgkmcnt(12)')
    for n in range(4):
        k(f'v_mov_b32 v{145+4*n}, v{144+4*n}\nv_mov_b32 v{147+4*n}, v{146+4*n}')
    for e in range(16):
        k(f'v_mov_b32 v{28+e}, 0')
    k(f"""
    s_mul_i32 s3, s9, 54
    s_add_u32 s3, s3, s70
    """)
    for n in range(4):
        regs = []
        for a in range(2):
            acc = ACC2 + 4 * (4 * a + n)
            for p in range(2):
                x = acc + 2 * p
                g = GRAM + 4 * a + 2 * p
                s_ = SUM + 4 * a + 2 * p
                t = 162 + 2 * (2 * a + p)
                k(f"""
                v_pk_fma_f32 v[{t}:{t+1}], v[{144+4*n}:{145+4*n}], v[{s_}:{s_+1}], v[{146+4*n}:{147+4*n}]
                v_pk_fma_f32 v[{x}:{x+1}], v[{x}:{x+1}], v[{g}:{g+1}], v[{t}:{t+1}]""")
                regs.append(x)
        gelu4(k, regs)
        o = 44 + 4 * n
        for j, x in enumerate(regs):
            k(f'v_cvt_pk_bf16_f32 v{o+j}, v{x}, v{x+1}')
        k(f"""
        s_min_u32 s5, s68, {n}
        s_add_u32 s5, s5, s3
        s_lshl_b32 s5, s5, 10""")
        emit(f'buffer_store_dwordx4 v[{o}:{o+3}], v12, s[92:95], s5 offen {SC}', ('s', 0))
        lab = f'kgA_ns{n}'
        if n == 3:
            k(f's_cmp_eq_u32 s68, 3\ns_cbranch_scc0 {lab}')
        elif n < 2:
            k(f's_cmp_eq_u32 s55, 14\ns_cbranch_scc1 {lab}')
        for j, x in enumerate(regs):
            k(f"""
            v_pk_add_f32 v[{28+2*j}:{29+2*j}], v[{28+2*j}:{29+2*j}], v[{x}:{x+1}]
            v_pk_fma_f32 v[{36+2*j}:{37+2*j}], v[{x}:{x+1}], v[{x}:{x+1}], v[{36+2*j}:{37+2*j}]""")
        if n != 2:
            k(f'{lab}:')
    for n in (8, 4, 2, 1):
        for v in range(28, 44):
            k(f'v_add_f32_dpp v{v}, v{v}, v{v} row_ror:{n} row_mask:0xf bank_mask:0xf')
    for e in range(8):
        k(f'v_mov_b32 v{144+2*e}, v{28+e}\nv_mov_b32 v{145+2*e}, v{36+e}')
    k(f"""
    s_lshl_b32 s5, s4, 8
    s_add_u32 s5, s5, {SCR}
    v_lshlrev_b32 v15, 6, v14
    v_add_u32 v15, s5, v15
    v_lshl_add_u32 v16, v13, 2, v15
    v_cmp_eq_u32 vcc, 0, v13
    s_and_saveexec_b64 s[56:57], vcc
    ds_write_b128 v15, v[144:147]
    ds_write_b128 v15, v[148:151] offset:16
    ds_write_b128 v15, v[152:155] offset:32
    ds_write_b128 v15, v[156:159] offset:48
    s_mov_b64 exec, s[56:57]
    s_waitcnt lgkmcnt(0)
    ds_read_b32 v17, v16
    v_lshlrev_b32 v16, 2, v1
    s_lshl_b32 s5, s9, 8
    v_mov_b32 v21, v20
    v_mov_b32 v23, v22
    v_mov_b32 v25, v24
    v_mov_b32 v27, v26
    v_add_u32 v8, {PANEL}, v12
    v_add_u32 v9, {PANEL+40960}, v12
    s_waitcnt lgkmcnt(0)
    """)
    emit(f'buffer_atomic_add_f32 v17, v16, s[76:79], s5 offen {SC}', ('s', 0))
    k.stamp(4)
    b_setup(k)
    bpl = b_prefetch_list()
    wait_for([('p', 0)])
    k('s_barrier')

    def p_reads(kk):
        B = VB[kk & 1]
        return [f'ds_read_b128 v[{B+4*n}:{B+4*n+3}], v{8+(n>>1)} offset:{(n&1)*20480+1024*kk}' for n in range(4)]

    for l in p_reads(0):
        k(l)
    for kk in range(NK):
        nxt = p_reads(kk + 1) if kk + 1 < NK else []
        k('s_waitcnt lgkmcnt(0)')
        B = VB[kk & 1]
        m = 0
        for a in range(2):
            x = f'a[{8*kk+4*a}:{8*kk+4*a+3}]'
            for n in range(4):
                acc = ACC1 + 4 * (4 * a + n)
                k(f'v_mfma_f32_16x16x32_bf16 v[{acc}:{acc+3}], v[{B+4*n}:{B+4*n+3}], {x}, ' + ('0' if kk == 0 else f'v[{acc}:{acc+3}]'))
                if m < len(nxt):
                    k(nxt[m])
                if m in (5, 7) and bpl and kk >= FK + 1:
                    emit(bpl.pop(0), ('b', 0))
                m += 1
        if kk == FK:
            k(f"""
            s_lshl_b32 s3, s9, 4
            s_add_u32 s3, s3, s55
            s_lshl_b32 s3, s3, 2
            """)
            wait_for([('s', 0)])
            flag_store(k, 3)
            issued.append(('f', 0))
    assert not bpl
    k.stamp(5)
    k('s_barrier')
    k.stamp(6)
    for n in range(4):
        regs = []
        for a in range(2):
            acc = ACC1 + 4 * (4 * a + n)
            r = 20 + 4 * a
            for p in range(2):
                x = acc + 2 * p
                t = 162 + 2 * (2 * a + p)
                k(f"""
                v_pk_fma_f32 v[{t}:{t+1}], v[{180+8*n+2*p}:{181+8*n+2*p}], v[{r+2}:{r+3}], v[{184+8*n+2*p}:{185+8*n+2*p}]
                v_pk_fma_f32 v[{x}:{x+1}], v[{x}:{x+1}], v[{r}:{r+1}], v[{t}:{t+1}]""")
                regs.append(x)
        gelu4(k, regs)
        k(f"""
        s_min_u32 s3, s69, {n}
        s_add_u32 s3, s3, s71
        s_lshl_b32 s3, s3, 16
        """)
        for a in range(2):
            acc = ACC1 + 4 * (4 * a + n)
            k(f"""
            v_cvt_pk_bf16_f32 v{acc}, v{acc}, v{acc+1}
            v_cvt_pk_bf16_f32 v{acc+1}, v{acc+2}, v{acc+3}
            buffer_store_dwordx2 v[{acc}:{acc+1}], v218, s[80:83], s3 offen offset:{512*a} {SC}""")
    for kk in range(NK):
        k(f"""
        s_cmp_eq_u32 s55, {kk & 15}
        s_cbranch_scc0 kgA_nd{kk}
        s_mov_b32 s3, {kk*128*1024}
        buffer_store_dwordx4 a[{8*kk}:{8*kk+3}], v5, s[64:67], s3 offen {SC}
        buffer_store_dwordx4 a[{8*kk+4}:{8*kk+7}], v5, s[64:67], s3 offen offset:1024 {SC}
kgA_nd{kk}:
        """)
    k.stamp(7)
    k(f"""
    s_lshl_b32 s54, s9, 4
    s_add_u32 s54, s54, s55
    s_lshl_b32 s54, s54, 2
    s_add_u32 s54, s54, 8192
    """)
    k.stamp(8)


WSLOT = 8192
NWS = 3
DIST = int(os.environ.get('KG_DIST', 3))
NSET = DIST + 1
ZBL = [('v', 48 + 28 * n) for n in range(4)] + [('a', 128 + 28 * n) for n in range(4)]
ZB = ZBL[:NSET]
WB = [16, 32]


def zr(Z, b):
    return f'{Z[0]}[{Z[1]+4*b}:{Z[1]+4*b+3}]'


def wdma(P):
    slot = P % NWS
    L = []
    for m in range(8):
        c = m >> 1
        rowc = 32 * (c >> 1) + 4 * (c & 1)
        L.append(f'''s_add_u32 m0, s96, {slot*32768+1024*m}
    s_add_u32 s14, s97, {rowc*4096 + 128*P}
    buffer_load_dwordx4 v{220+(m&1)}, s[88:91], s14 offen lds''')
    return L


def b_setup(k):
    srd(k, 88, 'wsp', 2048 * 4096)
    k(f"""
    v_lshrrev_b32 v16, 3, v1
    v_lshrrev_b32 v17, 2, v16
    v_lshlrev_b32 v17, 3, v17
    v_and_b32 v16, 3, v16
    v_add_u32 v17, v17, v16
    v_lshlrev_b32 v17, 12, v17
    v_and_b32 v16, 7, v1
    v_xor_b32 v16, v16, v14
    v_lshl_add_u32 v220, v16, 4, v17
    v_xor_b32 v221, 64, v220
    v_add_u32 v221, {16*4096}, v221
    s_lshl_b32 s96, s4, 13
    s_lshl_b32 s97, s98, 18
    s_lshl_b32 s3, s4, 10
    s_add_u32 s97, s97, s3
    s_lshl_b32 s7, s2, 15
    v_lshlrev_b32 v219, 4, v0
    """)


def b_prefetch_list():
    L = wdma(0) + wdma(1)
    for j in range(8):
        L.append(f"""buffer_load_dwordx4 v[{224+4*(j&3)}:{227+4*(j&3)}], v219, s[88:91], s7 offen
    s_add_u32 s7, s7, 4096""")
    return L


def zloads(ks):
    Z = ZB[ks % NSET]
    L = []
    for b in range(7):
        v = 12 if b < 4 else 3
        L.append(f'buffer_load_dwordx4 {zr(Z, b)}, v{v}, s[60:63], s12 offen offset:{1024*(b%4)} {SC}')
    L[-1] += f'\ns_add_u32 s12, s12, {54*1024}'
    return L


def wreads(ks):
    slot = (ks >> 1) % NWS
    W = WB[ks & 1]
    va = (6 if slot < 2 else 222) + (ks & 1)
    return [f'ds_read_b128 v[{W+4*c}:{W+4*c+3}], v{va} offset:{(slot%2)*32768+2048*c}' for c in range(4)]


def poll_loop(k, body, tag, sleep=2):
    pre = int(os.environ.get('KG_PRE' + tag, 0))
    sleep = int(os.environ.get('KG_SLP' + tag, sleep))
    if pre:
        k(f's_sleep {pre}')
    k(f"""
    s_mov_b32 s3, 0
kg_poll{tag}:
    {body}
    s_cmp_eq_u64 vcc, 0
    s_cbranch_scc1 kg_rdy{tag}
    s_add_u32 s3, s3, 1
    s_cmp_lt_u32 s3, {SPIN_MAX}
    s_cbranch_scc0 kg_rdy{tag}
    s_sleep {sleep}
    s_branch kg_poll{tag}
kg_rdy{tag}:
    """)


RB = [160, 168]
MB = [176, 180]
ACCM = 112


def tabreads(ks):
    R = RB[ks & 1]
    M = MB[ks & 1]
    return [f'ds_read_b128 v[{R}:{R+3}], v4 offset:{128*ks}',
            f'ds_read_b128 v[{R+4}:{R+7}], v4 offset:{128*ks+16}',
            f'ds_read_b128 v[{M}:{M+3}], v5 offset:{64*ks}']


def scale_ops(ks):
    W = WB[ks & 1]
    R = RB[ks & 1]
    L = []
    for c in range(4):
        for d in range(4):
            w = W + 4 * c + d
            t = 184 + 2 * ((4 * c + d) % 4)
            L.append(f"""v_lshlrev_b32 v{t}, 16, v{w}
    v_and_b32 v{t+1}, 0xffff0000, v{w}
    v_pk_mul_f32 v[{t}:{t+1}], v[{t}:{t+1}], v[{R+2*d}:{R+2*d+1}]
    v_cvt_pk_bf16_f32 v{w}, v{t}, v{t+1}""")
    return L


def phase_b(k):
    srd_ws(k, 60, 'Z2F')
    srd_ws(k, 64, 'Z1F')
    srd_ws(k, 68, 'PF')
    srd(k, 72, 'bsp', 4096)
    k(f"""
    s_mul_i32 s8, s99, 7
    s_min_u32 s8, s8, 47             ; phi0
    v_add_u32 v3, 4096, v12
    v_lshrrev_b32 v8, 2, v13
    v_lshlrev_b32 v8, 3, v8
    v_and_b32 v9, 3, v13
    v_add_u32 v8, v8, v9             ; row_local
    v_lshrrev_b32 v11, 1, v13
    v_xor_b32 v11, v11, v14
    v_lshlrev_b32 v11, 4, v11
    v_lshl_add_u32 v6, v13, 7, v11
    v_add_u32 v6, s96, v6
    v_xor_b32 v7, 64, v6
    v_add_u32 v222, 65536, v6
    v_add_u32 v223, 65536, v7
    s_mul_i32 s12, s4, {16*54}
    s_add_u32 s12, s12, s8
    s_lshl_b32 s12, s12, 10
    s_lshl_b32 s9, s98, 2
    s_add_u32 s9, s9, s4             ; tau
    s_lshl_b32 s13, s9, 10
    v_add_u32 v10, s13, v12
    v_lshrrev_b32 v217, 1, v10
    s_lshr_b32 s13, s4, 1
    s_lshl_b32 s13, s13, 5
    s_and_b32 s15, s4, 1
    s_lshl_b32 s15, s15, 2
    s_add_u32 s13, s13, s15
    s_lshl_b32 s15, s98, 6
    s_add_u32 s13, s13, s15
    s_lshl_b32 s13, s13, 1
    v_lshlrev_b32 v9, 1, v8
    buffer_load_ushort v206, v9, s[72:75], s13 offen
    s_lshl_b32 s10, s4, 12
    s_add_u32 s10, s10, {TAB}
    v_lshlrev_b32 v4, 5, v14
    v_add_u32 v4, s10, v4
    v_lshlrev_b32 v5, 4, v14
    v_mov_b32 v16, {ZERO}
    s_add_u32 s5, s10, 2048
    v_mov_b32 v17, s5
    v_cmp_eq_u32 vcc, 0, v13
    v_cndmask_b32 v16, v16, v17, vcc
    v_add_u32 v17, 1024, v17
    v_cmp_eq_u32 vcc, 1, v13
    v_cndmask_b32 v16, v16, v17, vcc
    v_add_u32 v5, v5, v16
    v_mov_b32 v16, 0
    v_mov_b32 v17, 0
    v_mov_b32 v18, 0
    v_mov_b32 v19, 0
    v_add_u32 v15, {ZERO}, v12
    ds_write_b128 v15, v[16:19]
    s_lshl_b32 s5, s4, 10
    s_lshr_b32 s6, s9, 1
    s_lshl_b32 s6, s6, 6
    s_lshl_b32 s7, s99, 3
    s_add_u32 s6, s6, s7
    v_and_b32 v2, 1, v1
    v_lshlrev_b32 v2, 2, v2
    s_waitcnt lgkmcnt(0)
    """)
    k('s_add_u32 s11, s6, 8192')
    poll_loop(k, f"""buffer_load_dwordx4 v[48:51], v12, s[84:87], s5 offen {SC}
    s_waitcnt vmcnt(0)
    v_min_u32 v48, v48, v49
    v_min3_u32 v48, v48, v50, v51
    v_cmp_eq_u32 vcc, 0, v48""", 'B', 16)
    flag_store(k, 54)
    for l in wreads(0):
        k(l)
    k.stamp(9)
    issued = [('f', 0)]

    def emit(l, tag):
        k(l)
        issued.append(tag)

    k('s_lshl_b32 s5, s4, 12\nv_lshlrev_b32 v15, 6, v1')
    for n in range(4):
        emit(f'buffer_load_dwordx4 v[{132+4*n}:{135+4*n}], v15, s[76:79], s5 offen offset:{16*n} {SC}', ('s', 0))
    for ks in range(2):
        for l in zloads(ks):
            emit(l, ('z', ks))
    def wait_for(tags, extra=''):
        idx = [i for i, t in enumerate(issued) if t in tags]
        n = len(issued) - 1 - max(idx)
        k(f's_waitcnt vmcnt({n}) {extra}')

    wait_for([('s', 0)])
    for e in range(8):
        m = 132 + 2 * e
        k(f"""
        v_mul_f32 v{m}, {f32(1.0/864)}, v{m}
        v_mov_b32 v15, {f32(1e-5)}
        v_fmac_f32 v15, {f32(1.0/864)}, v{m+1}
        v_fma_f32 v15, -v{m}, v{m}, v15
        v_max_f32 v15, {f32(1e-5)}, v15
        v_rsq_f32 v{148+e}, v15
        """)
    for d in range(4):
        m0, m1 = 132 + 4 * d, 134 + 4 * d
        k(f"""
        v_cvt_pk_bf16_f32 v{156+d}, v{m0}, v{m1}
        v_lshlrev_b32 v{m0+1}, 16, v{156+d}
        v_and_b32 v{m1+1}, 0xffff0000, v{156+d}
        v_sub_f32 v{m0}, v{m0}, v{m0+1}
        v_sub_f32 v{m1}, v{m1}, v{m1+1}
        v_cvt_pk_bf16_f32 v{184+d}, v{m0}, v{m1}
        """)
    k(f"""
    v_lshlrev_b32 v15, 5, v1
    v_add_u32 v15, s10, v15
    ds_write_b128 v15, v[148:151]
    ds_write_b128 v15, v[152:155] offset:16
    v_add_u32 v15, s10, v12
    ds_write_b128 v15, v[156:159] offset:2048
    ds_write_b128 v15, v[184:187] offset:3072
    s_waitcnt lgkmcnt(0)
    """)
    for l in tabreads(0):
        k(l)
    k('s_waitcnt lgkmcnt(0)')
    for l in scale_ops(0):
        k(l)
    nz = 2
    for ks in range(16):
        Z = ZB[ks % NSET]
        W = WB[ks & 1]
        M = MB[ks & 1]
        need = [('z', ks)] if not os.environ.get('KG_NOZ') else [('z', min(ks, 3))]
        if ks + 1 < 16 and (ks + 1) >> 1 >= 2 and not os.environ.get('KG_NOW'):
            need.append(('w', (ks + 1) >> 1))
        wait_for(need, 'lgkmcnt(0)' if os.environ.get('KG_NOSCALE') else '')
        early = []
        if ks + 1 < 16:
            early += [(None, l) for l in wreads(ks + 1) + tabreads(ks + 1)]
        mem = []
        cnt2 = 0 if not os.environ.get('KG_NOZ') else 2 if ks > 1 else 0
        while nz <= min(ks + DIST, 15) and cnt2 < 2:
            mem += [(('z', nz), l) for l in zloads(nz)]
            nz += 1
            cnt2 += 1
        if ks % 2 == 0 and (ks >> 1) + 2 < 8 and not os.environ.get('KG_NOW'):
            P = (ks >> 1) + 2
            mem += [(('w', P), l) for l in wdma(P)]
        sc = scale_ops(ks + 1) if (ks + 1 < 16 and not os.environ.get('KG_NOSCALE')) else []
        MF = []
        for c in range(4):
            for b in range(7):
                a = 4 * (7 * c + b)
                cc = '0' if ks == 0 else f'a[{a}:{a+3}]'
                MF.append(f'v_mfma_f32_16x16x32_bf16 a[{a}:{a+3}], {zr(Z, b)}, v[{W+4*c}:{W+4*c+3}], {cc}')
            a = ACCM + 4 * c
            cc = '0' if ks == 0 else f'a[{a}:{a+3}]'
            MF.append(f'v_mfma_f32_16x16x32_bf16 a[{a}:{a+3}], v[{M}:{M+3}], v[{W+4*c}:{W+4*c+3}], {cc}')
        mi = 0
        for n, mm in enumerate(MF):
            k(mm)
            if n < len(early):
                k(early[n][1])
            if mi < len(mem) and (n >= len(early) or len(mem) > 24):
                t, l = mem[mi]
                k(l)
                issued.append(t)
                mi += 1
            if n == 13 and sc:
                k('s_waitcnt lgkmcnt(0)')
            if 14 <= n < 30 and sc:
                k(sc[n - 14])
        assert mi == len(mem), (ks, mi, len(mem))
    k.stamp(10)
    poll_loop(k, f"""buffer_load_dword v15, v2, s[84:87], s11 offen {SC}
    s_waitcnt vmcnt(0)
    v_cmp_eq_u32 vcc, 0, v15""", 'Z', 4)
    for b in range(7):
        k(f"""
        s_add_u32 s13, s8, {b}
        s_lshl_b32 s{76+b}, s13, 16
        buffer_load_dwordx2 v[{192+2*b}:{193+2*b}], v217, s[64:67], s{76+b} offen {SC}""")
    for c in range(4):
        k(f'v_accvgpr_read_b32 v{16+2*c}, a{ACCM+4*c}\nv_accvgpr_read_b32 v{17+2*c}, a{ACCM+4*c+1}')
    k(f"""
    s_lshl_b32 s5, s4, 8
    s_add_u32 s5, s5, {CORR}
    v_lshlrev_b32 v15, 2, v13
    v_add_u32 v11, s5, v15
    v_add_f32 v16, v16, v17
    v_add_f32 v18, v18, v19
    v_add_f32 v20, v20, v21
    v_add_f32 v22, v22, v23
    s_mov_b64 exec, 0xffff
    ds_write_b32 v11, v16
    ds_write_b32 v11, v18 offset:64
    ds_write_b32 v11, v20 offset:128
    ds_write_b32 v11, v22 offset:192
    s_mov_b64 exec, -1
    s_barrier
    """)
    for w in range(4):
        k(f"""
        s_cmp_eq_u32 s4, {w}
        s_cbranch_scc0 kgB_red_{w}""")
        for c in range(4):
            if c == w:
                continue
            src = (w - c - 1) % 4
            k(f'v_add_u32 v11, {(c*3+src)*7168}, v12')
            for b in range(7):
                a = 4 * (7 * c + b)
                k(f'ds_write_b128 v11, a[{a}:{a+3}] offset:{1024*b}')
        for n in range(28):
            k(f'v_accvgpr_read_b32 v{16+n}, a{28*w+n}')
        k(f'kgB_red_{w}:')
    k(f"""
    s_mul_i32 s14, s4, {3*7168}
    v_add_u32 v11, s14, v12
    s_lshl_b32 s5, s4, 6
    s_add_u32 s5, s5, {CORR}
    v_add_u32 v15, s5, v15
    s_waitcnt lgkmcnt(0)
    s_barrier
    ds_read_b32 v140, v15
    ds_read_b32 v141, v15 offset:256
    ds_read_b32 v142, v15 offset:512
    ds_read_b32 v143, v15 offset:768
    """)
    for b in range(3):
        for s in range(3):
            r = 48 + 12 * b + 4 * s
            k(f'ds_read_b128 v[{r}:{r+3}], v11 offset:{s*7168+1024*b}')
    k(f"""
    s_waitcnt lgkmcnt(9) vmcnt(0)
    v_lshlrev_b32 v206, 16, v206
    v_add_f32 v140, v140, v141
    v_add_f32 v142, v142, v143
    v_sub_f32 v206, v206, v140
    v_sub_f32 v206, v206, v142
    v_mov_b32 v207, v206
    """)
    for b in range(3, 7):
        for s in range(3):
            r = 48 + 12 * b + 4 * s
            k(f'ds_read_b128 v[{r}:{r+3}], v11 offset:{s*7168+1024*b}')
    for b in range(7):
        k(f's_waitcnt lgkmcnt({min(15, 18-3*b)})')
        o = 16 + 4 * b
        r = 48 + 12 * b
        for p in range(2):
            k(f"""
            v_pk_add_f32 v[{o+2*p}:{o+2*p+1}], v[{o+2*p}:{o+2*p+1}], v[{r+2*p}:{r+2*p+1}]
            v_pk_add_f32 v[{r+4+2*p}:{r+4+2*p+1}], v[{r+4+2*p}:{r+4+2*p+1}], v[{r+8+2*p}:{r+8+2*p+1}]
            v_pk_add_f32 v[{o+2*p}:{o+2*p+1}], v[{o+2*p}:{o+2*p+1}], v[206:207]
            v_lshlrev_b32 v{r}, 16, v{192+2*b+p}
            v_and_b32 v{r+1}, 0xffff0000, v{192+2*b+p}
            v_pk_add_f32 v[{o+2*p}:{o+2*p+1}], v[{o+2*p}:{o+2*p+1}], v[{r+4+2*p}:{r+4+2*p+1}]
            v_pk_mul_f32 v[{o+2*p}:{o+2*p+1}], v[{o+2*p}:{o+2*p+1}], v[{r}:{r+1}]
            v_cvt_pk_bf16_f32 v{192+2*b+p}, v{o+2*p}, v{o+2*p+1}
            """)
    k(f"""
    s_add_u32 s5, s8, 1
    s_lshr_b32 s5, s5, 1
    s_lshl_b32 s5, s5, 17
    s_add_u32 s6, s5, {1<<17}
    s_add_u32 s7, s5, {2<<17}
    s_and_b32 s13, s8, 1
    s_cmp_eq_u32 s13, 0
    s_cbranch_scc0 kgB_odd
    s_add_u32 s13, s5, {3<<17}
    buffer_store_dwordx4 v[192:195], v10, s[68:71], s5 offen {SC}
    buffer_store_dwordx4 v[196:199], v10, s[68:71], s6 offen {SC}
    buffer_store_dwordx4 v[200:203], v10, s[68:71], s7 offen {SC}
    buffer_store_dwordx2 v[204:205], v10, s[68:71], s13 offen {SC}
    s_branch kgB_st
kgB_odd:
    s_sub_u32 s13, s5, {1<<17}
    buffer_store_dwordx4 v[194:197], v10, s[68:71], s5 offen {SC}
    buffer_store_dwordx4 v[198:201], v10, s[68:71], s6 offen {SC}
    buffer_store_dwordx4 v[202:205], v10, s[68:71], s7 offen {SC}
    buffer_store_dwordx2 v[192:193], v10, s[68:71], s13 offen offset:8 {SC}
kgB_st:
    """)
    k(f"""
    s_lshl_b32 s3, s98, 3
    s_add_u32 s3, s3, s99
    s_lshl_b32 s3, s3, 2
    s_add_u32 s3, s3, s4
    s_lshl_b32 s3, s3, 2
    s_add_u32 s3, s3, 4096
    v_mov_b32 v15, 0
    v_mov_b32 v16, 1
    s_waitcnt vmcnt(0)
    s_mov_b64 exec, 1
    buffer_store_dword v16, v15, s[84:87], s3 offen {SC}
    s_mov_b64 exec, -1
    """)
    k.stamp(11)
    k('s_barrier')
    c_panel(k)


NPS = 8
PSET = [16 + 4 * n for n in range(NPS)]
WOS = [48, 68]
ACC3 = 88


def c_panel(k):
    srd_ws(k, 56, 'WOF')
    k(f"""
    s_mul_i32 s5, s4, 40
    s_mul_i32 s6, s99, 5
    s_add_u32 s5, s5, s6
    s_lshl_b32 s5, s5, 10            ; (w*40 + 5e) KB
    s_mul_i32 s6, s4, 5120
    """)
    for n in range(7):
        k(f's_add_u32 m0, s6, {n*4*5120}')
        for b in range(4):
            k(f'buffer_load_dwordx4 v12, s[56:59], s5 offen offset:{1024*b} lds')
        k(f"""s_add_u32 m0, s6, {n*4*5120+4096}
        buffer_load_dwordx4 v3, s[56:59], s5 offen lds
        s_add_u32 s5, s5, {4*40*1024}""")


def phase_c(k):
    srd_ws(k, 60, 'PF')
    srd_ws(k, 64, 'X1F')
    srd_ws(k, 68, 'MODF')
    srd(k, 72, 'out', 2048 * 1280)
    k(f"""
    s_mul_i32 s8, s99, 5             ; delta0
    v_mul_u32_u24 v4, 1280, v8
    v_lshl_add_u32 v4, v14, 4, v4
    v_lshlrev_b32 v5, 5, v14
    s_mov_b32 s12, 0
    s_lshr_b32 s14, s4, 1
    s_lshl_b32 s14, s14, 5
    s_and_b32 s15, s4, 1
    s_lshl_b32 s15, s15, 2
    s_add_u32 s14, s14, s15
    s_lshl_b32 s15, s98, 6
    s_add_u32 s14, s14, s15
    s_mul_i32 s13, s14, 1280
    v_add_u32 v6, 61440, v12
    v_add_u32 v7, 122880, v12
    """)
    for b in range(5):
        k(f"""
        s_add_u32 s14, s8, {b}
        s_lshr_b32 s15, s14, 1           ; dblk
        s_and_b32 s14, s14, 1            ; h
        s_lshl_b32 s5, s15, 17
        s_lshl_b32 s6, s14, 3
        s_add_u32 s{76+b}, s5, s6        ; x1f soffset
        s_lshl_b32 s5, s15, 6
        s_add_u32 s5, s5, s6
        s_add_u32 s{88+b}, s5, s13
        s_lshl_b32 s5, s5, 1
        s_add_u32 s5, s5, {5*640*4}
        buffer_load_dwordx4 v[{228+4*b}:{231+4*b}], v5, s[68:71], s5 offen
        """)
    k(f"""
    s_lshl_b32 s3, s98, 7
    s_lshl_b32 s5, s4, 2
    s_add_u32 s3, s3, s5
    s_add_u32 s3, s3, 4096
    v_add_u32 v2, s3, v12
    s_lshr_b32 s5, s8, 1
    s_add_u32 s5, s5, 8
    v_add_u32 v17, s5, v1
    v_and_b32 v17, 15, v17
    v_lshlrev_b32 v18, 2, v17
    s_lshr_b32 s5, s9, 1
    s_lshl_b32 s5, s5, 6
    s_add_u32 s5, s5, 8192
    v_add_u32 v18, s5, v18
    v_cmp_gt_u32 vcc, 8, v1
    v_cndmask_b32 v2, v18, v2, vcc
    s_mov_b64 exec, 0x7ff
    """)
    poll_loop(k, f"""buffer_load_dword v15, v2, s[84:87], 0 offen {SC}
    s_waitcnt vmcnt(0)
    v_cmp_eq_u32 vcc, 0, v15""", 'C', 2)
    k('s_mov_b64 exec, -1')
    k.stamp(12)
    issued = []

    def pload(be):
        P = PSET[be % NPS]
        k(f"""buffer_load_dwordx4 v[{P}:{P+3}], v10, s[60:63], s12 offen {SC}
        s_add_u32 s12, s12, {128*1024}""")
        issued.append(be)

    def wo_reads(be):
        W = WOS[be & 1]
        va = (12, 6, 7)[be // 12]
        return [f'ds_read_b128 v[{W+4*b}:{W+4*b+3}], v{va} offset:{(be % 12)*5120+1024*b}' for b in range(5)]

    for be in range(NPS - 1):
        pload(be)
    for b in range(5):
        k(f'buffer_load_dwordx2 v[{196+2*b}:{197+2*b}], v10, s[64:67], s{76+b} offen {SC}')
        issued.append(-1)
    k('s_barrier')
    for l in wo_reads(0):
        k(l)
    for be in range(27):
        P = PSET[be % NPS]
        W = WOS[be & 1]
        last = max(i for i, t in enumerate(issued) if t == be)
        k(f's_waitcnt vmcnt({len(issued) - 1 - last}) lgkmcnt(0)')
        nxt = wo_reads(be + 1) if be + 1 < 27 else []
        for b in range(5):
            a = ACC3 + 4 * b
            cc = '0' if be == 0 else f'v[{a}:{a+3}]'
            k(f'v_mfma_f32_16x16x32_bf16 v[{a}:{a+3}], v[{W+4*b}:{W+4*b+3}], v[{P}:{P+3}], {cc}')
            if b < len(nxt):
                k(nxt[b])
        if be + NPS - 1 < 27:
            pload(be + NPS - 1)
    k.stamp(13)
    k('s_waitcnt vmcnt(0)')
    for b in range(5):
        o = ACC3 + 4 * b
        for p in range(2):
            r = 16 + 4 * b + 2 * p
            k(f"""
            v_lshlrev_b32 v{r}, 16, v{196+2*b+p}
            v_and_b32 v{r+1}, 0xffff0000, v{196+2*b+p}
            v_pk_fma_f32 v[{o+2*p}:{o+2*p+1}], v[{o+2*p}:{o+2*p+1}], v[{228+4*b+2*p}:{229+4*b+2*p}], v[{r}:{r+1}]
            v_cvt_pk_bf16_f32 v{196+2*b+p}, v{o+2*p}, v{o+2*p+1}
            """)
        k(f'buffer_store_dwordx2 v[{196+2*b}:{197+2*b}], v4, s[72:75], s{88+b} offen')
    k.stamp(14)


def make_kg():
    k = Kern('gemm_kernel', 256, 256, KG_LDS)
    k('''
    s_cmp_ge_u32 s2, 256
    s_cbranch_scc1 kg_exit
    ''')
    k.stamp(0)
    load_ptrs(k)
    k(f'''
    s_and_b32 s3, s2, 7              ; xcd
    s_lshr_b32 s5, s2, 3             ; kx
    s_lshr_b32 s6, s3, 1             ; xh
    s_and_b32 s7, s3, 1              ; xl
    s_lshl_b32 s54, s6, 2
    s_and_b32 s8, s5, 3
    s_add_u32 s54, s54, s8
    s_lshl_b32 s55, s7, 3
    s_lshr_b32 s8, s5, 2
    s_add_u32 s55, s55, s8
    s_lshl_b32 s98, s6, 3
    s_and_b32 s8, s5, 7
    s_add_u32 s98, s98, s8
    s_lshl_b32 s99, s7, 2
    s_lshr_b32 s8, s5, 3
    s_add_u32 s99, s99, s8
    v_and_b32 v1, 63, v0
    v_lshrrev_b32 v15, 6, v0
    v_lshlrev_b32 v12, 4, v1
    v_and_b32 v13, 15, v1
    v_lshrrev_b32 v14, 4, v1
    v_readfirstlane_b32 s4, v15
    s_waitcnt lgkmcnt(0)
    ''')
    phase_a(k)
    phase_b(k)
    phase_c(k)
    if os.environ.get('STAMP'):
        k('s_waitcnt vmcnt(0)')
    k.stamp(15)
    k.stamp_flush(2)
    k('kg_exit:\ns_endpgm')
    return k
```

```python
import os
from asmlib import Kern
from layout import WS, XS
from gen_k1 import f32, load_ptrs, srd, srd_ws

SC = 'sc1'
SPIN_MAX = 100000


NS = 5
SLOT = 12288
PANEL = 65536
CONST = PANEL + 81920
SCR = CONST + 1024
KG_LDS = SCR + 1024
TAB = 98304
ZERO = TAB + 4 * 4096
CORR = ZERO + 1024
NK = 20
FK = int(os.environ.get('KG_FK', 4))
VB = [28, 44]
ACC2 = 60
ACC1 = 92
GRAM = 124
SUM = 132
ONES = 140
C0 = -2.0 * 0.7978845608028654 * 1.4426950408889634
C1 = C0 * 0.044715


def gelu4(k, regs, t0=162):
    T = [t0 + 2 * g for g in range(len(regs))]
    z = list(zip(regs, T))
    for x, t in z:
        k(f'v_pk_mul_f32 v[{t}:{t+1}], v[{x}:{x+1}], v[{x}:{x+1}]')
    for x, t in z:
        k(f'v_pk_fma_f32 v[{t}:{t+1}], v[{t}:{t+1}], s[72:73], v[176:177]')
    for x, t in z:
        k(f'v_pk_mul_f32 v[{t}:{t+1}], v[{t}:{t+1}], v[{x}:{x+1}]')
    for x, t in z:
        k(f'v_exp_f32 v{t}, v{t}\nv_exp_f32 v{t+1}, v{t+1}')
    for x, t in z:
        k(f'v_pk_add_f32 v[{t}:{t+1}], v[{t}:{t+1}], s[74:75]')
    for x, t in z:
        k(f'v_rcp_f32 v{t}, v{t}\nv_rcp_f32 v{t+1}, v{t+1}')
    for x, t in z:
        k(f'v_pk_mul_f32 v[{x}:{x+1}], v[{x}:{x+1}], v[{t}:{t+1}]')


def a_dma(st):
    return [f"""s_add_u32 m0, s10, {(st % NS)*SLOT}
    buffer_load_dwordx4 v12, s[60:63], s12 offen lds""",
            'buffer_load_dwordx4 v3, s[56:59], s11 offen offset:1024 lds',
            f"""buffer_load_dwordx4 v4, s[56:59], s11 offen offset:2048 lds
    s_add_u32 s11, s11, {32*XS}
    s_add_u32 s12, s12, {108*1024}"""]


def a_panel(kk):
    return f"""s_add_u32 m0, s15, {kk*1024}
    buffer_load_dwordx4 v12, s[60:63], s13 offen lds
    s_add_u32 s13, s13, {108*1024}"""


def a_frags(st):
    base = (st % NS) * SLOT
    L = []
    for a in range(2):
        x = 8 * st + 4 * a
        L.append(f'ds_read_b64_tr_b16 a[{x}:{x+1}], v{6+a} offset:{base}')
        L.append(f'ds_read_b64_tr_b16 a[{x+2}:{x+3}], v{6+a} offset:{base+1024}')
    B = VB[st & 1]
    for n in range(4):
        L.append(f'ds_read_b128 v[{B+4*n}:{B+4*n+3}], v12 offset:{base+3072*n}')
    return L


def flag_store(k, soff):
    k(f"""
    v_mov_b32 v15, 0
    v_mov_b32 v16, 1
    s_mov_b64 exec, 1
    buffer_store_dword v16, v15, s[84:87], s{soff} offen {SC}
    s_mov_b64 exec, -1
    """)


def phase_a(k):
    xo, xs = WS['X1T']
    srd(k, 56, 'ws', xs + 1024, xo - 1024)
    srd_ws(k, 60, 'WPF')
    srd_ws(k, 64, 'X1F')
    srd_ws(k, 76, 'CSP')
    srd_ws(k, 80, 'BIP')
    k(f"""
    s_lshl_b32 s9, s54, 2
    s_add_u32 s9, s9, s4
    s_mul_i32 s10, s4, 3072
    s_lshl_b32 s11, s54, 8
    s_lshr_b32 s5, s55, 1
    s_mul_i32 s5, s5, 7
    s_min_u32 s5, s5, 47             ; base
    s_and_b32 s6, s55, 1             ; type
    s_lshl_b32 s7, s6, 2
    s_add_u32 s70, s5, s7            ; z2base
    s_mul_i32 s7, s6, 3
    s_add_u32 s71, s5, s7            ; z1base
    s_sub_u32 s68, 3, s6             ; z2max
    s_add_u32 s69, s6, 2             ; z1max
    s_min_u32 s12, s4, s68
    s_add_u32 s12, s12, s70
    s_add_u32 s12, s12, 54
    s_lshl_b32 s12, s12, 10          ; z2 slot w
    s_min_u32 s13, s4, s69
    s_add_u32 s13, s13, s71
    s_lshl_b32 s13, s13, 10          ; z1 slot w
    s_mul_i32 s15, s4, 20480
    s_add_u32 s15, s15, {PANEL}
    s_and_b32 s3, s4, 1
    s_lshl_b32 s3, s3, 3
    v_lshlrev_b32 v16, 1, v14
    v_add_u32 v16, s3, v16
    v_xor_b32 v16, v16, v13
    v_lshlrev_b32 v16, 4, v16
    v_mul_u32_u24 v3, {XS}, v14
    v_add_u32 v3, v3, v16
    s_mul_i32 s3, s4, {8*XS}
    v_add_u32 v3, s3, v3
    v_add_u32 v4, {4*XS-1024}, v3
    """)
    issued = []

    def emit(l, tag):
        k(l)
        issued.append(tag)

    def wait_for(tags, extra=''):
        idx = [i for i, t in enumerate(issued) if t in tags]
        n = len(issued) - 1 - max(idx)
        k(f's_waitcnt vmcnt({n}) {extra}')

    for st in range(NS):
        for l in a_dma(st):
            emit(l, ('a', st))
    k(f"""
    v_bfe_u32 v17, v0, 4, 2
    v_min_u32 v18, s68, v17
    v_add_u32 v18, s70, v18
    v_add_u32 v18, 54, v18
    v_min_u32 v19, s69, v17
    v_add_u32 v19, s71, v19
    v_and_b32 v17, 64, v0
    v_cmp_eq_u32 vcc, 0, v17
    v_cndmask_b32 v17, v19, v18, vcc ; phi'
    v_lshrrev_b32 v18, 1, v17
    v_lshlrev_b32 v18, 5, v18
    v_and_b32 v17, 1, v17
    v_lshl_add_u32 v18, v17, 2, v18
    v_lshrrev_b32 v17, 2, v13
    v_lshl_add_u32 v18, v17, 3, v18
    v_and_b32 v17, 3, v13
    v_add_u32 v18, v18, v17
    v_lshlrev_b32 v18, 2, v18
    s_mov_b32 s14, {1728*4}
    s_mov_b32 s7, {2*1728*4}
    s_mov_b32 s3, {3*1728*4}
    s_cmp_ge_u32 s4, 2
    s_cbranch_scc1 kgA_cb
    buffer_load_dword v20, v18, s[76:79], 0 offen
    buffer_load_dword v21, v18, s[76:79], s14 offen
    buffer_load_dword v22, v18, s[76:79], s7 offen
    buffer_load_dword v23, v18, s[76:79], s3 offen
    s_branch kgA_cj
kgA_cb:
    buffer_load_dword v20, v18, s[80:83], 0 offen
    buffer_load_dword v21, v18, s[80:83], s14 offen
    buffer_load_dword v22, v18, s[80:83], s7 offen
    buffer_load_dword v23, v18, s[80:83], s3 offen
kgA_cj:
    s_lshl_b32 s3, s9, 11
    v_add_u32 v5, s3, v12
    v_lshrrev_b32 v218, 1, v5
    v_bfe_u32 v16, v1, 2, 2
    v_bfe_u32 v17, v1, 1, 1
    s_lshl_b32 s3, s4, 2
    v_add_u32 v17, s3, v17
    v_and_b32 v18, 1, v14
    v_lshlrev_b32 v18, 3, v18
    v_lshl_add_u32 v18, v16, 1, v18
    v_xor_b32 v17, v17, v18
    v_lshlrev_b32 v6, 4, v17
    v_lshl_add_u32 v6, v16, 8, v6
    v_mul_u32_u24 v18, 3072, v14
    v_add_u32 v6, v6, v18
    v_and_b32 v18, 1, v1
    v_lshl_add_u32 v6, v18, 3, v6
    v_add_u32 v6, 1024, v6
    v_xor_b32 v7, 32, v6
    s_mov_b32 s72, {f32(C1)}
    s_mov_b32 s73, {f32(C1)}
    s_mov_b32 s74, 1.0
    s_mov_b32 s75, 1.0
    v_mov_b32 v176, {f32(C0)}
    v_mov_b32 v177, {f32(C0)}
    """)
    issued += [('c', 0)] * 4
    for r in range(4):
        k(f'v_mov_b32 v{ONES+r}, 0x3f803f80')
    srd_ws(k, 76, 'STAT')
    srd_ws(k, 80, 'Z1F')
    srd_ws(k, 92, 'Z2F')
    srd_ws(k, 84, 'FLG')
    k.stamp(1)
    wait_for([('a', 0)])
    k('s_barrier')
    for l in a_frags(0):
        k(l)
    k.stamp(2)
    for kk in range(NK):
        fill = []
        if kk + 1 < NK:
            wait_for([('a', kk + 1)], 'lgkmcnt(0)')
            k('s_barrier')
            fill = [(None, l) for l in a_frags(kk + 1)]
            if kk + NS < NK:
                fill += [(('a', kk + NS), l) for l in a_dma(kk + NS)]
        else:
            k('s_waitcnt lgkmcnt(0)')
        fill.append((('p', 0), a_panel(kk)))
        B = VB[kk & 1]
        z = kk == 0
        M = []
        for a in range(2):
            x = f'a[{8*kk+4*a}:{8*kk+4*a+3}]'
            for n in range(4):
                acc = ACC2 + 4 * (4 * a + n)
                M.append(f'v_mfma_f32_16x16x32_bf16 v[{acc}:{acc+3}], {x}, v[{B+4*n}:{B+4*n+3}], ' + ('0' if z else f'v[{acc}:{acc+3}]'))
            g = GRAM + 4 * a
            s_ = SUM + 4 * a
            M.append(f'v_mfma_f32_16x16x32_bf16 v[{g}:{g+3}], {x}, {x}, ' + ('0' if z else f'v[{g}:{g+3}]'))
            M.append(f'v_mfma_f32_16x16x32_bf16 v[{s_}:{s_+3}], {x}, v[{ONES}:{ONES+3}], ' + ('0' if z else f'v[{s_}:{s_+3}]'))
        for n, mm in enumerate(M):
            k(mm)
            if n < len(fill):
                t, l = fill[n]
                k(l)
                if t:
                    issued.append(t)
        if kk == 6:
            k(f"""
            v_add_f32 v20, v20, v21
            v_add_f32 v22, v22, v23
            v_add_f32 v20, v20, v22
            v_lshlrev_b32 v16, 2, v0
            v_add_u32 v16, {CONST}, v16
            ds_write_b32 v16, v20
            """)
    k.stamp(3)
    k(f"""
    v_mul_u32_u24 v16, 80, v14
    v_lshlrev_b32 v17, 2, v13
    v_add_u32 v17, {CONST}, v17
    v_lshlrev_b32 v15, 4, v14
    v_add_u32 v15, {CONST}, v15
    """)
    for a in range(2):
        for r in range(4):
            g = GRAM + 4 * a + r
            k(f'ds_bpermute_b32 v{g}, v16, v{g} offset:{4*r}')
    for n in range(4):
        k(f"""
        ds_read_b32 v{144+4*n}, v17 offset:{64*n}
        ds_read_b32 v{146+4*n}, v17 offset:{512+64*n}""")
    k('s_waitcnt lgkmcnt(8)')
    for e in range(8):
        g = GRAM + e
        s_ = SUM + e
        t = 162 + (e & 3)
        k(f"""
        v_mul_f32 v{s_}, {f32(1.0/640)}, v{s_}
        v_mov_b32 v{t}, {f32(1e-5)}
        v_fmac_f32 v{t}, {f32(1.0/640)}, v{g}
        v_fma_f32 v{t}, -v{s_}, v{s_}, v{t}
        v_max_f32 v{t}, {f32(1e-5)}, v{t}
        v_rsq_f32 v{g}, v{t}
        v_mul_f32 v{s_}, -v{s_}, v{g}
        """)
    k(f"""
    v_and_b32 v18, 3, v13
    v_lshrrev_b32 v19, 2, v13
    v_lshl_add_u32 v19, v19, 4, v13
    v_lshlrev_b32 v19, 2, v19
    v_cmp_eq_u32 s[56:57], 1, v18
    v_cmp_eq_u32 s[58:59], 2, v18
    v_cmp_eq_u32 vcc, 3, v18
    """)
    for a in range(2):
        for (src, dst) in ((GRAM + 4 * a, 20 + 4 * a), (SUM + 4 * a, 22 + 4 * a)):
            k(f"""
            v_cndmask_b32 v{dst}, v{src}, v{src+1}, s[56:57]
            v_cndmask_b32 v{dst}, v{dst}, v{src+2}, s[58:59]
            v_cndmask_b32 v{dst}, v{dst}, v{src+3}, vcc
            ds_bpermute_b32 v{dst}, v19, v{dst}
            """)
    for n in range(4):
        k(f"""
        ds_read_b128 v[{180+8*n}:{183+8*n}], v15 offset:{256+64*n}
        ds_read_b128 v[{184+8*n}:{187+8*n}], v15 offset:{768+64*n}""")
    k('s_waitcnt lgkmcnt(12)')
    for n in range(4):
        k(f'v_mov_b32 v{145+4*n}, v{144+4*n}\nv_mov_b32 v{147+4*n}, v{146+4*n}')
    for e in range(16):
        k(f'v_mov_b32 v{28+e}, 0')
    k(f"""
    s_mul_i32 s3, s9, 54
    s_add_u32 s3, s3, s70
    """)
    for n in range(4):
        regs = []
        for a in range(2):
            acc = ACC2 + 4 * (4 * a + n)
            for p in range(2):
                x = acc + 2 * p
                g = GRAM + 4 * a + 2 * p
                s_ = SUM + 4 * a + 2 * p
                t = 162 + 2 * (2 * a + p)
                k(f"""
                v_pk_fma_f32 v[{t}:{t+1}], v[{144+4*n}:{145+4*n}], v[{s_}:{s_+1}], v[{146+4*n}:{147+4*n}]
                v_pk_fma_f32 v[{x}:{x+1}], v[{x}:{x+1}], v[{g}:{g+1}], v[{t}:{t+1}]""")
                regs.append(x)
        gelu4(k, regs)
        o = 44 + 4 * n
        for j, x in enumerate(regs):
            k(f'v_cvt_pk_bf16_f32 v{o+j}, v{x}, v{x+1}')
        k(f"""
        s_min_u32 s5, s68, {n}
        s_add_u32 s5, s5, s3
        s_lshl_b32 s5, s5, 10""")
        emit(f'buffer_store_dwordx4 v[{o}:{o+3}], v12, s[92:95], s5 offen {SC}', ('s', 0))
        lab = f'kgA_ns{n}'
        if n == 3:
            k(f's_cmp_eq_u32 s68, 3\ns_cbranch_scc0 {lab}')
        elif n < 2:
            k(f's_cmp_eq_u32 s55, 14\ns_cbranch_scc1 {lab}')
        for j, x in enumerate(regs):
            k(f"""
            v_pk_add_f32 v[{28+2*j}:{29+2*j}], v[{28+2*j}:{29+2*j}], v[{x}:{x+1}]
            v_pk_fma_f32 v[{36+2*j}:{37+2*j}], v[{x}:{x+1}], v[{x}:{x+1}], v[{36+2*j}:{37+2*j}]""")
        if n != 2:
            k(f'{lab}:')
    for n in (8, 4, 2, 1):
        for v in range(28, 44):
            k(f'v_add_f32_dpp v{v}, v{v}, v{v} row_ror:{n} row_mask:0xf bank_mask:0xf')
    for e in range(8):
        k(f'v_mov_b32 v{144+2*e}, v{28+e}\nv_mov_b32 v{145+2*e}, v{36+e}')
    k(f"""
    s_lshl_b32 s5, s4, 8
    s_add_u32 s5, s5, {SCR}
    v_lshlrev_b32 v15, 6, v14
    v_add_u32 v15, s5, v15
    v_lshl_add_u32 v16, v13, 2, v15
    v_cmp_eq_u32 vcc, 0, v13
    s_and_saveexec_b64 s[56:57], vcc
    ds_write_b128 v15, v[144:147]
    ds_write_b128 v15, v[148:151] offset:16
    ds_write_b128 v15, v[152:155] offset:32
    ds_write_b128 v15, v[156:159] offset:48
    s_mov_b64 exec, s[56:57]
    s_waitcnt lgkmcnt(0)
    ds_read_b32 v17, v16
    v_lshlrev_b32 v16, 2, v1
    s_lshl_b32 s5, s9, 8
    v_mov_b32 v21, v20
    v_mov_b32 v23, v22
    v_mov_b32 v25, v24
    v_mov_b32 v27, v26
    v_add_u32 v8, {PANEL}, v12
    v_add_u32 v9, {PANEL+40960}, v12
    s_waitcnt lgkmcnt(0)
    """)
    emit(f'buffer_atomic_add_f32 v17, v16, s[76:79], s5 offen {SC}', ('s', 0))
    k.stamp(4)
    b_setup(k)
    bpl = b_prefetch_list()
    wait_for([('p', 0)])
    k('s_barrier')

    def p_reads(kk):
        B = VB[kk & 1]
        return [f'ds_read_b128 v[{B+4*n}:{B+4*n+3}], v{8+(n>>1)} offset:{(n&1)*20480+1024*kk}' for n in range(4)]

    for l in p_reads(0):
        k(l)
    for kk in range(NK):
        nxt = p_reads(kk + 1) if kk + 1 < NK else []
        k('s_waitcnt lgkmcnt(0)')
        B = VB[kk & 1]
        m = 0
        for a in range(2):
            x = f'a[{8*kk+4*a}:{8*kk+4*a+3}]'
            for n in range(4):
                acc = ACC1 + 4 * (4 * a + n)
                k(f'v_mfma_f32_16x16x32_bf16 v[{acc}:{acc+3}], v[{B+4*n}:{B+4*n+3}], {x}, ' + ('0' if kk == 0 else f'v[{acc}:{acc+3}]'))
                if m < len(nxt):
                    k(nxt[m])
                if m in (5, 7) and bpl and kk >= FK + 1:
                    emit(bpl.pop(0), ('b', 0))
                m += 1
        if kk == FK:
            k(f"""
            s_lshl_b32 s3, s9, 4
            s_add_u32 s3, s3, s55
            s_lshl_b32 s3, s3, 2
            """)
            wait_for([('s', 0)])
            flag_store(k, 3)
            issued.append(('f', 0))
    assert not bpl
    k.stamp(5)
    k('s_barrier')
    k.stamp(6)
    for n in range(4):
        regs = []
        for a in range(2):
            acc = ACC1 + 4 * (4 * a + n)
            r = 20 + 4 * a
            for p in range(2):
                x = acc + 2 * p
                t = 162 + 2 * (2 * a + p)
                k(f"""
                v_pk_fma_f32 v[{t}:{t+1}], v[{180+8*n+2*p}:{181+8*n+2*p}], v[{r+2}:{r+3}], v[{184+8*n+2*p}:{185+8*n+2*p}]
                v_pk_fma_f32 v[{x}:{x+1}], v[{x}:{x+1}], v[{r}:{r+1}], v[{t}:{t+1}]""")
                regs.append(x)
        gelu4(k, regs)
        k(f"""
        s_min_u32 s3, s69, {n}
        s_add_u32 s3, s3, s71
        s_lshl_b32 s3, s3, 16
        """)
        for a in range(2):
            acc = ACC1 + 4 * (4 * a + n)
            k(f"""
            v_cvt_pk_bf16_f32 v{acc}, v{acc}, v{acc+1}
            v_cvt_pk_bf16_f32 v{acc+1}, v{acc+2}, v{acc+3}
            buffer_store_dwordx2 v[{acc}:{acc+1}], v218, s[80:83], s3 offen offset:{512*a} {SC}""")
    for kk in range(NK):
        k(f"""
        s_cmp_eq_u32 s55, {kk & 15}
        s_cbranch_scc0 kgA_nd{kk}
        s_mov_b32 s3, {kk*128*1024}
        buffer_store_dwordx4 a[{8*kk}:{8*kk+3}], v5, s[64:67], s3 offen {SC}
        buffer_store_dwordx4 a[{8*kk+4}:{8*kk+7}], v5, s[64:67], s3 offen offset:1024 {SC}
kgA_nd{kk}:
        """)
    k.stamp(7)
    k(f"""
    s_lshl_b32 s54, s9, 4
    s_add_u32 s54, s54, s55
    s_lshl_b32 s54, s54, 2
    s_add_u32 s54, s54, 8192
    """)
    k.stamp(8)


WSLOT = 8192
NWS = 3
DIST = int(os.environ.get('KG_DIST', 3))
NSET = DIST + 1
ZBL = [('v', 48 + 28 * n) for n in range(4)] + [('a', 128 + 28 * n) for n in range(4)]
ZB = ZBL[:NSET]
WB = [16, 32]


def zr(Z, b):
    return f'{Z[0]}[{Z[1]+4*b}:{Z[1]+4*b+3}]'


def wdma(P):
    slot = P % NWS
    L = []
    for m in range(8):
        c = m >> 1
        rowc = 32 * (c >> 1) + 4 * (c & 1)
        L.append(f'''s_add_u32 m0, s96, {slot*32768+1024*m}
    s_add_u32 s14, s97, {rowc*4096 + 128*P}
    buffer_load_dwordx4 v{220+(m&1)}, s[88:91], s14 offen lds''')
    return L


def b_setup(k):
    srd(k, 88, 'wsp', 2048 * 4096)
    k(f"""
    v_lshrrev_b32 v16, 3, v1
    v_lshrrev_b32 v17, 2, v16
    v_lshlrev_b32 v17, 3, v17
    v_and_b32 v16, 3, v16
    v_add_u32 v17, v17, v16
    v_lshlrev_b32 v17, 12, v17
    v_and_b32 v16, 7, v1
    v_xor_b32 v16, v16, v14
    v_lshl_add_u32 v220, v16, 4, v17
    v_xor_b32 v221, 64, v220
    v_add_u32 v221, {16*4096}, v221
    s_lshl_b32 s96, s4, 13
    s_lshl_b32 s97, s98, 18
    s_lshl_b32 s3, s4, 10
    s_add_u32 s97, s97, s3
    s_lshl_b32 s7, s2, 15
    v_lshlrev_b32 v219, 4, v0
    """)


def b_prefetch_list():
    L = wdma(0) + wdma(1)
    for j in range(8):
        L.append(f"""buffer_load_dwordx4 v[{224+4*(j&3)}:{227+4*(j&3)}], v219, s[88:91], s7 offen
    s_add_u32 s7, s7, 4096""")
    return L


def zloads(ks):
    Z = ZB[ks % NSET]
    L = []
    for b in range(7):
        v = 12 if b < 4 else 3
        L.append(f'buffer_load_dwordx4 {zr(Z, b)}, v{v}, s[60:63], s12 offen offset:{1024*(b%4)} {SC}')
    L[-1] += f'\ns_add_u32 s12, s12, {54*1024}'
    return L


def wreads(ks):
    slot = (ks >> 1) % NWS
    W = WB[ks & 1]
    va = (6 if slot < 2 else 222) + (ks & 1)
    return [f'ds_read_b128 v[{W+4*c}:{W+4*c+3}], v{va} offset:{(slot%2)*32768+2048*c}' for c in range(4)]


def poll_loop(k, body, tag, sleep=2):
    pre = int(os.environ.get('KG_PRE' + tag, 0))
    sleep = int(os.environ.get('KG_SLP' + tag, sleep))
    if pre:
        k(f's_sleep {pre}')
    k(f"""
    s_mov_b32 s3, 0
kg_poll{tag}:
    {body}
    s_cmp_eq_u64 vcc, 0
    s_cbranch_scc1 kg_rdy{tag}
    s_add_u32 s3, s3, 1
    s_cmp_lt_u32 s3, {SPIN_MAX}
    s_cbranch_scc0 kg_rdy{tag}
    s_sleep {sleep}
    s_branch kg_poll{tag}
kg_rdy{tag}:
    """)


RB = [160, 168]
MB = [176, 180]
ACCM = 112


def tabreads(ks):
    R = RB[ks & 1]
    M = MB[ks & 1]
    return [f'ds_read_b128 v[{R}:{R+3}], v4 offset:{128*ks}',
            f'ds_read_b128 v[{R+4}:{R+7}], v4 offset:{128*ks+16}',
            f'ds_read_b128 v[{M}:{M+3}], v5 offset:{64*ks}']


def scale_ops(ks):
    W = WB[ks & 1]
    R = RB[ks & 1]
    L = []
    for c in range(4):
        for d in range(4):
            w = W + 4 * c + d
            t = 184 + 2 * ((4 * c + d) % 4)
            L.append(f"""v_lshlrev_b32 v{t}, 16, v{w}
    v_and_b32 v{t+1}, 0xffff0000, v{w}
    v_pk_mul_f32 v[{t}:{t+1}], v[{t}:{t+1}], v[{R+2*d}:{R+2*d+1}]
    v_cvt_pk_bf16_f32 v{w}, v{t}, v{t+1}""")
    return L


def phase_b(k):
    srd_ws(k, 60, 'Z2F')
    srd_ws(k, 64, 'Z1F')
    srd_ws(k, 68, 'PF')
    srd(k, 72, 'bsp', 4096)
    k(f"""
    s_mul_i32 s8, s99, 7
    s_min_u32 s8, s8, 47             ; phi0
    v_add_u32 v3, 4096, v12
    v_lshrrev_b32 v8, 2, v13
    v_lshlrev_b32 v8, 3, v8
    v_and_b32 v9, 3, v13
    v_add_u32 v8, v8, v9             ; row_local
    v_lshrrev_b32 v11, 1, v13
    v_xor_b32 v11, v11, v14
    v_lshlrev_b32 v11, 4, v11
    v_lshl_add_u32 v6, v13, 7, v11
    v_add_u32 v6, s96, v6
    v_xor_b32 v7, 64, v6
    v_add_u32 v222, 65536, v6
    v_add_u32 v223, 65536, v7
    s_mul_i32 s12, s4, {16*54}
    s_add_u32 s12, s12, s8
    s_lshl_b32 s12, s12, 10
    s_lshl_b32 s9, s98, 2
    s_add_u32 s9, s9, s4             ; tau
    s_lshl_b32 s13, s9, 10
    v_add_u32 v10, s13, v12
    v_lshrrev_b32 v217, 1, v10
    s_lshr_b32 s13, s4, 1
    s_lshl_b32 s13, s13, 5
    s_and_b32 s15, s4, 1
    s_lshl_b32 s15, s15, 2
    s_add_u32 s13, s13, s15
    s_lshl_b32 s15, s98, 6
    s_add_u32 s13, s13, s15
    s_lshl_b32 s13, s13, 1
    v_lshlrev_b32 v9, 1, v8
    buffer_load_ushort v206, v9, s[72:75], s13 offen
    s_lshl_b32 s10, s4, 12
    s_add_u32 s10, s10, {TAB}
    v_lshlrev_b32 v4, 5, v14
    v_add_u32 v4, s10, v4
    v_lshlrev_b32 v5, 4, v14
    v_mov_b32 v16, {ZERO}
    s_add_u32 s5, s10, 2048
    v_mov_b32 v17, s5
    v_cmp_eq_u32 vcc, 0, v13
    v_cndmask_b32 v16, v16, v17, vcc
    v_add_u32 v17, 1024, v17
    v_cmp_eq_u32 vcc, 1, v13
    v_cndmask_b32 v16, v16, v17, vcc
    v_add_u32 v5, v5, v16
    v_mov_b32 v16, 0
    v_mov_b32 v17, 0
    v_mov_b32 v18, 0
    v_mov_b32 v19, 0
    v_add_u32 v15, {ZERO}, v12
    ds_write_b128 v15, v[16:19]
    s_lshl_b32 s5, s4, 10
    s_lshr_b32 s6, s9, 1
    s_lshl_b32 s6, s6, 6
    s_lshl_b32 s7, s99, 3
    s_add_u32 s6, s6, s7
    v_and_b32 v2, 1, v1
    v_lshlrev_b32 v2, 2, v2
    s_waitcnt lgkmcnt(0)
    """)
    k('s_add_u32 s11, s6, 8192')
    poll_loop(k, f"""buffer_load_dwordx4 v[48:51], v12, s[84:87], s5 offen {SC}
    s_waitcnt vmcnt(0)
    v_min_u32 v48, v48, v49
    v_min3_u32 v48, v48, v50, v51
    v_cmp_eq_u32 vcc, 0, v48""", 'B', 16)
    flag_store(k, 54)
    for l in wreads(0):
        k(l)
    k.stamp(9)
    issued = [('f', 0)]

    def emit(l, tag):
        k(l)
        issued.append(tag)

    k('s_lshl_b32 s5, s4, 12\nv_lshlrev_b32 v15, 6, v1')
    for n in range(4):
        emit(f'buffer_load_dwordx4 v[{132+4*n}:{135+4*n}], v15, s[76:79], s5 offen offset:{16*n} {SC}', ('s', 0))
    for ks in range(2):
        for l in zloads(ks):
            emit(l, ('z', ks))
    def wait_for(tags, extra=''):
        idx = [i for i, t in enumerate(issued) if t in tags]
        n = len(issued) - 1 - max(idx)
        k(f's_waitcnt vmcnt({n}) {extra}')

    wait_for([('s', 0)])
    for e in range(8):
        m = 132 + 2 * e
        k(f"""
        v_mul_f32 v{m}, {f32(1.0/864)}, v{m}
        v_mov_b32 v15, {f32(1e-5)}
        v_fmac_f32 v15, {f32(1.0/864)}, v{m+1}
        v_fma_f32 v15, -v{m}, v{m}, v15
        v_max_f32 v15, {f32(1e-5)}, v15
        v_rsq_f32 v{148+e}, v15
        """)
    for d in range(4):
        m0, m1 = 132 + 4 * d, 134 + 4 * d
        k(f"""
        v_cvt_pk_bf16_f32 v{156+d}, v{m0}, v{m1}
        v_lshlrev_b32 v{m0+1}, 16, v{156+d}
        v_and_b32 v{m1+1}, 0xffff0000, v{156+d}
        v_sub_f32 v{m0}, v{m0}, v{m0+1}
        v_sub_f32 v{m1}, v{m1}, v{m1+1}
        v_cvt_pk_bf16_f32 v{184+d}, v{m0}, v{m1}
        """)
    k(f"""
    v_lshlrev_b32 v15, 5, v1
    v_add_u32 v15, s10, v15
    ds_write_b128 v15, v[148:151]
    ds_write_b128 v15, v[152:155] offset:16
    v_add_u32 v15, s10, v12
    ds_write_b128 v15, v[156:159] offset:2048
    ds_write_b128 v15, v[184:187] offset:3072
    s_waitcnt lgkmcnt(0)
    """)
    for l in tabreads(0):
        k(l)
    k('s_waitcnt lgkmcnt(0)')
    for l in scale_ops(0):
        k(l)
    nz = 2
    for ks in range(16):
        Z = ZB[ks % NSET]
        W = WB[ks & 1]
        M = MB[ks & 1]
        need = [('z', ks)] if not os.environ.get('KG_NOZ') else [('z', min(ks, 3))]
        if ks + 1 < 16 and (ks + 1) >> 1 >= 2 and not os.environ.get('KG_NOW'):
            need.append(('w', (ks + 1) >> 1))
        wait_for(need, 'lgkmcnt(0)' if os.environ.get('KG_NOSCALE') else '')
        early = []
        if ks + 1 < 16:
            early += [(None, l) for l in wreads(ks + 1) + tabreads(ks + 1)]
        mem = []
        cnt2 = 0 if not os.environ.get('KG_NOZ') else 2 if ks > 1 else 0
        while nz <= min(ks + DIST, 15) and cnt2 < 2:
            mem += [(('z', nz), l) for l in zloads(nz)]
            nz += 1
            cnt2 += 1
        if ks % 2 == 0 and (ks >> 1) + 2 < 8 and not os.environ.get('KG_NOW'):
            P = (ks >> 1) + 2
            mem += [(('w', P), l) for l in wdma(P)]
        if ks == 11:
            mem.append((('zf', 0), f'buffer_load_dword v15, v2, s[84:87], s11 offen {SC}'))
        if ks == 13:
            wait_for([('zf', 0)])
            k("""
            v_cmp_eq_u32 vcc, 0, v15
            s_cmp_eq_u64 vcc, 0
            s_cbranch_scc1 kg_z1ok
            """)
            poll_loop(k, f"""buffer_load_dword v15, v2, s[84:87], s11 offen {SC}
    s_waitcnt vmcnt(0)
    v_cmp_eq_u32 vcc, 0, v15""", 'Z', 4)
            k('kg_z1ok:')
            for b in range(7):
                mem.append((('e', 0), f"""s_add_u32 s13, s8, {b}
    s_lshl_b32 s{76+b}, s13, 16
    buffer_load_dwordx2 v[{192+2*b}:{193+2*b}], v217, s[64:67], s{76+b} offen {SC}"""))
        sc = scale_ops(ks + 1) if (ks + 1 < 16 and not os.environ.get('KG_NOSCALE')) else []
        MF = []
        for c in range(4):
            for b in range(7):
                a = 4 * (7 * c + b)
                cc = '0' if ks == 0 else f'a[{a}:{a+3}]'
                MF.append(f'v_mfma_f32_16x16x32_bf16 a[{a}:{a+3}], {zr(Z, b)}, v[{W+4*c}:{W+4*c+3}], {cc}')
            a = ACCM + 4 * c
            cc = '0' if ks == 0 else f'a[{a}:{a+3}]'
            MF.append(f'v_mfma_f32_16x16x32_bf16 a[{a}:{a+3}], v[{M}:{M+3}], v[{W+4*c}:{W+4*c+3}], {cc}')
        mi = 0
        for n, mm in enumerate(MF):
            k(mm)
            if n < len(early):
                k(early[n][1])
            if mi < len(mem) and (n >= len(early) or len(mem) > 24):
                t, l = mem[mi]
                k(l)
                issued.append(t)
                mi += 1
            if n == 13 and sc:
                k('s_waitcnt lgkmcnt(0)')
            if 14 <= n < 30 and sc:
                k(sc[n - 14])
        assert mi == len(mem), (ks, mi, len(mem))
    k.stamp(10)
    for c in range(4):
        k(f'v_accvgpr_read_b32 v{16+2*c}, a{ACCM+4*c}\nv_accvgpr_read_b32 v{17+2*c}, a{ACCM+4*c+1}')
    k(f"""
    s_lshl_b32 s5, s4, 8
    s_add_u32 s5, s5, {CORR}
    v_lshlrev_b32 v15, 2, v13
    v_add_u32 v11, s5, v15
    v_add_f32 v16, v16, v17
    v_add_f32 v18, v18, v19
    v_add_f32 v20, v20, v21
    v_add_f32 v22, v22, v23
    s_mov_b64 exec, 0xffff
    ds_write_b32 v11, v16
    ds_write_b32 v11, v18 offset:64
    ds_write_b32 v11, v20 offset:128
    ds_write_b32 v11, v22 offset:192
    s_mov_b64 exec, -1
    s_barrier
    """)
    for w in range(4):
        k(f"""
        s_cmp_eq_u32 s4, {w}
        s_cbranch_scc0 kgB_red_{w}""")
        for c in range(4):
            if c == w:
                continue
            src = (w - c - 1) % 4
            k(f'v_add_u32 v11, {(c*3+src)*7168}, v12')
            for b in range(7):
                a = 4 * (7 * c + b)
                k(f'ds_write_b128 v11, a[{a}:{a+3}] offset:{1024*b}')
        for n in range(28):
            k(f'v_accvgpr_read_b32 v{16+n}, a{28*w+n}')
        k(f'kgB_red_{w}:')
    k(f"""
    s_mul_i32 s14, s4, {3*7168}
    v_add_u32 v11, s14, v12
    s_lshl_b32 s5, s4, 6
    s_add_u32 s5, s5, {CORR}
    v_add_u32 v15, s5, v15
    s_waitcnt lgkmcnt(0)
    s_barrier
    ds_read_b32 v140, v15
    ds_read_b32 v141, v15 offset:256
    ds_read_b32 v142, v15 offset:512
    ds_read_b32 v143, v15 offset:768
    """)
    for b in range(3):
        for s in range(3):
            r = 48 + 12 * b + 4 * s
            k(f'ds_read_b128 v[{r}:{r+3}], v11 offset:{s*7168+1024*b}')
    k(f"""
    s_waitcnt lgkmcnt(9) vmcnt(0)
    v_lshlrev_b32 v206, 16, v206
    v_add_f32 v140, v140, v141
    v_add_f32 v142, v142, v143
    v_sub_f32 v206, v206, v140
    v_sub_f32 v206, v206, v142
    v_mov_b32 v207, v206
    """)
    for b in range(3, 7):
        for s in range(3):
            r = 48 + 12 * b + 4 * s
            k(f'ds_read_b128 v[{r}:{r+3}], v11 offset:{s*7168+1024*b}')
    for b in range(7):
        k(f's_waitcnt lgkmcnt({min(15, 18-3*b)})')
        o = 16 + 4 * b
        r = 48 + 12 * b
        for p in range(2):
            k(f"""
            v_pk_add_f32 v[{o+2*p}:{o+2*p+1}], v[{o+2*p}:{o+2*p+1}], v[{r+2*p}:{r+2*p+1}]
            v_pk_add_f32 v[{r+4+2*p}:{r+4+2*p+1}], v[{r+4+2*p}:{r+4+2*p+1}], v[{r+8+2*p}:{r+8+2*p+1}]
            v_pk_add_f32 v[{o+2*p}:{o+2*p+1}], v[{o+2*p}:{o+2*p+1}], v[206:207]
            v_lshlrev_b32 v{r}, 16, v{192+2*b+p}
            v_and_b32 v{r+1}, 0xffff0000, v{192+2*b+p}
            v_pk_add_f32 v[{o+2*p}:{o+2*p+1}], v[{o+2*p}:{o+2*p+1}], v[{r+4+2*p}:{r+4+2*p+1}]
            v_pk_mul_f32 v[{o+2*p}:{o+2*p+1}], v[{o+2*p}:{o+2*p+1}], v[{r}:{r+1}]
            v_cvt_pk_bf16_f32 v{192+2*b+p}, v{o+2*p}, v{o+2*p+1}
            """)
    k(f"""
    s_add_u32 s5, s8, 1
    s_lshr_b32 s5, s5, 1
    s_lshl_b32 s5, s5, 17
    s_add_u32 s6, s5, {1<<17}
    s_add_u32 s7, s5, {2<<17}
    s_and_b32 s13, s8, 1
    s_cmp_eq_u32 s13, 0
    s_cbranch_scc0 kgB_odd
    s_add_u32 s13, s5, {3<<17}
    buffer_store_dwordx4 v[192:195], v10, s[68:71], s5 offen {SC}
    buffer_store_dwordx4 v[196:199], v10, s[68:71], s6 offen {SC}
    buffer_store_dwordx4 v[200:203], v10, s[68:71], s7 offen {SC}
    buffer_store_dwordx2 v[204:205], v10, s[68:71], s13 offen {SC}
    s_branch kgB_st
kgB_odd:
    s_sub_u32 s13, s5, {1<<17}
    buffer_store_dwordx4 v[194:197], v10, s[68:71], s5 offen {SC}
    buffer_store_dwordx4 v[198:201], v10, s[68:71], s6 offen {SC}
    buffer_store_dwordx4 v[202:205], v10, s[68:71], s7 offen {SC}
    buffer_store_dwordx2 v[192:193], v10, s[68:71], s13 offen offset:8 {SC}
kgB_st:
    """)
    k(f"""
    s_lshl_b32 s3, s98, 3
    s_add_u32 s3, s3, s99
    s_lshl_b32 s3, s3, 2
    s_add_u32 s3, s3, s4
    s_lshl_b32 s3, s3, 2
    s_add_u32 s3, s3, 4096
    v_mov_b32 v15, 0
    v_mov_b32 v16, 1
    s_waitcnt vmcnt(0)
    s_mov_b64 exec, 1
    buffer_store_dword v16, v15, s[84:87], s3 offen {SC}
    s_mov_b64 exec, -1
    """)
    k.stamp(11)
    k('s_barrier')
    c_panel(k)


NPS = 8
PSET = [16 + 4 * n for n in range(NPS)]
WOS = [48, 68]
ACC3 = 88


def c_panel(k):
    srd_ws(k, 56, 'WOF')
    k(f"""
    s_mul_i32 s5, s4, 40
    s_mul_i32 s6, s99, 5
    s_add_u32 s5, s5, s6
    s_lshl_b32 s5, s5, 10            ; (w*40 + 5e) KB
    s_mul_i32 s6, s4, 5120
    """)
    for n in range(7):
        k(f's_add_u32 m0, s6, {n*4*5120}')
        for b in range(4):
            k(f'buffer_load_dwordx4 v12, s[56:59], s5 offen offset:{1024*b} lds')
        k(f"""s_add_u32 m0, s6, {n*4*5120+4096}
        buffer_load_dwordx4 v3, s[56:59], s5 offen lds
        s_add_u32 s5, s5, {4*40*1024}""")


def phase_c(k):
    srd_ws(k, 60, 'PF')
    srd_ws(k, 64, 'X1F')
    srd_ws(k, 68, 'MODF')
    srd(k, 72, 'out', 2048 * 1280)
    k(f"""
    s_mul_i32 s8, s99, 5             ; delta0
    v_mul_u32_u24 v4, 1280, v8
    v_lshl_add_u32 v4, v14, 4, v4
    v_lshlrev_b32 v5, 5, v14
    s_mov_b32 s12, 0
    s_lshr_b32 s14, s4, 1
    s_lshl_b32 s14, s14, 5
    s_and_b32 s15, s4, 1
    s_lshl_b32 s15, s15, 2
    s_add_u32 s14, s14, s15
    s_lshl_b32 s15, s98, 6
    s_add_u32 s14, s14, s15
    s_mul_i32 s13, s14, 1280
    v_add_u32 v6, 61440, v12
    v_add_u32 v7, 122880, v12
    """)
    for b in range(5):
        k(f"""
        s_add_u32 s14, s8, {b}
        s_lshr_b32 s15, s14, 1           ; dblk
        s_and_b32 s14, s14, 1            ; h
        s_lshl_b32 s5, s15, 17
        s_lshl_b32 s6, s14, 3
        s_add_u32 s{76+b}, s5, s6        ; x1f soffset
        s_lshl_b32 s5, s15, 6
        s_add_u32 s5, s5, s6
        s_add_u32 s{88+b}, s5, s13
        s_lshl_b32 s5, s5, 1
        s_add_u32 s5, s5, {5*640*4}
        buffer_load_dwordx4 v[{228+4*b}:{231+4*b}], v5, s[68:71], s5 offen
        """)
    k(f"""
    s_lshl_b32 s3, s98, 7
    s_lshl_b32 s5, s4, 2
    s_add_u32 s3, s3, s5
    s_add_u32 s3, s3, 4096
    v_add_u32 v2, s3, v12
    s_lshr_b32 s5, s8, 1
    s_add_u32 s5, s5, 8
    v_add_u32 v17, s5, v1
    v_and_b32 v17, 15, v17
    v_lshlrev_b32 v18, 2, v17
    s_lshr_b32 s5, s9, 1
    s_lshl_b32 s5, s5, 6
    s_add_u32 s5, s5, 8192
    v_add_u32 v18, s5, v18
    v_cmp_gt_u32 vcc, 8, v1
    v_cndmask_b32 v2, v18, v2, vcc
    s_mov_b64 exec, 0x7ff
    """)
    poll_loop(k, f"""buffer_load_dword v15, v2, s[84:87], 0 offen {SC}
    s_waitcnt vmcnt(0)
    v_cmp_eq_u32 vcc, 0, v15""", 'C', 2)
    k('s_mov_b64 exec, -1')
    k.stamp(12)
    issued = []

    def pload(be):
        P = PSET[be % NPS]
        k(f"""buffer_load_dwordx4 v[{P}:{P+3}], v10, s[60:63], s12 offen {SC}
        s_add_u32 s12, s12, {128*1024}""")
        issued.append(be)

    def wo_reads(be):
        W = WOS[be & 1]
        va = (12, 6, 7)[be // 12]
        return [f'ds_read_b128 v[{W+4*b}:{W+4*b+3}], v{va} offset:{(be % 12)*5120+1024*b}' for b in range(5)]

    for be in range(NPS - 1):
        pload(be)
    for b in range(5):
        k(f'buffer_load_dwordx2 v[{196+2*b}:{197+2*b}], v10, s[64:67], s{76+b} offen {SC}')
        issued.append(-1)
    k('s_barrier')
    for l in wo_reads(0):
        k(l)
    for be in range(27):
        P = PSET[be % NPS]
        W = WOS[be & 1]
        last = max(i for i, t in enumerate(issued) if t == be)
        k(f's_waitcnt vmcnt({len(issued) - 1 - last}) lgkmcnt(0)')
        nxt = wo_reads(be + 1) if be + 1 < 27 else []
        for b in range(5):
            a = ACC3 + 4 * b
            cc = '0' if be == 0 else f'v[{a}:{a+3}]'
            k(f'v_mfma_f32_16x16x32_bf16 v[{a}:{a+3}], v[{W+4*b}:{W+4*b+3}], v[{P}:{P+3}], {cc}')
            if b < len(nxt):
                k(nxt[b])
        if be + NPS - 1 < 27:
            pload(be + NPS - 1)
    k.stamp(13)
    k('s_waitcnt vmcnt(0)')
    for b in range(5):
        o = ACC3 + 4 * b
        for p in range(2):
            r = 16 + 4 * b + 2 * p
            k(f"""
            v_lshlrev_b32 v{r}, 16, v{196+2*b+p}
            v_and_b32 v{r+1}, 0xffff0000, v{196+2*b+p}
            v_pk_fma_f32 v[{o+2*p}:{o+2*p+1}], v[{o+2*p}:{o+2*p+1}], v[{228+4*b+2*p}:{229+4*b+2*p}], v[{r}:{r+1}]
            v_cvt_pk_bf16_f32 v{196+2*b+p}, v{o+2*p}, v{o+2*p+1}
            """)
        k(f'buffer_store_dwordx2 v[{196+2*b}:{197+2*b}], v4, s[72:75], s{88+b} offen')
    k.stamp(14)


def make_kg():
    k = Kern('gemm_kernel', 256, 256, KG_LDS)
    k('''
    s_cmp_ge_u32 s2, 256
    s_cbranch_scc1 kg_exit
    ''')
    k.stamp(0)
    load_ptrs(k)
    k(f'''
    s_and_b32 s3, s2, 7              ; xcd
    s_lshr_b32 s5, s2, 3             ; kx
    s_lshr_b32 s6, s3, 1             ; xh
    s_and_b32 s7, s3, 1              ; xl
    s_lshl_b32 s54, s6, 2
    s_and_b32 s8, s5, 3
    s_add_u32 s54, s54, s8
    s_lshl_b32 s55, s7, 3
    s_lshr_b32 s8, s5, 2
    s_add_u32 s55, s55, s8
    s_lshl_b32 s98, s6, 3
    s_and_b32 s8, s5, 7
    s_add_u32 s98, s98, s8
    s_lshl_b32 s99, s7, 2
    s_lshr_b32 s8, s5, 3
    s_add_u32 s99, s99, s8
    v_and_b32 v1, 63, v0
    v_lshrrev_b32 v15, 6, v0
    v_lshlrev_b32 v12, 4, v1
    v_and_b32 v13, 15, v1
    v_lshrrev_b32 v14, 4, v1
    v_readfirstlane_b32 s4, v15
    s_waitcnt lgkmcnt(0)
    ''')
    phase_a(k)
    phase_b(k)
    phase_c(k)
    if os.environ.get('STAMP'):
        k('s_waitcnt vmcnt(0)')
    k.stamp(15)
    k.stamp_flush(2)
    k('kg_exit:\ns_endpgm')
    return k
```

```python
import os
from asmlib import Kern
from layout import WS, XS
from gen_k1 import f32, load_ptrs, srd, srd_ws

SC = 'sc1'
SPIN_MAX = 100000


NS = 5
SLOT = 12288
PANEL = 65536
CONST = PANEL + 81920
SCR = CONST + 1024
KG_LDS = SCR + 1024
TAB = 98304
ZERO = TAB + 4 * 4096
CORR = ZERO + 1024
NK = 20
FK = int(os.environ.get('KG_FK', 4))
VB = [28, 44]
ACC2 = 60
ACC1 = 92
GRAM = 124
SUM = 132
ONES = 140
C0 = -2.0 * 0.7978845608028654 * 1.4426950408889634
C1 = C0 * 0.044715


def gelu4(k, regs, t0=162):
    T = [t0 + 2 * g for g in range(len(regs))]
    z = list(zip(regs, T))
    for x, t in z:
        k(f'v_pk_mul_f32 v[{t}:{t+1}], v[{x}:{x+1}], v[{x}:{x+1}]')
    for x, t in z:
        k(f'v_pk_fma_f32 v[{t}:{t+1}], v[{t}:{t+1}], s[72:73], v[176:177]')
    for x, t in z:
        k(f'v_pk_mul_f32 v[{t}:{t+1}], v[{t}:{t+1}], v[{x}:{x+1}]')
    for x, t in z:
        k(f'v_exp_f32 v{t}, v{t}\nv_exp_f32 v{t+1}, v{t+1}')
    for x, t in z:
        k(f'v_pk_add_f32 v[{t}:{t+1}], v[{t}:{t+1}], s[74:75]')
    for x, t in z:
        k(f'v_rcp_f32 v{t}, v{t}\nv_rcp_f32 v{t+1}, v{t+1}')
    for x, t in z:
        k(f'v_pk_mul_f32 v[{x}:{x+1}], v[{x}:{x+1}], v[{t}:{t+1}]')


def a_dma(st):
    return [f"""s_add_u32 m0, s10, {(st % NS)*SLOT}
    buffer_load_dwordx4 v12, s[60:63], s12 offen lds""",
            'buffer_load_dwordx4 v3, s[56:59], s11 offen offset:1024 lds',
            f"""buffer_load_dwordx4 v4, s[56:59], s11 offen offset:2048 lds
    s_add_u32 s11, s11, {32*XS}
    s_add_u32 s12, s12, {108*1024}"""]


def a_panel(kk):
    return f"""s_add_u32 m0, s15, {kk*1024}
    buffer_load_dwordx4 v12, s[60:63], s13 offen lds
    s_add_u32 s13, s13, {108*1024}"""


def a_frags(st):
    base = (st % NS) * SLOT
    L = []
    for a in range(2):
        x = 8 * st + 4 * a
        L.append(f'ds_read_b64_tr_b16 a[{x}:{x+1}], v{6+a} offset:{base}')
        L.append(f'ds_read_b64_tr_b16 a[{x+2}:{x+3}], v{6+a} offset:{base+1024}')
    B = VB[st & 1]
    for n in range(4):
        L.append(f'ds_read_b128 v[{B+4*n}:{B+4*n+3}], v12 offset:{base+3072*n}')
    return L


def flag_store(k, soff):
    k(f"""
    v_mov_b32 v15, 0
    v_mov_b32 v16, 1
    s_mov_b64 exec, 1
    buffer_store_dword v16, v15, s[84:87], s{soff} offen {SC}
    s_mov_b64 exec, -1
    """)


def phase_a(k):
    xo, xs = WS['X1T']
    srd(k, 56, 'ws', xs + 1024, xo - 1024)
    srd_ws(k, 60, 'WPF')
    srd_ws(k, 64, 'X1F')
    srd_ws(k, 76, 'CSP')
    srd_ws(k, 80, 'BIP')
    k(f"""
    s_lshl_b32 s9, s54, 2
    s_add_u32 s9, s9, s4
    s_mul_i32 s10, s4, 3072
    s_lshl_b32 s11, s54, 8
    s_lshr_b32 s5, s55, 1
    s_mul_i32 s5, s5, 7
    s_min_u32 s5, s5, 47             ; base
    s_and_b32 s6, s55, 1             ; type
    s_lshl_b32 s7, s6, 2
    s_add_u32 s70, s5, s7            ; z2base
    s_mul_i32 s7, s6, 3
    s_add_u32 s71, s5, s7            ; z1base
    s_sub_u32 s68, 3, s6             ; z2max
    s_add_u32 s69, s6, 2             ; z1max
    s_min_u32 s12, s4, s68
    s_add_u32 s12, s12, s70
    s_add_u32 s12, s12, 54
    s_lshl_b32 s12, s12, 10          ; z2 slot w
    s_min_u32 s13, s4, s69
    s_add_u32 s13, s13, s71
    s_lshl_b32 s13, s13, 10          ; z1 slot w
    s_mul_i32 s15, s4, 20480
    s_add_u32 s15, s15, {PANEL}
    s_and_b32 s3, s4, 1
    s_lshl_b32 s3, s3, 3
    v_lshlrev_b32 v16, 1, v14
    v_add_u32 v16, s3, v16
    v_xor_b32 v16, v16, v13
    v_lshlrev_b32 v16, 4, v16
    v_mul_u32_u24 v3, {XS}, v14
    v_add_u32 v3, v3, v16
    s_mul_i32 s3, s4, {8*XS}
    v_add_u32 v3, s3, v3
    v_add_u32 v4, {4*XS-1024}, v3
    """)
    issued = []

    def emit(l, tag):
        k(l)
        issued.append(tag)

    def wait_for(tags, extra=''):
        idx = [i for i, t in enumerate(issued) if t in tags]
        n = len(issued) - 1 - max(idx)
        k(f's_waitcnt vmcnt({n}) {extra}')

    for st in range(NS):
        for l in a_dma(st):
            emit(l, ('a', st))
    k(f"""
    v_bfe_u32 v17, v0, 4, 2
    v_min_u32 v18, s68, v17
    v_add_u32 v18, s70, v18
    v_add_u32 v18, 54, v18
    v_min_u32 v19, s69, v17
    v_add_u32 v19, s71, v19
    v_and_b32 v17, 64, v0
    v_cmp_eq_u32 vcc, 0, v17
    v_cndmask_b32 v17, v19, v18, vcc ; phi'
    v_lshrrev_b32 v18, 1, v17
    v_lshlrev_b32 v18, 5, v18
    v_and_b32 v17, 1, v17
    v_lshl_add_u32 v18, v17, 2, v18
    v_lshrrev_b32 v17, 2, v13
    v_lshl_add_u32 v18, v17, 3, v18
    v_and_b32 v17, 3, v13
    v_add_u32 v18, v18, v17
    v_lshlrev_b32 v18, 2, v18
    s_mov_b32 s14, {1728*4}
    s_mov_b32 s7, {2*1728*4}
    s_mov_b32 s3, {3*1728*4}
    s_cmp_ge_u32 s4, 2
    s_cbranch_scc1 kgA_cb
    buffer_load_dword v20, v18, s[76:79], 0 offen
    buffer_load_dword v21, v18, s[76:79], s14 offen
    buffer_load_dword v22, v18, s[76:79], s7 offen
    buffer_load_dword v23, v18, s[76:79], s3 offen
    s_branch kgA_cj
kgA_cb:
    buffer_load_dword v20, v18, s[80:83], 0 offen
    buffer_load_dword v21, v18, s[80:83], s14 offen
    buffer_load_dword v22, v18, s[80:83], s7 offen
    buffer_load_dword v23, v18, s[80:83], s3 offen
kgA_cj:
    s_lshl_b32 s3, s9, 11
    v_add_u32 v5, s3, v12
    v_lshrrev_b32 v218, 1, v5
    v_bfe_u32 v16, v1, 2, 2
    v_bfe_u32 v17, v1, 1, 1
    s_lshl_b32 s3, s4, 2
    v_add_u32 v17, s3, v17
    v_and_b32 v18, 1, v14
    v_lshlrev_b32 v18, 3, v18
    v_lshl_add_u32 v18, v16, 1, v18
    v_xor_b32 v17, v17, v18
    v_lshlrev_b32 v6, 4, v17
    v_lshl_add_u32 v6, v16, 8, v6
    v_mul_u32_u24 v18, 3072, v14
    v_add_u32 v6, v6, v18
    v_and_b32 v18, 1, v1
    v_lshl_add_u32 v6, v18, 3, v6
    v_add_u32 v6, 1024, v6
    v_xor_b32 v7, 32, v6
    s_mov_b32 s72, {f32(C1)}
    s_mov_b32 s73, {f32(C1)}
    s_mov_b32 s74, 1.0
    s_mov_b32 s75, 1.0
    v_mov_b32 v176, {f32(C0)}
    v_mov_b32 v177, {f32(C0)}
    """)
    issued += [('c', 0)] * 4
    for r in range(4):
        k(f'v_mov_b32 v{ONES+r}, 0x3f803f80')
    srd_ws(k, 76, 'STAT')
    srd_ws(k, 80, 'Z1F')
    srd_ws(k, 92, 'Z2F')
    srd_ws(k, 84, 'FLG')
    k.stamp(1)
    wait_for([('a', 0)])
    k('s_barrier')
    for l in a_frags(0):
        k(l)
    k.stamp(2)
    for kk in range(NK):
        fill = []
        if kk + 1 < NK:
            wait_for([('a', kk + 1)], 'lgkmcnt(0)')
            k('s_barrier')
            fill = [(None, l) for l in a_frags(kk + 1)]
            if kk + NS < NK:
                fill += [(('a', kk + NS), l) for l in a_dma(kk + NS)]
        else:
            k('s_waitcnt lgkmcnt(0)')
        fill.append((('p', 0), a_panel(kk)))
        B = VB[kk & 1]
        z = kk == 0
        M = []
        for a in range(2):
            x = f'a[{8*kk+4*a}:{8*kk+4*a+3}]'
            for n in range(4):
                acc = ACC2 + 4 * (4 * a + n)
                M.append(f'v_mfma_f32_16x16x32_bf16 v[{acc}:{acc+3}], {x}, v[{B+4*n}:{B+4*n+3}], ' + ('0' if z else f'v[{acc}:{acc+3}]'))
            g = GRAM + 4 * a
            s_ = SUM + 4 * a
            M.append(f'v_mfma_f32_16x16x32_bf16 v[{g}:{g+3}], {x}, {x}, ' + ('0' if z else f'v[{g}:{g+3}]'))
            M.append(f'v_mfma_f32_16x16x32_bf16 v[{s_}:{s_+3}], {x}, v[{ONES}:{ONES+3}], ' + ('0' if z else f'v[{s_}:{s_+3}]'))
        for n, mm in enumerate(M):
            k(mm)
            if n < len(fill):
                t, l = fill[n]
                k(l)
                if t:
                    issued.append(t)
        if kk == 6:
            k(f"""
            v_add_f32 v20, v20, v21
            v_add_f32 v22, v22, v23
            v_add_f32 v20, v20, v22
            v_lshlrev_b32 v16, 2, v0
            v_add_u32 v16, {CONST}, v16
            ds_write_b32 v16, v20
            """)
    k.stamp(3)
    k(f"""
    v_mul_u32_u24 v16, 80, v14
    v_lshlrev_b32 v17, 2, v13
    v_add_u32 v17, {CONST}, v17
    v_lshlrev_b32 v15, 4, v14
    v_add_u32 v15, {CONST}, v15
    """)
    for a in range(2):
        for r in range(4):
            g = GRAM + 4 * a + r
            k(f'ds_bpermute_b32 v{g}, v16, v{g} offset:{4*r}')
    for n in range(4):
        k(f"""
        ds_read_b32 v{144+4*n}, v17 offset:{64*n}
        ds_read_b32 v{146+4*n}, v17 offset:{512+64*n}""")
    k('s_waitcnt lgkmcnt(8)')
    for e in range(8):
        g = GRAM + e
        s_ = SUM + e
        t = 162 + (e & 3)
        k(f"""
        v_mul_f32 v{s_}, {f32(1.0/640)}, v{s_}
        v_mov_b32 v{t}, {f32(1e-5)}
        v_fmac_f32 v{t}, {f32(1.0/640)}, v{g}
        v_fma_f32 v{t}, -v{s_}, v{s_}, v{t}
        v_max_f32 v{t}, {f32(1e-5)}, v{t}
        v_rsq_f32 v{g}, v{t}
        v_mul_f32 v{s_}, -v{s_}, v{g}
        """)
    k(f"""
    v_and_b32 v18, 3, v13
    v_lshrrev_b32 v19, 2, v13
    v_lshl_add_u32 v19, v19, 4, v13
    v_lshlrev_b32 v19, 2, v19
    v_cmp_eq_u32 s[56:57], 1, v18
    v_cmp_eq_u32 s[58:59], 2, v18
    v_cmp_eq_u32 vcc, 3, v18
    """)
    for a in range(2):
        for (src, dst) in ((GRAM + 4 * a, 20 + 4 * a), (SUM + 4 * a, 22 + 4 * a)):
            k(f"""
            v_cndmask_b32 v{dst}, v{src}, v{src+1}, s[56:57]
            v_cndmask_b32 v{dst}, v{dst}, v{src+2}, s[58:59]
            v_cndmask_b32 v{dst}, v{dst}, v{src+3}, vcc
            ds_bpermute_b32 v{dst}, v19, v{dst}
            """)
    for n in range(4):
        k(f"""
        ds_read_b128 v[{180+8*n}:{183+8*n}], v15 offset:{256+64*n}
        ds_read_b128 v[{184+8*n}:{187+8*n}], v15 offset:{768+64*n}""")
    k('s_waitcnt lgkmcnt(12)')
    for n in range(4):
        k(f'v_mov_b32 v{145+4*n}, v{144+4*n}\nv_mov_b32 v{147+4*n}, v{146+4*n}')
    for e in range(16):
        k(f'v_mov_b32 v{28+e}, 0')
    k(f"""
    s_mul_i32 s3, s9, 54
    s_add_u32 s3, s3, s70
    """)
    for n in range(4):
        regs = []
        for a in range(2):
            acc = ACC2 + 4 * (4 * a + n)
            for p in range(2):
                x = acc + 2 * p
                g = GRAM + 4 * a + 2 * p
                s_ = SUM + 4 * a + 2 * p
                t = 162 + 2 * (2 * a + p)
                k(f"""
                v_pk_fma_f32 v[{t}:{t+1}], v[{144+4*n}:{145+4*n}], v[{s_}:{s_+1}], v[{146+4*n}:{147+4*n}]
                v_pk_fma_f32 v[{x}:{x+1}], v[{x}:{x+1}], v[{g}:{g+1}], v[{t}:{t+1}]""")
                regs.append(x)
        gelu4(k, regs)
        o = 44 + 4 * n
        for j, x in enumerate(regs):
            k(f'v_cvt_pk_bf16_f32 v{o+j}, v{x}, v{x+1}')
        k(f"""
        s_min_u32 s5, s68, {n}
        s_add_u32 s5, s5, s3
        s_lshl_b32 s5, s5, 10""")
        emit(f'buffer_store_dwordx4 v[{o}:{o+3}], v12, s[92:95], s5 offen {SC}', ('s', 0))
        lab = f'kgA_ns{n}'
        if n == 3:
            k(f's_cmp_eq_u32 s68, 3\ns_cbranch_scc0 {lab}')
        elif n < 2:
            k(f's_cmp_eq_u32 s55, 14\ns_cbranch_scc1 {lab}')
        for j, x in enumerate(regs):
            k(f"""
            v_pk_add_f32 v[{28+2*j}:{29+2*j}], v[{28+2*j}:{29+2*j}], v[{x}:{x+1}]
            v_pk_fma_f32 v[{36+2*j}:{37+2*j}], v[{x}:{x+1}], v[{x}:{x+1}], v[{36+2*j}:{37+2*j}]""")
        if n != 2:
            k(f'{lab}:')
    for n in (8, 4, 2, 1):
        for v in range(28, 44):
            k(f'v_add_f32_dpp v{v}, v{v}, v{v} row_ror:{n} row_mask:0xf bank_mask:0xf')
    for e in range(8):
        k(f'v_mov_b32 v{144+2*e}, v{28+e}\nv_mov_b32 v{145+2*e}, v{36+e}')
    k(f"""
    s_lshl_b32 s5, s4, 8
    s_add_u32 s5, s5, {SCR}
    v_lshlrev_b32 v15, 6, v14
    v_add_u32 v15, s5, v15
    v_lshl_add_u32 v16, v13, 2, v15
    v_cmp_eq_u32 vcc, 0, v13
    s_and_saveexec_b64 s[56:57], vcc
    ds_write_b128 v15, v[144:147]
    ds_write_b128 v15, v[148:151] offset:16
    ds_write_b128 v15, v[152:155] offset:32
    ds_write_b128 v15, v[156:159] offset:48
    s_mov_b64 exec, s[56:57]
    s_waitcnt lgkmcnt(0)
    ds_read_b32 v17, v16
    v_lshlrev_b32 v16, 2, v1
    s_lshl_b32 s5, s9, 8
    v_mov_b32 v21, v20
    v_mov_b32 v23, v22
    v_mov_b32 v25, v24
    v_mov_b32 v27, v26
    v_add_u32 v8, {PANEL}, v12
    v_add_u32 v9, {PANEL+40960}, v12
    s_waitcnt lgkmcnt(0)
    """)
    emit(f'buffer_atomic_add_f32 v17, v16, s[76:79], s5 offen {SC}', ('s', 0))
    k.stamp(4)
    b_setup(k)
    bpl = b_prefetch_list()
    wait_for([('p', 0)])
    k('s_barrier')

    def p_reads(kk):
        B = VB[kk & 1]
        return [f'ds_read_b128 v[{B+4*n}:{B+4*n+3}], v{8+(n>>1)} offset:{(n&1)*20480+1024*kk}' for n in range(4)]

    for l in p_reads(0):
        k(l)
    for kk in range(NK):
        nxt = p_reads(kk + 1) if kk + 1 < NK else []
        k('s_waitcnt lgkmcnt(0)')
        B = VB[kk & 1]
        m = 0
        for a in range(2):
            x = f'a[{8*kk+4*a}:{8*kk+4*a+3}]'
            for n in range(4):
                acc = ACC1 + 4 * (4 * a + n)
                k(f'v_mfma_f32_16x16x32_bf16 v[{acc}:{acc+3}], v[{B+4*n}:{B+4*n+3}], {x}, ' + ('0' if kk == 0 else f'v[{acc}:{acc+3}]'))
                if m < len(nxt):
                    k(nxt[m])
                if m in (5, 7) and bpl and kk >= FK + 1:
                    emit(bpl.pop(0), ('b', 0))
                m += 1
        if kk == FK:
            k(f"""
            s_lshl_b32 s3, s9, 4
            s_add_u32 s3, s3, s55
            s_lshl_b32 s3, s3, 2
            """)
            wait_for([('s', 0)])
            flag_store(k, 3)
            issued.append(('f', 0))
    assert not bpl
    k.stamp(5)
    k('s_barrier')
    k.stamp(6)
    for n in range(4):
        regs = []
        for a in range(2):
            acc = ACC1 + 4 * (4 * a + n)
            r = 20 + 4 * a
            for p in range(2):
                x = acc + 2 * p
                t = 162 + 2 * (2 * a + p)
                k(f"""
                v_pk_fma_f32 v[{t}:{t+1}], v[{180+8*n+2*p}:{181+8*n+2*p}], v[{r+2}:{r+3}], v[{184+8*n+2*p}:{185+8*n+2*p}]
                v_pk_fma_f32 v[{x}:{x+1}], v[{x}:{x+1}], v[{r}:{r+1}], v[{t}:{t+1}]""")
                regs.append(x)
        gelu4(k, regs)
        k(f"""
        s_min_u32 s3, s69, {n}
        s_add_u32 s3, s3, s71
        s_lshl_b32 s3, s3, 16
        """)
        for a in range(2):
            acc = ACC1 + 4 * (4 * a + n)
            k(f"""
            v_cvt_pk_bf16_f32 v{acc}, v{acc}, v{acc+1}
            v_cvt_pk_bf16_f32 v{acc+1}, v{acc+2}, v{acc+3}
            buffer_store_dwordx2 v[{acc}:{acc+1}], v218, s[80:83], s3 offen offset:{512*a} {SC}""")
    for kk in range(NK):
        k(f"""
        s_cmp_eq_u32 s55, {kk & 15}
        s_cbranch_scc0 kgA_nd{kk}
        s_mov_b32 s3, {kk*128*1024}
        buffer_store_dwordx4 a[{8*kk}:{8*kk+3}], v5, s[64:67], s3 offen {SC}
        buffer_store_dwordx4 a[{8*kk+4}:{8*kk+7}], v5, s[64:67], s3 offen offset:1024 {SC}
kgA_nd{kk}:
        """)
    k.stamp(7)
    k(f"""
    s_lshl_b32 s54, s9, 4
    s_add_u32 s54, s54, s55
    s_lshl_b32 s54, s54, 2
    s_add_u32 s54, s54, 8192
    """)
    k.stamp(8)


WSLOT = 8192
NWS = 3
DIST = int(os.environ.get('KG_DIST', 3))
NSET = DIST + 1
ZBL = [('v', 48 + 28 * n) for n in range(4)] + [('a', 128 + 28 * n) for n in range(4)]
ZB = ZBL[:NSET]
WB = [16, 32]


def zr(Z, b):
    return f'{Z[0]}[{Z[1]+4*b}:{Z[1]+4*b+3}]'


def wdma(P):
    slot = P % NWS
    L = []
    for m in range(8):
        c = m >> 1
        rowc = 32 * (c >> 1) + 4 * (c & 1)
        L.append(f'''s_add_u32 m0, s96, {slot*32768+1024*m}
    s_add_u32 s14, s97, {rowc*4096 + 128*P}
    buffer_load_dwordx4 v{220+(m&1)}, s[88:91], s14 offen lds''')
    return L


def b_setup(k):
    srd(k, 88, 'wsp', 2048 * 4096)
    k(f"""
    v_lshrrev_b32 v16, 3, v1
    v_lshrrev_b32 v17, 2, v16
    v_lshlrev_b32 v17, 3, v17
    v_and_b32 v16, 3, v16
    v_add_u32 v17, v17, v16
    v_lshlrev_b32 v17, 12, v17
    v_and_b32 v16, 7, v1
    v_xor_b32 v16, v16, v14
    v_lshl_add_u32 v220, v16, 4, v17
    v_xor_b32 v221, 64, v220
    v_add_u32 v221, {16*4096}, v221
    s_lshl_b32 s96, s4, 13
    s_lshl_b32 s97, s98, 18
    s_lshl_b32 s3, s4, 10
    s_add_u32 s97, s97, s3
    s_lshl_b32 s7, s2, 15
    v_lshlrev_b32 v219, 4, v0
    """)


def b_prefetch_list():
    L = wdma(0) + wdma(1)
    for j in range(8 if os.environ.get('KG_TOUCH') else 0):
        L.append(f"""buffer_load_dwordx4 v[{224+4*(j&3)}:{227+4*(j&3)}], v219, s[88:91], s7 offen
    s_add_u32 s7, s7, 4096""")
    return L


def zloads(ks):
    Z = ZB[ks % NSET]
    L = []
    for b in range(7):
        v = 12 if b < 4 else 3
        L.append(f'buffer_load_dwordx4 {zr(Z, b)}, v{v}, s[60:63], s12 offen offset:{1024*(b%4)} {SC}')
    L[-1] += f'\ns_add_u32 s12, s12, {54*1024}'
    return L


def wreads(ks):
    slot = (ks >> 1) % NWS
    W = WB[ks & 1]
    va = (6 if slot < 2 else 222) + (ks & 1)
    return [f'ds_read_b128 v[{W+4*c}:{W+4*c+3}], v{va} offset:{(slot%2)*32768+2048*c}' for c in range(4)]


def poll_loop(k, body, tag, sleep=2):
    pre = int(os.environ.get('KG_PRE' + tag, 0))
    sleep = int(os.environ.get('KG_SLP' + tag, sleep))
    if pre:
        k(f's_sleep {pre}')
    k(f"""
    s_mov_b32 s3, 0
kg_poll{tag}:
    {body}
    s_cmp_eq_u64 vcc, 0
    s_cbranch_scc1 kg_rdy{tag}
    s_add_u32 s3, s3, 1
    s_cmp_lt_u32 s3, {SPIN_MAX}
    s_cbranch_scc0 kg_rdy{tag}
    s_sleep {sleep}
    s_branch kg_poll{tag}
kg_rdy{tag}:
    """)


RB = [160, 168]
MB = [176, 180]
ACCM = 112


def tabreads(ks):
    R = RB[ks & 1]
    M = MB[ks & 1]
    return [f'ds_read_b128 v[{R}:{R+3}], v4 offset:{128*ks}',
            f'ds_read_b128 v[{R+4}:{R+7}], v4 offset:{128*ks+16}',
            f'ds_read_b128 v[{M}:{M+3}], v5 offset:{64*ks}']


def scale_ops(ks):
    W = WB[ks & 1]
    R = RB[ks & 1]
    L = []
    for c in range(4):
        for d in range(4):
            w = W + 4 * c + d
            t = 184 + 2 * ((4 * c + d) % 4)
            L.append(f"""v_lshlrev_b32 v{t}, 16, v{w}
    v_and_b32 v{t+1}, 0xffff0000, v{w}
    v_pk_mul_f32 v[{t}:{t+1}], v[{t}:{t+1}], v[{R+2*d}:{R+2*d+1}]
    v_cvt_pk_bf16_f32 v{w}, v{t}, v{t+1}""")
    return L


def phase_b(k):
    srd_ws(k, 60, 'Z2F')
    srd_ws(k, 64, 'Z1F')
    srd_ws(k, 68, 'PF')
    srd(k, 72, 'bsp', 4096)
    k(f"""
    s_mul_i32 s8, s99, 7
    s_min_u32 s8, s8, 47             ; phi0
    v_add_u32 v3, 4096, v12
    v_lshrrev_b32 v8, 2, v13
    v_lshlrev_b32 v8, 3, v8
    v_and_b32 v9, 3, v13
    v_add_u32 v8, v8, v9             ; row_local
    v_lshrrev_b32 v11, 1, v13
    v_xor_b32 v11, v11, v14
    v_lshlrev_b32 v11, 4, v11
    v_lshl_add_u32 v6, v13, 7, v11
    v_add_u32 v6, s96, v6
    v_xor_b32 v7, 64, v6
    v_add_u32 v222, 65536, v6
    v_add_u32 v223, 65536, v7
    s_mul_i32 s12, s4, {16*54}
    s_add_u32 s12, s12, s8
    s_lshl_b32 s12, s12, 10
    s_lshl_b32 s9, s98, 2
    s_add_u32 s9, s9, s4             ; tau
    s_lshl_b32 s13, s9, 10
    v_add_u32 v10, s13, v12
    v_lshrrev_b32 v217, 1, v10
    s_lshr_b32 s13, s4, 1
    s_lshl_b32 s13, s13, 5
    s_and_b32 s15, s4, 1
    s_lshl_b32 s15, s15, 2
    s_add_u32 s13, s13, s15
    s_lshl_b32 s15, s98, 6
    s_add_u32 s13, s13, s15
    s_lshl_b32 s13, s13, 1
    v_lshlrev_b32 v9, 1, v8
    buffer_load_ushort v206, v9, s[72:75], s13 offen
    s_lshl_b32 s10, s4, 12
    s_add_u32 s10, s10, {TAB}
    v_lshlrev_b32 v4, 5, v14
    v_add_u32 v4, s10, v4
    v_lshlrev_b32 v5, 4, v14
    v_mov_b32 v16, {ZERO}
    s_add_u32 s5, s10, 2048
    v_mov_b32 v17, s5
    v_cmp_eq_u32 vcc, 0, v13
    v_cndmask_b32 v16, v16, v17, vcc
    v_add_u32 v17, 1024, v17
    v_cmp_eq_u32 vcc, 1, v13
    v_cndmask_b32 v16, v16, v17, vcc
    v_add_u32 v5, v5, v16
    v_mov_b32 v16, 0
    v_mov_b32 v17, 0
    v_mov_b32 v18, 0
    v_mov_b32 v19, 0
    v_add_u32 v15, {ZERO}, v12
    ds_write_b128 v15, v[16:19]
    s_lshl_b32 s5, s4, 10
    s_lshr_b32 s6, s9, 1
    s_lshl_b32 s6, s6, 6
    s_lshl_b32 s7, s99, 3
    s_add_u32 s6, s6, s7
    v_and_b32 v2, 1, v1
    v_lshlrev_b32 v2, 2, v2
    s_waitcnt lgkmcnt(0)
    """)
    k('s_add_u32 s11, s6, 8192')
    poll_loop(k, f"""buffer_load_dwordx4 v[48:51], v12, s[84:87], s5 offen {SC}
    s_waitcnt vmcnt(0)
    v_min_u32 v48, v48, v49
    v_min3_u32 v48, v48, v50, v51
    v_cmp_eq_u32 vcc, 0, v48""", 'B', 16)
    flag_store(k, 54)
    for l in wreads(0):
        k(l)
    k.stamp(9)
    issued = [('f', 0)]

    def emit(l, tag):
        k(l)
        issued.append(tag)

    k('s_lshl_b32 s5, s4, 12\nv_lshlrev_b32 v15, 6, v1')
    for n in range(4):
        emit(f'buffer_load_dwordx4 v[{132+4*n}:{135+4*n}], v15, s[76:79], s5 offen offset:{16*n} {SC}', ('s', 0))
    for ks in range(2):
        for l in zloads(ks):
            emit(l, ('z', ks))
    def wait_for(tags, extra=''):
        idx = [i for i, t in enumerate(issued) if t in tags]
        n = len(issued) - 1 - max(idx)
        k(f's_waitcnt vmcnt({n}) {extra}')

    wait_for([('s', 0)])
    for e in range(8):
        m = 132 + 2 * e
        k(f"""
        v_mul_f32 v{m}, {f32(1.0/864)}, v{m}
        v_mov_b32 v15, {f32(1e-5)}
        v_fmac_f32 v15, {f32(1.0/864)}, v{m+1}
        v_fma_f32 v15, -v{m}, v{m}, v15
        v_max_f32 v15, {f32(1e-5)}, v15
        v_rsq_f32 v{148+e}, v15
        """)
    for d in range(4):
        m0, m1 = 132 + 4 * d, 134 + 4 * d
        k(f"""
        v_cvt_pk_bf16_f32 v{156+d}, v{m0}, v{m1}
        v_lshlrev_b32 v{m0+1}, 16, v{156+d}
        v_and_b32 v{m1+1}, 0xffff0000, v{156+d}
        v_sub_f32 v{m0}, v{m0}, v{m0+1}
        v_sub_f32 v{m1}, v{m1}, v{m1+1}
        v_cvt_pk_bf16_f32 v{184+d}, v{m0}, v{m1}
        """)
    k(f"""
    v_lshlrev_b32 v15, 5, v1
    v_add_u32 v15, s10, v15
    ds_write_b128 v15, v[148:151]
    ds_write_b128 v15, v[152:155] offset:16
    v_add_u32 v15, s10, v12
    ds_write_b128 v15, v[156:159] offset:2048
    ds_write_b128 v15, v[184:187] offset:3072
    s_waitcnt lgkmcnt(0)
    """)
    for l in tabreads(0):
        k(l)
    k('s_waitcnt lgkmcnt(0)')
    for l in scale_ops(0):
        k(l)
    nz = 2
    for ks in range(16):
        Z = ZB[ks % NSET]
        W = WB[ks & 1]
        M = MB[ks & 1]
        need = [('z', ks)] if not os.environ.get('KG_NOZ') else [('z', min(ks, 3))]
        if ks + 1 < 16 and (ks + 1) >> 1 >= 2 and not os.environ.get('KG_NOW'):
            need.append(('w', (ks + 1) >> 1))
        wait_for(need, 'lgkmcnt(0)' if os.environ.get('KG_NOSCALE') else '')
        early = []
        if ks + 1 < 16:
            early += [(None, l) for l in wreads(ks + 1) + tabreads(ks + 1)]
        mem = []
        cnt2 = 0 if not os.environ.get('KG_NOZ') else 2 if ks > 1 else 0
        while nz <= min(ks + DIST, 15) and cnt2 < 2:
            mem += [(('z', nz), l) for l in zloads(nz)]
            nz += 1
            cnt2 += 1
        if ks % 2 == 0 and (ks >> 1) + 2 < 8 and not os.environ.get('KG_NOW'):
            P = (ks >> 1) + 2
            mem += [(('w', P), l) for l in wdma(P)]
        if ks == 11:
            mem.append((('zf', 0), f'buffer_load_dword v15, v2, s[84:87], s11 offen {SC}'))
        if ks == 13:
            wait_for([('zf', 0)])
            k("""
            v_cmp_eq_u32 vcc, 0, v15
            s_cmp_eq_u64 vcc, 0
            s_cbranch_scc1 kg_z1ok
            """)
            poll_loop(k, f"""buffer_load_dword v15, v2, s[84:87], s11 offen {SC}
    s_waitcnt vmcnt(0)
    v_cmp_eq_u32 vcc, 0, v15""", 'Z', 4)
            k('kg_z1ok:')
            for b in range(7):
                mem.append((('e', 0), f"""s_add_u32 s13, s8, {b}
    s_lshl_b32 s{76+b}, s13, 16
    buffer_load_dwordx2 v[{192+2*b}:{193+2*b}], v217, s[64:67], s{76+b} offen {SC}"""))
        sc = scale_ops(ks + 1) if (ks + 1 < 16 and not os.environ.get('KG_NOSCALE')) else []
        MF = []
        for c in range(4):
            for b in range(7):
                a = 4 * (7 * c + b)
                cc = '0' if ks == 0 else f'a[{a}:{a+3}]'
                MF.append(f'v_mfma_f32_16x16x32_bf16 a[{a}:{a+3}], {zr(Z, b)}, v[{W+4*c}:{W+4*c+3}], {cc}')
            a = ACCM + 4 * c
            cc = '0' if ks == 0 else f'a[{a}:{a+3}]'
            MF.append(f'v_mfma_f32_16x16x32_bf16 a[{a}:{a+3}], v[{M}:{M+3}], v[{W+4*c}:{W+4*c+3}], {cc}')
        mi = 0
        for n, mm in enumerate(MF):
            k(mm)
            if n < len(early):
                k(early[n][1])
            if mi < len(mem) and (n >= len(early) or len(mem) > 24):
                t, l = mem[mi]
                k(l)
                issued.append(t)
                mi += 1
            W0 = int(os.environ.get('KG_W0', 13))
            if n == W0 and sc:
                k('s_waitcnt lgkmcnt(0)')
                flat = [x for g in sc for x in g.split('\n')]
            if n > W0 and sc:
                rem = 31 - n + 1
                take = -(-len(flat) // rem)
                for x in flat[:take]:
                    k(x)
                flat = flat[take:]
        assert mi == len(mem), (ks, mi, len(mem))
    k.stamp(10)
    for c in range(4):
        k(f'v_accvgpr_read_b32 v{16+2*c}, a{ACCM+4*c}\nv_accvgpr_read_b32 v{17+2*c}, a{ACCM+4*c+1}')
    k(f"""
    s_lshl_b32 s5, s4, 8
    s_add_u32 s5, s5, {CORR}
    v_lshlrev_b32 v15, 2, v13
    v_add_u32 v11, s5, v15
    v_add_f32 v16, v16, v17
    v_add_f32 v18, v18, v19
    v_add_f32 v20, v20, v21
    v_add_f32 v22, v22, v23
    s_mov_b64 exec, 0xffff
    ds_write_b32 v11, v16
    ds_write_b32 v11, v18 offset:64
    ds_write_b32 v11, v20 offset:128
    ds_write_b32 v11, v22 offset:192
    s_mov_b64 exec, -1
    s_barrier
    """)
    for w in range(4):
        k(f"""
        s_cmp_eq_u32 s4, {w}
        s_cbranch_scc0 kgB_red_{w}""")
        for c in range(4):
            if c == w:
                continue
            src = (w - c - 1) % 4
            k(f'v_add_u32 v11, {(c*3+src)*7168}, v12')
            for b in range(7):
                a = 4 * (7 * c + b)
                k(f'ds_write_b128 v11, a[{a}:{a+3}] offset:{1024*b}')
        for n in range(28):
            k(f'v_accvgpr_read_b32 v{16+n}, a{28*w+n}')
        k(f'kgB_red_{w}:')
    k(f"""
    s_mul_i32 s14, s4, {3*7168}
    v_add_u32 v11, s14, v12
    s_lshl_b32 s5, s4, 6
    s_add_u32 s5, s5, {CORR}
    v_add_u32 v15, s5, v15
    s_waitcnt lgkmcnt(0)
    s_barrier
    ds_read_b32 v140, v15
    ds_read_b32 v141, v15 offset:256
    ds_read_b32 v142, v15 offset:512
    ds_read_b32 v143, v15 offset:768
    """)
    for b in range(3):
        for s in range(3):
            r = 48 + 12 * b + 4 * s
            k(f'ds_read_b128 v[{r}:{r+3}], v11 offset:{s*7168+1024*b}')
    k(f"""
    s_waitcnt lgkmcnt(9) vmcnt(0)
    v_lshlrev_b32 v206, 16, v206
    v_add_f32 v140, v140, v141
    v_add_f32 v142, v142, v143
    v_sub_f32 v206, v206, v140
    v_sub_f32 v206, v206, v142
    v_mov_b32 v207, v206
    """)
    for b in range(3, 7):
        for s in range(3):
            r = 48 + 12 * b + 4 * s
            k(f'ds_read_b128 v[{r}:{r+3}], v11 offset:{s*7168+1024*b}')
    for b in range(7):
        k(f's_waitcnt lgkmcnt({min(15, 18-3*b)})')
        o = 16 + 4 * b
        r = 48 + 12 * b
        for p in range(2):
            k(f"""
            v_pk_add_f32 v[{o+2*p}:{o+2*p+1}], v[{o+2*p}:{o+2*p+1}], v[{r+2*p}:{r+2*p+1}]
            v_pk_add_f32 v[{r+4+2*p}:{r+4+2*p+1}], v[{r+4+2*p}:{r+4+2*p+1}], v[{r+8+2*p}:{r+8+2*p+1}]
            v_pk_add_f32 v[{o+2*p}:{o+2*p+1}], v[{o+2*p}:{o+2*p+1}], v[206:207]
            v_lshlrev_b32 v{r}, 16, v{192+2*b+p}
            v_and_b32 v{r+1}, 0xffff0000, v{192+2*b+p}
            v_pk_add_f32 v[{o+2*p}:{o+2*p+1}], v[{o+2*p}:{o+2*p+1}], v[{r+4+2*p}:{r+4+2*p+1}]
            v_pk_mul_f32 v[{o+2*p}:{o+2*p+1}], v[{o+2*p}:{o+2*p+1}], v[{r}:{r+1}]
            v_cvt_pk_bf16_f32 v{192+2*b+p}, v{o+2*p}, v{o+2*p+1}
            """)
    k(f"""
    s_add_u32 s5, s8, 1
    s_lshr_b32 s5, s5, 1
    s_lshl_b32 s5, s5, 17
    s_add_u32 s6, s5, {1<<17}
    s_add_u32 s7, s5, {2<<17}
    s_and_b32 s13, s8, 1
    s_cmp_eq_u32 s13, 0
    s_cbranch_scc0 kgB_odd
    s_add_u32 s13, s5, {3<<17}
    buffer_store_dwordx4 v[192:195], v10, s[68:71], s5 offen {SC}
    buffer_store_dwordx4 v[196:199], v10, s[68:71], s6 offen {SC}
    buffer_store_dwordx4 v[200:203], v10, s[68:71], s7 offen {SC}
    buffer_store_dwordx2 v[204:205], v10, s[68:71], s13 offen {SC}
    s_branch kgB_st
kgB_odd:
    s_sub_u32 s13, s5, {1<<17}
    buffer_store_dwordx4 v[194:197], v10, s[68:71], s5 offen {SC}
    buffer_store_dwordx4 v[198:201], v10, s[68:71], s6 offen {SC}
    buffer_store_dwordx4 v[202:205], v10, s[68:71], s7 offen {SC}
    buffer_store_dwordx2 v[192:193], v10, s[68:71], s13 offen offset:8 {SC}
kgB_st:
    """)
    k(f"""
    s_lshl_b32 s3, s98, 3
    s_add_u32 s3, s3, s99
    s_lshl_b32 s3, s3, 2
    s_add_u32 s3, s3, s4
    s_lshl_b32 s3, s3, 2
    s_add_u32 s3, s3, 4096
    v_mov_b32 v15, 0
    v_mov_b32 v16, 1
    s_waitcnt vmcnt(0)
    s_mov_b64 exec, 1
    buffer_store_dword v16, v15, s[84:87], s3 offen {SC}
    s_mov_b64 exec, -1
    """)
    k.stamp(11)
    k('s_barrier')
    c_panel(k)


NPS = 8
PSET = [16 + 4 * n for n in range(NPS)]
WOS = [48, 68]
ACC3 = 88


def c_panel(k):
    srd_ws(k, 56, 'WOF')
    k(f"""
    s_mul_i32 s5, s4, 40
    s_mul_i32 s6, s99, 5
    s_add_u32 s5, s5, s6
    s_lshl_b32 s5, s5, 10            ; (w*40 + 5e) KB
    s_mul_i32 s6, s4, 5120
    """)
    for n in range(7):
        k(f's_add_u32 m0, s6, {n*4*5120}')
        for b in range(4):
            k(f'buffer_load_dwordx4 v12, s[56:59], s5 offen offset:{1024*b} lds')
        k(f"""s_add_u32 m0, s6, {n*4*5120+4096}
        buffer_load_dwordx4 v3, s[56:59], s5 offen lds
        s_add_u32 s5, s5, {4*40*1024}""")


def phase_c(k):
    srd_ws(k, 60, 'PF')
    srd_ws(k, 64, 'X1F')
    srd_ws(k, 68, 'MODF')
    srd(k, 72, 'out', 2048 * 1280)
    k(f"""
    s_mul_i32 s8, s99, 5             ; delta0
    v_mul_u32_u24 v4, 1280, v8
    v_lshl_add_u32 v4, v14, 4, v4
    v_lshlrev_b32 v5, 5, v14
    s_mov_b32 s12, 0
    s_lshr_b32 s14, s4, 1
    s_lshl_b32 s14, s14, 5
    s_and_b32 s15, s4, 1
    s_lshl_b32 s15, s15, 2
    s_add_u32 s14, s14, s15
    s_lshl_b32 s15, s98, 6
    s_add_u32 s14, s14, s15
    s_mul_i32 s13, s14, 1280
    v_add_u32 v6, 61440, v12
    v_add_u32 v7, 122880, v12
    """)
    for b in range(5):
        k(f"""
        s_add_u32 s14, s8, {b}
        s_lshr_b32 s15, s14, 1           ; dblk
        s_and_b32 s14, s14, 1            ; h
        s_lshl_b32 s5, s15, 17
        s_lshl_b32 s6, s14, 3
        s_add_u32 s{76+b}, s5, s6        ; x1f soffset
        s_lshl_b32 s5, s15, 6
        s_add_u32 s5, s5, s6
        s_add_u32 s{88+b}, s5, s13
        s_lshl_b32 s5, s5, 1
        s_add_u32 s5, s5, {5*640*4}
        buffer_load_dwordx4 v[{228+4*b}:{231+4*b}], v5, s[68:71], s5 offen
        """)
    k(f"""
    s_lshl_b32 s3, s98, 7
    s_lshl_b32 s5, s4, 2
    s_add_u32 s3, s3, s5
    s_add_u32 s3, s3, 4096
    v_add_u32 v2, s3, v12
    s_lshr_b32 s5, s8, 1
    s_add_u32 s5, s5, 8
    v_add_u32 v17, s5, v1
    v_and_b32 v17, 15, v17
    v_lshlrev_b32 v18, 2, v17
    s_lshr_b32 s5, s9, 1
    s_lshl_b32 s5, s5, 6
    s_add_u32 s5, s5, 8192
    v_add_u32 v18, s5, v18
    v_cmp_gt_u32 vcc, 8, v1
    v_cndmask_b32 v2, v18, v2, vcc
    s_mov_b64 exec, 0x7ff
    """)
    poll_loop(k, f"""buffer_load_dword v15, v2, s[84:87], 0 offen {SC}
    s_waitcnt vmcnt(0)
    v_cmp_eq_u32 vcc, 0, v15""", 'C', 2)
    k('s_mov_b64 exec, -1')
    k.stamp(12)
    issued = []

    def pload(be):
        P = PSET[be % NPS]
        k(f"""buffer_load_dwordx4 v[{P}:{P+3}], v10, s[60:63], s12 offen {SC}
        s_add_u32 s12, s12, {128*1024}""")
        issued.append(be)

    def wo_reads(be):
        W = WOS[be & 1]
        va = (12, 6, 7)[be // 12]
        return [f'ds_read_b128 v[{W+4*b}:{W+4*b+3}], v{va} offset:{(be % 12)*5120+1024*b}' for b in range(5)]

    for be in range(NPS - 1):
        pload(be)
    for b in range(5):
        k(f'buffer_load_dwordx2 v[{196+2*b}:{197+2*b}], v10, s[64:67], s{76+b} offen {SC}')
        issued.append(-1)
    k('s_barrier')
    for l in wo_reads(0):
        k(l)
    for be in range(27):
        P = PSET[be % NPS]
        W = WOS[be & 1]
        last = max(i for i, t in enumerate(issued) if t == be)
        k(f's_waitcnt vmcnt({len(issued) - 1 - last}) lgkmcnt(0)')
        nxt = wo_reads(be + 1) if be + 1 < 27 else []
        for b in range(5):
            a = ACC3 + 4 * b
            cc = '0' if be == 0 else f'v[{a}:{a+3}]'
            k(f'v_mfma_f32_16x16x32_bf16 v[{a}:{a+3}], v[{W+4*b}:{W+4*b+3}], v[{P}:{P+3}], {cc}')
            if b < len(nxt):
                k(nxt[b])
        if be + NPS - 1 < 27:
            pload(be + NPS - 1)
    k.stamp(13)
    k('s_waitcnt vmcnt(0)')
    for b in range(5):
        o = ACC3 + 4 * b
        for p in range(2):
            r = 16 + 4 * b + 2 * p
            k(f"""
            v_lshlrev_b32 v{r}, 16, v{196+2*b+p}
            v_and_b32 v{r+1}, 0xffff0000, v{196+2*b+p}
            v_pk_fma_f32 v[{o+2*p}:{o+2*p+1}], v[{o+2*p}:{o+2*p+1}], v[{228+4*b+2*p}:{229+4*b+2*p}], v[{r}:{r+1}]
            v_cvt_pk_bf16_f32 v{196+2*b+p}, v{o+2*p}, v{o+2*p+1}
            """)
        k(f'buffer_store_dwordx2 v[{196+2*b}:{197+2*b}], v4, s[72:75], s{88+b} offen')
    k.stamp(14)


def make_kg():
    k = Kern('gemm_kernel', 256, 256, KG_LDS)
    k('''
    s_cmp_ge_u32 s2, 256
    s_cbranch_scc1 kg_exit
    ''')
    k.stamp(0)
    load_ptrs(k)
    k(f'''
    s_and_b32 s3, s2, 7              ; xcd
    s_lshr_b32 s5, s2, 3             ; kx
    s_lshr_b32 s6, s3, 1             ; xh
    s_and_b32 s7, s3, 1              ; xl
    s_lshl_b32 s54, s6, 2
    s_and_b32 s8, s5, 3
    s_add_u32 s54, s54, s8
    s_lshl_b32 s55, s7, 3
    s_lshr_b32 s8, s5, 2
    s_add_u32 s55, s55, s8
    s_lshl_b32 s98, s6, 3
    s_and_b32 s8, s5, 7
    s_add_u32 s98, s98, s8
    s_lshl_b32 s99, s7, 2
    s_lshr_b32 s8, s5, 3
    s_add_u32 s99, s99, s8
    v_and_b32 v1, 63, v0
    v_lshrrev_b32 v15, 6, v0
    v_lshlrev_b32 v12, 4, v1
    v_and_b32 v13, 15, v1
    v_lshrrev_b32 v14, 4, v1
    v_readfirstlane_b32 s4, v15
    s_waitcnt lgkmcnt(0)
    ''')
    phase_a(k)
    phase_b(k)
    phase_c(k)
    if os.environ.get('STAMP'):
        k('s_waitcnt vmcnt(0)')
    k.stamp(15)
    k.stamp_flush(2)
    k('kg_exit:\ns_endpgm')
    return k
```

```python
from asmlib import Kern, code_touch
from layout import WS, KR_STRIDE, XS, LBS
from gen_k1 import f32, load_ptrs, srd, srd_ws

N_WP, N_MISC, N_CONV, N_WSF = 108, 16, 640, int(__import__('os').environ.get('K2_TOUCH', 0))
B_WP = N_CONV
B_WSF = B_WP + N_WP
B_MISC = B_WSF + N_WSF
KG_CODE_BYTES = 36864
DMACOPY = __import__('os').environ.get('K2_DMA') == '1'
CS = 4160
HOFF = 8 * CS
K2_LDS = 38912


def quad_sum(k, v):
    k(f'''
    v_add_f32_dpp v{v}, v{v}, v{v} quad_perm:[1,0,3,2] row_mask:0xf bank_mask:0xf
    v_add_f32_dpp v{v}, v{v}, v{v} quad_perm:[2,3,0,1] row_mask:0xf bank_mask:0xf
    ''')


def role_wp(k):
    RS = 192
    RED = 160 * RS
    srd(k, 56, 'win', 640 * 3456)
    srd_ws(k, 60, 'MODP')
    srd_ws(k, 64, 'WPF')
    srd_ws(k, 68, 'CSP')
    srd_ws(k, 72, 'BIP')
    k(f'''
    s_sub_u32 s3, s2, {B_WP}
    s_mul_i32 s4, s3, 2428
    s_lshr_b32 s4, s4, 16            ; dq
    s_mul_i32 s5, s4, 27
    s_sub_u32 s5, s3, s5             ; fb
    v_and_b32 v1, 7, v0              ; c8
    v_lshrrev_b32 v2, 3, v0          ; rg
    v_mul_u32_u24 v3, 3456, v2
    v_lshl_add_u32 v3, v1, 4, v3
    s_mul_i32 s6, s4, {160*3456}
    s_lshl_b32 s7, s5, 7
    s_add_u32 s6, s6, s7
    v_and_b32 v4, 3, v1
    v_mul_u32_u24 v4, 15360, v4
    v_lshrrev_b32 v5, 2, v1
    v_mul_u32_u24 v5, 2560, v5
    v_add_u32 v4, v4, v5
    v_lshl_add_u32 v4, v2, 2, v4
    s_mul_i32 s12, s4, 640
    s_add_u32 s12, s12, {3*2560}
    ''')
    for i in range(1, 5):
        k(f's_add_u32 s{6+i}, s6, {32*3456*i}')
    for i in range(5):
        k(f'buffer_load_dword v{28+i}, v4, s[60:63], s12 offen offset:{128*i}')
    for i in range(5):
        k(f'buffer_load_dwordx4 v[{8+4*i}:{11+4*i}], v3, s[56:59], s{6+i} offen')
    k(f'''
    v_mul_u32_u24 v6, {RS}, v2
    v_lshl_add_u32 v6, v1, 4, v6
    v_cmp_gt_u32 vcc, 4, v1
    s_waitcnt vmcnt(5)
    ''')
    for i in range(5):
        v = 28 + i
        quad_sum(k, v)
        k(f'''
        v_cvt_pk_bf16_f32 v{v}, v{v}, v{v}
        v_lshlrev_b32 v{v}, 16, v{v}
        v_mov_b32_dpp v5, v{v} row_half_mirror row_mask:0xf bank_mask:0xf
        v_cndmask_b32 v{34+4*i}, v{v}, v5, vcc      ; cb
        v_cndmask_b32 v{36+4*i}, v5, v{v}, vcc      ; sb
        v_add_f32 v{34+4*i}, 1.0, v{34+4*i}
        v_mov_b32 v{35+4*i}, v{34+4*i}
        v_mov_b32 v{37+4*i}, v{36+4*i}
        ''')
    for i in range(5):
        k(f's_waitcnt vmcnt({4-i})')
        for j in range(4):
            r = 8 + 4 * i + j
            k(f'''
            v_lshlrev_b32 v72, 16, v{r}
            v_and_b32 v73, 0xffff0000, v{r}
            v_pk_mul_f32 v[74:75], v[72:73], v[{34+4*i}:{35+4*i}]
            ''')
            if i == 0:
                k(f'v_pk_mul_f32 v[{64+2*j}:{65+2*j}], v[72:73], v[{36+4*i}:{37+4*i}]')
            else:
                k(f'v_pk_fma_f32 v[{64+2*j}:{65+2*j}], v[72:73], v[{36+4*i}:{37+4*i}], v[{64+2*j}:{65+2*j}]')
            k(f'v_cvt_pk_bf16_f32 v{r}, v74, v75')
            if i == 0:
                k(f'''
                v_lshlrev_b32 v{56+2*j}, 16, v{r}
                v_and_b32 v{57+2*j}, 0xffff0000, v{r}''')
            else:
                k(f'''
                v_lshlrev_b32 v76, 16, v{r}
                v_and_b32 v77, 0xffff0000, v{r}
                v_pk_add_f32 v[{56+2*j}:{57+2*j}], v[{56+2*j}:{57+2*j}], v[76:77]''')
        k(f'ds_write_b128 v6, v[{8+4*i}:{11+4*i}] offset:{32*RS*i}')
    for j in range(16):
        k(f'v_add_f32_dpp v{56+j}, v{56+j}, v{56+j} row_ror:8 row_mask:0xf bank_mask:0xf')
    k(f'''
    v_lshrrev_b32 v5, 4, v0
    v_lshlrev_b32 v5, 8, v5
    v_lshl_add_u32 v5, v1, 5, v5
    ds_write_b128 v5, v[56:59] offset:{RED}
    ds_write_b128 v5, v[60:63] offset:{RED+16}
    ds_write_b128 v5, v[64:67] offset:{RED+4096}
    ds_write_b128 v5, v[68:71] offset:{RED+4096+16}
    v_and_b32 v40, 63, v0            ; lane
    v_lshrrev_b32 v41, 6, v0
    v_lshrrev_b32 v42, 4, v40        ; kq
    v_bfe_u32 v43, v40, 2, 2         ; rr
    v_and_b32 v44, 3, v40            ; c
    v_lshl_add_u32 v7, v42, 3, v43
    v_mul_u32_u24 v7, {RS}, v7
    v_lshl_add_u32 v7, v44, 4, v7    ; + 16c
    v_lshrrev_b32 v45, 1, v41
    v_lshl_add_u32 v7, v45, 6, v7    ; + 64 blk
    v_and_b32 v45, 1, v41
    v_lshl_add_u32 v7, v45, 3, v7    ; + 8a
    v_lshlrev_b32 v46, 4, v40
    v_lshl_add_u32 v46, v41, 10, v46
    s_mul_i32 s6, s4, {5*108}
    s_lshl_b32 s7, s5, 2
    s_add_u32 s6, s6, s7
    s_lshl_b32 s6, s6, 10
    s_waitcnt lgkmcnt(0)
    s_barrier
    ''')
    for j in range(5):
        k(f'''
        ds_read_b64_tr_b16 v[{8+4*j}:{9+4*j}], v7 offset:{32*RS*j}
        ds_read_b64_tr_b16 v[{10+4*j}:{11+4*j}], v7 offset:{32*RS*j+4*RS}''')
    for j in range(5):
        k(f'''
        s_waitcnt lgkmcnt({8-2*j})
        buffer_store_dwordx4 v[{8+4*j}:{11+4*j}], v46, s[64:67], s6 offen
        s_add_u32 s6, s6, {108*1024}''')
    k(f'''
    v_cmp_gt_u32 vcc, 128, v0
    s_and_saveexec_b64 s[14:15], vcc
    s_cbranch_execz k2_wp_end
    v_lshlrev_b32 v6, 2, v40
    v_lshl_add_u32 v5, v41, 12, v6
    ''')
    for i in range(16):
        k(f'ds_read_b32 v{48+i}, v5 offset:{RED+256*i}')
    k('s_waitcnt lgkmcnt(0)')
    for s in (8, 4, 2, 1):
        for i in range(s):
            k(f'v_add_f32 v{48+i}, v{48+i}, v{48+i+s}')
    k(f'''
    s_mul_i32 s6, s4, {1728*4}
    s_lshl_b32 s7, s5, 8
    s_add_u32 s6, s6, s7
    v_readfirstlane_b32 s8, v41
    s_cmp_eq_u32 s8, 0
    s_cbranch_scc0 k2_wp_b
    buffer_store_dword v48, v6, s[68:71], s6 offen
    s_endpgm
k2_wp_b:
    buffer_store_dword v48, v6, s[72:75], s6 offen
k2_wp_end:
    s_endpgm
    ''')


def role_misc(k):
    srd_ws(k, 56, 'STAT')
    srd_ws(k, 60, 'MODP')
    srd_ws(k, 64, 'MODF')
    srd_ws(k, 68, 'FLG')
    k(f"""
    s_sub_u32 s3, s2, {B_MISC}
    s_lshl_b32 s4, s3, 12
    s_sub_u32 s9, s4, 16384
    v_lshlrev_b32 v1, 4, v0
    v_mov_b32 v4, 0
    v_mov_b32 v5, 0
    v_mov_b32 v6, 0
    v_mov_b32 v7, 0
    s_cmp_ge_u32 s3, 4
    s_cbranch_scc1 k2_misc_b
    buffer_store_dwordx4 v[4:7], v1, s[56:59], s4 offen
    s_branch k2_misc_a
k2_misc_b:
    s_cmp_ge_u32 s3, 7
    s_cbranch_scc1 k2_misc_a
    buffer_store_dwordx4 v[4:7], v1, s[68:71], s9 offen
k2_misc_a:
    s_cmp_ge_u32 s3, 15
    s_cbranch_scc1 k2_misc_end
    v_lshlrev_b32 v2, 2, v0
    s_lshl_b32 s5, s3, 10
    s_add_u32 s6, s5, 15360
    s_add_u32 s7, s5, 30720
    s_add_u32 s8, s5, 46080
    buffer_load_dword v8, v2, s[60:63], s5 offen
    buffer_load_dword v9, v2, s[60:63], s6 offen
    buffer_load_dword v10, v2, s[60:63], s7 offen
    buffer_load_dword v11, v2, s[60:63], s8 offen
    s_waitcnt vmcnt(0)
    v_add_f32 v8, v8, v9
    v_add_f32 v10, v10, v11
    v_add_f32 v8, v8, v10
    v_cvt_pk_bf16_f32 v8, v8, v8
    v_lshlrev_b32 v8, 16, v8
    buffer_store_dword v8, v2, s[64:67], s5 offen
k2_misc_end:
    s_endpgm
    """)


def role_wsf(k):
    srd(k, 56, 'wsp', 2048 * 4096)
    k(f"""
    s_sub_u32 s3, s2, {B_WSF}
    s_lshl_b32 s3, s3, 16
    v_lshlrev_b32 v1, 4, v0
    """)
    for j in range(16):
        k(f"""
        buffer_load_dwordx4 v[{4+4*j}:{7+4*j}], v1, s[56:59], s3 offen
        s_add_u32 s3, s3, 4096""")
    k('s_waitcnt vmcnt(0)\ns_endpgm')


def role_conv(k):
    srd_ws(k, 56, 'KR')
    srd_ws(k, 60, 'XNT')
    srd_ws(k, 64, 'XT')
    srd_ws(k, 68, 'MODP')
    srd(k, 72, 'Dskip', 1280)
    srd_ws(k, 76, 'X1T')
    FB = 8
    ACC = 72
    XR = 4
    k(f"""
    s_and_b32 s3, s2, 7
    s_lshl_b32 s3, s3, 2
    s_lshr_b32 s4, s2, 3
    s_and_b32 s5, s4, 3
    s_add_u32 s3, s3, s5
    s_lshr_b32 s4, s4, 2
    s_lshl_b32 s4, s4, 5
    s_add_u32 s3, s3, s4             ; d = 32(k>>2) + 4xcd + (k&3)
    v_and_b32 v1, 63, v0             ; lane
    v_lshrrev_b32 v8, 6, v0
    v_lshlrev_b32 v11, 4, v0
    v_readfirstlane_b32 s4, v8       ; wave
    s_mul_i32 s5, s3, {KR_STRIDE}
    s_mul_i32 s6, s3, {XS}
    """)
    if DMACOPY:
        k(f"""
        v_lshlrev_b32 v40, 4, v1
        s_lshl_b32 s7, s4, 2
        v_add_u32 v40, s7, v40
        v_add_u32 v41, 2, v40
        s_mul_i32 s8, s4, {2*CS}
        s_mov_b32 m0, s8
        s_add_u32 s9, s8, {CS}
        """)
        for c in range(4):
            k(f'buffer_load_dwordx4 v40, s[56:59], s5 offen offset:{1024*c} lds')
        k('s_mov_b32 m0, s9')
        for c in range(4):
            k(f'buffer_load_dwordx4 v41, s[56:59], s5 offen offset:{1024*c} lds')
    else:
        k("""
        buffer_load_dwordx4 v[40:43], v11, s[56:59], s5 offen
        buffer_load_dwordx4 v[44:47], v11, s[56:59], s5 offen offset:16
        """)
    k(f"""
    v_and_b32 v16, 3, v1
    v_mul_u32_u24 v16, 15360, v16
    v_bfe_u32 v17, v1, 2, 2
    v_min_u32 v17, 2, v17
    v_mul_u32_u24 v17, 2560, v17
    v_add_u32 v16, v16, v17
    s_lshl_b32 s10, s3, 2
    buffer_load_dword v18, v16, s[68:71], s10 offen
    v_lshrrev_b32 v9, 1, v0
    v_mul_u32_u24 v9, {LBS}, v9
    v_and_b32 v10, 1, v0
    v_lshl_add_u32 v9, v10, 4, v9
    s_lshl_b32 s7, s3, 5
    buffer_load_dwordx4 v[12:15], v9, s[60:63], s7 offen
    v_mov_b32 v19, 0
    s_lshl_b32 s11, s3, 1
    buffer_load_ushort v20, v19, s[72:75], s11 offen
    v_and_b32 v21, 15, v1            ; n / b
    v_lshrrev_b32 v22, 4, v1         ; q / kq
    v_mul_u32_u24 v23, {LBS}, v21
    v_lshl_add_u32 v23, v22, 3, v23  ; n*20480 + 8q
    s_mul_i32 s8, s4, {32*LBS}
    s_add_u32 s8, s8, s7
    s_add_u32 s9, s8, {16*LBS}
    buffer_load_dwordx2 v[4:5], v23, s[64:67], s8 offen
    buffer_load_dwordx2 v[6:7], v23, s[64:67], s9 offen
    s_lshl_b32 s12, s4, 10
    s_add_u32 s13, s6, s12
    v_mov_b32 v24, 0
    v_mov_b32 v25, 0
    v_mov_b32 v26, 0
    v_mov_b32 v27, 0
    v_and_b32 v28, 7, v0
    v_mul_u32_u24 v28, {CS}, v28
    ds_write_b128 v28, v[24:27] offset:4096
    v_min_u32 v29, 29, v1
    v_lshlrev_b32 v29, 4, v29
    ds_write_b128 v29, v[24:27] offset:{HOFF}
    v_sub_u32 v30, 15, v21           ; b'
    v_and_b32 v31, 7, v30
    v_mul_u32_u24 v2, {CS}, v31
    v_lshrrev_b32 v30, 3, v30
    v_add_u32 v30, v30, v22
    v_lshl_add_u32 v2, v30, 4, v2
    s_lshl_b32 s14, s4, 7
    s_sub_u32 s14, 384, s14          ; 448 - 128w - 64
    v_add_u32 v2, s14, v2
    v_lshlrev_b32 v3, 5, v21
    v_lshl_add_u32 v3, v22, 4, v3
    s_add_u32 s15, s14, {HOFF}
    v_add_u32 v3, s15, v3
    s_waitcnt vmcnt(5)
    """)
    k.stamp(1)
    if DMACOPY:
        k('s_waitcnt vmcnt(4)')
    else:
        k(f"""
        ds_write_b128 v11, v[40:43] offset:{0*CS}
        ds_write_b128 v11, v[42:45] offset:{4*CS}
        """)
        for j in range(6):
            k(f'v_mov_b32 v{48+j}, v{41+j}')
        k(f"""
        ds_write_b128 v11, v[48:51] offset:{2*CS}
        ds_write_b128 v11, v[50:53] offset:{6*CS}
        """)
        for j in range(6):
            k(f'v_alignbit_b32 v{56+j}, v{41+j}, v{40+j}, 16')
        k(f"""
        ds_write_b128 v11, v[56:59] offset:{1*CS}
        ds_write_b128 v11, v[58:61] offset:{5*CS}
        """)
        for j in range(6):
            k(f'v_alignbit_b32 v{64+j}, v{42+j}, v{41+j}, 16')
        k(f"""
        ds_write_b128 v11, v[64:67] offset:{3*CS}
        ds_write_b128 v11, v[66:69] offset:{7*CS}
        s_waitcnt vmcnt(4)
        """)
    quad_sum(k, 18)
    k(f"""
    v_cvt_pk_bf16_f32 v18, v18, v18
    v_lshlrev_b32 v18, 16, v18
    s_nop 0
    v_readlane_b32 s80, v18, 0       ; sa
    v_readlane_b32 s81, v18, 4       ; ca
    v_readlane_b32 s82, v18, 8       ; ga
    s_nop 1
    v_mov_b32 v32, s81
    v_add_f32 v32, 1.0, v32
    v_mov_b32 v33, v32
    v_mov_b32 v34, s80
    v_mov_b32 v35, s80
    s_waitcnt vmcnt(3)
    """)
    for j in range(4):
        k(f"""
        v_lshlrev_b32 v36, 16, v{12+j}
        v_and_b32 v37, 0xffff0000, v{12+j}
        v_pk_fma_f32 v[36:37], v[36:37], v[32:33], v[34:35]
        v_cvt_pk_bf16_f32 v{12+j}, v36, v37""")
    k(f"""
    ds_write_b128 v11, v[12:15] offset:{HOFF+480}
    s_waitcnt vmcnt(2)
    v_lshlrev_b32 v20, 16, v20
    s_nop 0
    v_readfirstlane_b32 s83, v20     ; Dskip
    s_waitcnt lgkmcnt(0)
    s_barrier
    """)
    k.stamp(2)
    first = [True] * 8

    def rd_f(p, rr):
        return f'ds_read_b128 v[{FB+4*p}:{FB+3+4*p}], v2 offset:{3584-512*p+64*(1-rr)}'

    def rd_g(q, rr):
        return f'ds_read_b128 v[{FB+32+4*q}:{FB+35+4*q}], v3 offset:{512*q+64*(1-rr)}'

    def mf(p, q):
        i = p + q
        a = ACC + 4 * i
        c = '0' if first[i] else f'v[{a}:{a+3}]'
        first[i] = False
        k(f'v_mfma_f32_16x16x32_bf16 v[{a}:{a+3}], v[{FB+4*p}:{FB+3+4*p}], v[{FB+32+4*q}:{FB+35+4*q}], {c}')

    for m in range(8):
        k(rd_g(m, 0))
        k(rd_f(7 - m, 0))
    issued_after = 0
    for st in range(8):
        p = 7 - st
        k(f's_waitcnt lgkmcnt({min(15, 16-(2*st+2)+issued_after)})')
        for q in range(st + 1):
            mf(p, q)
        k(rd_f(p, 1))
        issued_after += 1
    for q in range(8):
        k(rd_g(q, 1))
    for q in range(8):
        k(f's_waitcnt lgkmcnt({7-q})')
        for p in range(7 - q, -1, -1):
            mf(p, q)
    k.stamp(3)
    k(f"""
    v_lshlrev_b32 v8, 4, v1          ; lane*16
    s_barrier
    """)
    for w in range(4):
        k(f"""
        s_cmp_eq_u32 s4, {w}
        s_cbranch_scc0 k2_red_{w}""")
        for i in range(8):
            o = i >> 1
            if o == w:
                continue
            src = (w - o - 1) % 4
            k(f'ds_write_b128 v8, v[{ACC+4*i}:{ACC+4*i+3}] offset:{(i*3+src)*1024}')
        for j in range(8):
            k(f'v_mov_b32 v{40+j}, v{ACC+8*w+j}')
        k(f'k2_red_{w}:')
    k(f'''
    s_mul_i32 s12, s4, 6144
    v_add_u32 v9, s12, v8
    v_and_b32 v21, 15, v1
    v_lshrrev_b32 v22, 4, v1
    v_lshlrev_b32 v23, 5, v21
    v_lshl_add_u32 v23, v22, 3, v23
    s_lshl_b32 s12, s4, 10
    v_add_u32 v10, s12, v23
    v_lshrrev_b32 v11, 1, v21
    v_lshlrev_b32 v11, 6, v11
    v_and_b32 v12, 1, v22
    v_lshl_add_u32 v11, v12, 5, v11
    v_and_b32 v12, 1, v21
    v_lshl_add_u32 v11, v12, 4, v11
    v_lshrrev_b32 v12, 1, v22
    v_lshl_add_u32 v11, v12, 3, v11
    s_waitcnt lgkmcnt(0)
    s_barrier
    ds_read_b64 v[12:13], v10 offset:{HOFF+480}
    ds_read_b64 v[14:15], v10 offset:{HOFF+480+512}
    ''')
    for j in range(6):
        k(f'ds_read_b128 v[{48+4*j}:{51+4*j}], v9 offset:{1024*j}')
    k(f'''
    v_mov_b32 v16, s83
    v_mov_b32 v17, s83
    v_mov_b32 v18, s82
    v_mov_b32 v19, s82
    s_waitcnt lgkmcnt(0) vmcnt(0)
    ''')
    for t in range(2):
        o = 40 + 4 * t
        for j in range(3):
            s = 48 + 12 * t + 4 * j
            k(f'''
            v_pk_add_f32 v[{o}:{o+1}], v[{o}:{o+1}], v[{s}:{s+1}]
            v_pk_add_f32 v[{o+2}:{o+3}], v[{o+2}:{o+3}], v[{s+2}:{s+3}]''')
        for hh in range(2):
            hv = 12 + 2 * t + hh
            xv = XR + 2 * t + hh
            y = o + 2 * hh
            k(f'''
            v_lshlrev_b32 v20, 16, v{hv}
            v_and_b32 v21, 0xffff0000, v{hv}
            v_pk_fma_f32 v[{y}:{y+1}], v[20:21], v[16:17], v[{y}:{y+1}]
            v_lshlrev_b32 v22, 16, v{xv}
            v_and_b32 v23, 0xffff0000, v{xv}
            v_pk_fma_f32 v[{y}:{y+1}], v[{y}:{y+1}], v[18:19], v[22:23]
            v_cvt_pk_bf16_f32 v{24+2*t+hh}, v{y}, v{y+1}
            ''')
        k(f'buffer_store_dwordx2 v[{24+2*t}:{25+2*t}], v11, s[76:79], s13 offen offset:{512*t}')
    k.stamp(4)
    k('s_waitcnt vmcnt(0)')
    k.stamp(5)
    k.stamp_flush(1)
    k('s_endpgm')


def tlb_touch(k):
    from layout import WS_END
    end = WS['DBG'][0]
    srd(k, 56, 'ws', end)
    srd(k, 60, 'out', 2048 * 1280)
    srd(k, 64, 'wsp', 2048 * 4096)
    k("""
    v_lshlrev_b32 v2, 16, v0
    buffer_load_dword v40, v2, s[60:63], 0 offen
    buffer_load_dword v41, v2, s[64:67], 0 offen
    """)
    n = (end + (1 << 24) - 1) >> 24
    for j in range(n):
        k(f"""s_mov_b32 s6, {j << 24}
        buffer_load_dword v{42+j}, v2, s[56:59], s6 offen""")


def make_k2():
    total = N_WP + N_MISC + N_CONV + N_WSF + int(__import__('os').environ.get('K2_NCT', 8))
    k = Kern('conv_kernel', total, 256, K2_LDS)
    k(f"""
    s_cmp_ge_u32 s2, {total}
    s_cbranch_scc1 k2_exit
    """)
    k.stamp_s = 88
    k.stamp_v = 100
    k.stamp(0)
    load_ptrs(k)
    k(f"""
    s_waitcnt lgkmcnt(0)
    s_cmp_ge_u32 s2, {B_MISC+N_MISC}
    s_cbranch_scc1 k2_code
    s_cmp_ge_u32 s2, {B_MISC}
    s_cbranch_scc1 k2_misc
    s_cmp_ge_u32 s2, {B_WSF}
    s_cbranch_scc1 k2_wsf
    s_cmp_ge_u32 s2, {B_WP}
    s_cbranch_scc1 k2_wp
    """)
    role_conv(k)
    k('k2_wp:')
    role_wp(k)
    k('k2_wsf:')
    role_wsf(k)
    k('k2_misc:')
    role_misc(k)
    k('k2_code:')
    code_touch(k, 'gemm_kernel', KG_CODE_BYTES, 'k2ct', tlb_touch if __import__('os').environ.get('TLBT', '0') == '1' else None)
    k('k2_exit:\ns_endpgm')
    return k
```

```python
import os
from asmlib import Kern
from layout import WS, XS
from gen_k1 import f32, load_ptrs, srd, srd_ws

SC = 'sc1'
SPIN_MAX = 100000


NS = 5
SLOT = 12288
PANEL = 65536
CONST = PANEL + 81920
SCR = CONST + 1024
KG_LDS = SCR + 1024
TAB = 98304
ZERO = TAB + 4 * 4096
CORR = ZERO + 1024
NK = 20
FK = int(os.environ.get('KG_FK', 4))
VB = [28, 44]
ACC2 = 60
ACC1 = 92
GRAM = 124
SUM = 132
ONES = 140
C0 = -2.0 * 0.7978845608028654 * 1.4426950408889634
C1 = C0 * 0.044715


def gelu4(k, regs, t0=162):
    T = [t0 + 2 * g for g in range(len(regs))]
    z = list(zip(regs, T))
    for x, t in z:
        k(f'v_pk_mul_f32 v[{t}:{t+1}], v[{x}:{x+1}], v[{x}:{x+1}]')
    for x, t in z:
        k(f'v_pk_fma_f32 v[{t}:{t+1}], v[{t}:{t+1}], s[72:73], v[176:177]')
    for x, t in z:
        k(f'v_pk_mul_f32 v[{t}:{t+1}], v[{t}:{t+1}], v[{x}:{x+1}]')
    for x, t in z:
        k(f'v_exp_f32 v{t}, v{t}\nv_exp_f32 v{t+1}, v{t+1}')
    for x, t in z:
        k(f'v_pk_add_f32 v[{t}:{t+1}], v[{t}:{t+1}], s[74:75]')
    for x, t in z:
        k(f'v_rcp_f32 v{t}, v{t}\nv_rcp_f32 v{t+1}, v{t+1}')
    for x, t in z:
        k(f'v_pk_mul_f32 v[{x}:{x+1}], v[{x}:{x+1}], v[{t}:{t+1}]')


def a_dma(st):
    return [f"""s_add_u32 m0, s10, {(st % NS)*SLOT}
    buffer_load_dwordx4 v12, s[60:63], s12 offen lds""",
            'buffer_load_dwordx4 v3, s[56:59], s11 offen offset:1024 lds',
            f"""buffer_load_dwordx4 v4, s[56:59], s11 offen offset:2048 lds
    s_add_u32 s11, s11, {32*XS}
    s_add_u32 s12, s12, {108*1024}"""]


def a_panel(kk):
    return f"""s_add_u32 m0, s15, {kk*1024}
    buffer_load_dwordx4 v12, s[60:63], s13 offen lds
    s_add_u32 s13, s13, {108*1024}"""


def a_frags(st):
    base = (st % NS) * SLOT
    L = []
    for a in range(2):
        x = 8 * st + 4 * a
        L.append(f'ds_read_b64_tr_b16 a[{x}:{x+1}], v{6+a} offset:{base}')
        L.append(f'ds_read_b64_tr_b16 a[{x+2}:{x+3}], v{6+a} offset:{base+1024}')
    B = VB[st & 1]
    for n in range(4):
        L.append(f'ds_read_b128 v[{B+4*n}:{B+4*n+3}], v12 offset:{base+3072*n}')
    return L


def flag_store(k, soff):
    k(f"""
    v_mov_b32 v15, 0
    v_mov_b32 v16, 1
    s_mov_b64 exec, 1
    buffer_store_dword v16, v15, s[84:87], s{soff} offen {SC}
    s_mov_b64 exec, -1
    """)


def phase_a(k):
    xo, xs = WS['X1T']
    srd(k, 56, 'ws', xs + 1024, xo - 1024)
    srd_ws(k, 60, 'WPF')
    srd_ws(k, 64, 'X1F')
    srd_ws(k, 76, 'CSP')
    srd_ws(k, 80, 'BIP')
    k(f"""
    s_lshl_b32 s9, s54, 2
    s_add_u32 s9, s9, s4
    s_mul_i32 s10, s4, 3072
    s_lshl_b32 s11, s54, 8
    s_lshr_b32 s5, s55, 1
    s_mul_i32 s5, s5, 7
    s_min_u32 s5, s5, 47             ; base
    s_and_b32 s6, s55, 1             ; type
    s_lshl_b32 s7, s6, 2
    s_add_u32 s70, s5, s7            ; z2base
    s_mul_i32 s7, s6, 3
    s_add_u32 s71, s5, s7            ; z1base
    s_sub_u32 s68, 3, s6             ; z2max
    s_add_u32 s69, s6, 2             ; z1max
    s_min_u32 s12, s4, s68
    s_add_u32 s12, s12, s70
    s_add_u32 s12, s12, 54
    s_lshl_b32 s12, s12, 10          ; z2 slot w
    s_min_u32 s13, s4, s69
    s_add_u32 s13, s13, s71
    s_lshl_b32 s13, s13, 10          ; z1 slot w
    s_mul_i32 s15, s4, 20480
    s_add_u32 s15, s15, {PANEL}
    s_and_b32 s3, s4, 1
    s_lshl_b32 s3, s3, 3
    v_lshlrev_b32 v16, 1, v14
    v_add_u32 v16, s3, v16
    v_xor_b32 v16, v16, v13
    v_lshlrev_b32 v16, 4, v16
    v_mul_u32_u24 v3, {XS}, v14
    v_add_u32 v3, v3, v16
    s_mul_i32 s3, s4, {8*XS}
    v_add_u32 v3, s3, v3
    v_add_u32 v4, {4*XS-1024}, v3
    """)
    issued = []

    def emit(l, tag):
        k(l)
        issued.append(tag)

    def wait_for(tags, extra=''):
        idx = [i for i, t in enumerate(issued) if t in tags]
        n = len(issued) - 1 - max(idx)
        k(f's_waitcnt vmcnt({n}) {extra}')

    for st in range(NS):
        for l in a_dma(st):
            emit(l, ('a', st))
    k(f"""
    v_bfe_u32 v17, v0, 4, 2
    v_min_u32 v18, s68, v17
    v_add_u32 v18, s70, v18
    v_add_u32 v18, 54, v18
    v_min_u32 v19, s69, v17
    v_add_u32 v19, s71, v19
    v_and_b32 v17, 64, v0
    v_cmp_eq_u32 vcc, 0, v17
    v_cndmask_b32 v17, v19, v18, vcc ; phi'
    v_lshrrev_b32 v18, 1, v17
    v_lshlrev_b32 v18, 5, v18
    v_and_b32 v17, 1, v17
    v_lshl_add_u32 v18, v17, 2, v18
    v_lshrrev_b32 v17, 2, v13
    v_lshl_add_u32 v18, v17, 3, v18
    v_and_b32 v17, 3, v13
    v_add_u32 v18, v18, v17
    v_lshlrev_b32 v18, 2, v18
    s_mov_b32 s14, {1728*4}
    s_mov_b32 s7, {2*1728*4}
    s_mov_b32 s3, {3*1728*4}
    s_cmp_ge_u32 s4, 2
    s_cbranch_scc1 kgA_cb
    buffer_load_dword v20, v18, s[76:79], 0 offen
    buffer_load_dword v21, v18, s[76:79], s14 offen
    buffer_load_dword v22, v18, s[76:79], s7 offen
    buffer_load_dword v23, v18, s[76:79], s3 offen
    s_branch kgA_cj
kgA_cb:
    buffer_load_dword v20, v18, s[80:83], 0 offen
    buffer_load_dword v21, v18, s[80:83], s14 offen
    buffer_load_dword v22, v18, s[80:83], s7 offen
    buffer_load_dword v23, v18, s[80:83], s3 offen
kgA_cj:
    s_lshl_b32 s3, s9, 11
    v_add_u32 v5, s3, v12
    v_lshrrev_b32 v218, 1, v5
    v_bfe_u32 v16, v1, 2, 2
    v_bfe_u32 v17, v1, 1, 1
    s_lshl_b32 s3, s4, 2
    v_add_u32 v17, s3, v17
    v_and_b32 v18, 1, v14
    v_lshlrev_b32 v18, 3, v18
    v_lshl_add_u32 v18, v16, 1, v18
    v_xor_b32 v17, v17, v18
    v_lshlrev_b32 v6, 4, v17
    v_lshl_add_u32 v6, v16, 8, v6
    v_mul_u32_u24 v18, 3072, v14
    v_add_u32 v6, v6, v18
    v_and_b32 v18, 1, v1
    v_lshl_add_u32 v6, v18, 3, v6
    v_add_u32 v6, 1024, v6
    v_xor_b32 v7, 32, v6
    s_mov_b32 s72, {f32(C1)}
    s_mov_b32 s73, {f32(C1)}
    s_mov_b32 s74, 1.0
    s_mov_b32 s75, 1.0
    v_mov_b32 v176, {f32(C0)}
    v_mov_b32 v177, {f32(C0)}
    """)
    issued += [('c', 0)] * 4
    for r in range(4):
        k(f'v_mov_b32 v{ONES+r}, 0x3f803f80')
    srd_ws(k, 76, 'STAT')
    srd_ws(k, 80, 'Z1F')
    srd_ws(k, 92, 'Z2F')
    srd_ws(k, 84, 'FLG')
    k.stamp(1)
    wait_for([('a', 0)])
    k('s_barrier')
    for l in a_frags(0):
        k(l)
    k.stamp(2)
    for kk in range(NK):
        fill = []
        if kk + 1 < NK:
            wait_for([('a', kk + 1)], 'lgkmcnt(0)')
            k('s_barrier')
            fill = [(None, l) for l in a_frags(kk + 1)]
            if kk + NS < NK:
                fill += [(('a', kk + NS), l) for l in a_dma(kk + NS)]
        else:
            k('s_waitcnt lgkmcnt(0)')
        fill.append((('p', 0), a_panel(kk)))
        B = VB[kk & 1]
        z = kk == 0
        M = []
        for a in range(2):
            x = f'a[{8*kk+4*a}:{8*kk+4*a+3}]'
            for n in range(4):
                acc = ACC2 + 4 * (4 * a + n)
                M.append(f'v_mfma_f32_16x16x32_bf16 v[{acc}:{acc+3}], {x}, v[{B+4*n}:{B+4*n+3}], ' + ('0' if z else f'v[{acc}:{acc+3}]'))
            g = GRAM + 4 * a
            s_ = SUM + 4 * a
            M.append(f'v_mfma_f32_16x16x32_bf16 v[{g}:{g+3}], {x}, {x}, ' + ('0' if z else f'v[{g}:{g+3}]'))
            M.append(f'v_mfma_f32_16x16x32_bf16 v[{s_}:{s_+3}], {x}, v[{ONES}:{ONES+3}], ' + ('0' if z else f'v[{s_}:{s_+3}]'))
        for n, mm in enumerate(M):
            k(mm)
            if n < len(fill):
                t, l = fill[n]
                k(l)
                if t:
                    issued.append(t)
        if kk == 6:
            k(f"""
            v_add_f32 v20, v20, v21
            v_add_f32 v22, v22, v23
            v_add_f32 v20, v20, v22
            v_lshlrev_b32 v16, 2, v0
            v_add_u32 v16, {CONST}, v16
            ds_write_b32 v16, v20
            """)
    k.stamp(3)
    k(f"""
    v_mul_u32_u24 v16, 80, v14
    v_lshlrev_b32 v17, 2, v13
    v_add_u32 v17, {CONST}, v17
    v_lshlrev_b32 v15, 4, v14
    v_add_u32 v15, {CONST}, v15
    """)
    for a in range(2):
        for r in range(4):
            g = GRAM + 4 * a + r
            k(f'ds_bpermute_b32 v{g}, v16, v{g} offset:{4*r}')
    for n in range(4):
        k(f"""
        ds_read_b32 v{144+4*n}, v17 offset:{64*n}
        ds_read_b32 v{146+4*n}, v17 offset:{512+64*n}""")
    k('s_waitcnt lgkmcnt(8)')
    for e in range(8):
        g = GRAM + e
        s_ = SUM + e
        t = 162 + (e & 3)
        k(f"""
        v_mul_f32 v{s_}, {f32(1.0/640)}, v{s_}
        v_mov_b32 v{t}, {f32(1e-5)}
        v_fmac_f32 v{t}, {f32(1.0/640)}, v{g}
        v_fma_f32 v{t}, -v{s_}, v{s_}, v{t}
        v_max_f32 v{t}, {f32(1e-5)}, v{t}
        v_rsq_f32 v{g}, v{t}
        v_mul_f32 v{s_}, -v{s_}, v{g}
        """)
    k(f"""
    v_and_b32 v18, 3, v13
    v_lshrrev_b32 v19, 2, v13
    v_lshl_add_u32 v19, v19, 4, v13
    v_lshlrev_b32 v19, 2, v19
    v_cmp_eq_u32 s[56:57], 1, v18
    v_cmp_eq_u32 s[58:59], 2, v18
    v_cmp_eq_u32 vcc, 3, v18
    """)
    for a in range(2):
        for (src, dst) in ((GRAM + 4 * a, 20 + 4 * a), (SUM + 4 * a, 22 + 4 * a)):
            k(f"""
            v_cndmask_b32 v{dst}, v{src}, v{src+1}, s[56:57]
            v_cndmask_b32 v{dst}, v{dst}, v{src+2}, s[58:59]
            v_cndmask_b32 v{dst}, v{dst}, v{src+3}, vcc
            ds_bpermute_b32 v{dst}, v19, v{dst}
            """)
    for n in range(4):
        k(f"""
        ds_read_b128 v[{180+8*n}:{183+8*n}], v15 offset:{256+64*n}
        ds_read_b128 v[{184+8*n}:{187+8*n}], v15 offset:{768+64*n}""")
    k('s_waitcnt lgkmcnt(12)')
    for n in range(4):
        k(f'v_mov_b32 v{145+4*n}, v{144+4*n}\nv_mov_b32 v{147+4*n}, v{146+4*n}')
    for e in range(16):
        k(f'v_mov_b32 v{28+e}, 0')
    k(f"""
    s_mul_i32 s3, s9, 54
    s_add_u32 s3, s3, s70
    """)
    for n in range(4):
        regs = []
        for a in range(2):
            acc = ACC2 + 4 * (4 * a + n)
            for p in range(2):
                x = acc + 2 * p
                g = GRAM + 4 * a + 2 * p
                s_ = SUM + 4 * a + 2 * p
                t = 162 + 2 * (2 * a + p)
                k(f"""
                v_pk_fma_f32 v[{t}:{t+1}], v[{144+4*n}:{145+4*n}], v[{s_}:{s_+1}], v[{146+4*n}:{147+4*n}]
                v_pk_fma_f32 v[{x}:{x+1}], v[{x}:{x+1}], v[{g}:{g+1}], v[{t}:{t+1}]""")
                regs.append(x)
        gelu4(k, regs)
        o = 44 + 4 * n
        for j, x in enumerate(regs):
            k(f'v_cvt_pk_bf16_f32 v{o+j}, v{x}, v{x+1}')
        k(f"""
        s_min_u32 s5, s68, {n}
        s_add_u32 s5, s5, s3
        s_lshl_b32 s5, s5, 10""")
        emit(f'buffer_store_dwordx4 v[{o}:{o+3}], v12, s[92:95], s5 offen {SC}', ('s', 0))
        lab = f'kgA_ns{n}'
        if n == 3:
            k(f's_cmp_eq_u32 s68, 3\ns_cbranch_scc0 {lab}')
        elif n < 2:
            k(f's_cmp_eq_u32 s55, 14\ns_cbranch_scc1 {lab}')
        for j, x in enumerate(regs):
            k(f"""
            v_pk_add_f32 v[{28+2*j}:{29+2*j}], v[{28+2*j}:{29+2*j}], v[{x}:{x+1}]
            v_pk_fma_f32 v[{36+2*j}:{37+2*j}], v[{x}:{x+1}], v[{x}:{x+1}], v[{36+2*j}:{37+2*j}]""")
        if n != 2:
            k(f'{lab}:')
    for n in (8, 4, 2, 1):
        for v in range(28, 44):
            k(f'v_add_f32_dpp v{v}, v{v}, v{v} row_ror:{n} row_mask:0xf bank_mask:0xf')
    for e in range(8):
        k(f'v_mov_b32 v{144+2*e}, v{28+e}\nv_mov_b32 v{145+2*e}, v{36+e}')
    k(f"""
    s_lshl_b32 s5, s4, 8
    s_add_u32 s5, s5, {SCR}
    v_lshlrev_b32 v15, 6, v14
    v_add_u32 v15, s5, v15
    v_lshl_add_u32 v16, v13, 2, v15
    v_cmp_eq_u32 vcc, 0, v13
    s_and_saveexec_b64 s[56:57], vcc
    ds_write_b128 v15, v[144:147]
    ds_write_b128 v15, v[148:151] offset:16
    ds_write_b128 v15, v[152:155] offset:32
    ds_write_b128 v15, v[156:159] offset:48
    s_mov_b64 exec, s[56:57]
    s_waitcnt lgkmcnt(0)
    ds_read_b32 v17, v16
    v_lshlrev_b32 v16, 2, v1
    s_lshl_b32 s5, s9, 8
    v_mov_b32 v21, v20
    v_mov_b32 v23, v22
    v_mov_b32 v25, v24
    v_mov_b32 v27, v26
    v_add_u32 v8, {PANEL}, v12
    v_add_u32 v9, {PANEL+40960}, v12
    s_waitcnt lgkmcnt(0)
    """)
    emit(f'buffer_atomic_add_f32 v17, v16, s[76:79], s5 offen {SC}', ('s', 0))
    k.stamp(4)
    b_setup(k)
    bpl = b_prefetch_list()
    wait_for([('p', 0)])
    k('s_barrier')

    def p_reads(kk):
        B = VB[kk & 1]
        return [f'ds_read_b128 v[{B+4*n}:{B+4*n+3}], v{8+(n>>1)} offset:{(n&1)*20480+1024*kk}' for n in range(4)]

    for l in p_reads(0):
        k(l)
    for kk in range(NK):
        nxt = p_reads(kk + 1) if kk + 1 < NK else []
        k('s_waitcnt lgkmcnt(0)')
        B = VB[kk & 1]
        m = 0
        for a in range(2):
            x = f'a[{8*kk+4*a}:{8*kk+4*a+3}]'
            for n in range(4):
                acc = ACC1 + 4 * (4 * a + n)
                k(f'v_mfma_f32_16x16x32_bf16 v[{acc}:{acc+3}], v[{B+4*n}:{B+4*n+3}], {x}, ' + ('0' if kk == 0 else f'v[{acc}:{acc+3}]'))
                if m < len(nxt):
                    k(nxt[m])
                if m in (5, 7) and bpl and kk >= FK + 1:
                    emit(bpl.pop(0), ('b', 0))
                m += 1
        if kk == FK:
            k(f"""
            s_lshl_b32 s3, s9, 4
            s_add_u32 s3, s3, s55
            s_lshl_b32 s3, s3, 2
            """)
            wait_for([('s', 0)])
            flag_store(k, 3)
            issued.append(('f', 0))
    assert not bpl
    k.stamp(5)
    k('s_barrier')
    k.stamp(6)
    for n in range(4):
        regs = []
        for a in range(2):
            acc = ACC1 + 4 * (4 * a + n)
            r = 20 + 4 * a
            for p in range(2):
                x = acc + 2 * p
                t = 162 + 2 * (2 * a + p)
                k(f"""
                v_pk_fma_f32 v[{t}:{t+1}], v[{180+8*n+2*p}:{181+8*n+2*p}], v[{r+2}:{r+3}], v[{184+8*n+2*p}:{185+8*n+2*p}]
                v_pk_fma_f32 v[{x}:{x+1}], v[{x}:{x+1}], v[{r}:{r+1}], v[{t}:{t+1}]""")
                regs.append(x)
        gelu4(k, regs)
        k(f"""
        s_min_u32 s3, s69, {n}
        s_add_u32 s3, s3, s71
        s_lshl_b32 s3, s3, 16
        """)
        for a in range(2):
            acc = ACC1 + 4 * (4 * a + n)
            k(f"""
            v_cvt_pk_bf16_f32 v{acc}, v{acc}, v{acc+1}
            v_cvt_pk_bf16_f32 v{acc+1}, v{acc+2}, v{acc+3}
            buffer_store_dwordx2 v[{acc}:{acc+1}], v218, s[80:83], s3 offen offset:{512*a} {SC}""")
    for kk in range(NK):
        k(f"""
        s_cmp_eq_u32 s55, {kk & 15}
        s_cbranch_scc0 kgA_nd{kk}
        s_mov_b32 s3, {kk*128*1024}
        buffer_store_dwordx4 a[{8*kk}:{8*kk+3}], v5, s[64:67], s3 offen {SC}
        buffer_store_dwordx4 a[{8*kk+4}:{8*kk+7}], v5, s[64:67], s3 offen offset:1024 {SC}
kgA_nd{kk}:
        """)
    k.stamp(7)
    k(f"""
    s_lshl_b32 s54, s9, 4
    s_add_u32 s54, s54, s55
    s_lshl_b32 s54, s54, 2
    s_add_u32 s54, s54, 8192
    """)
    k.stamp(8)


WSLOT = 8192
NWS = 3
DIST = int(os.environ.get('KG_DIST', 3))
NSET = DIST + 1
ZBL = [('v', 48 + 28 * n) for n in range(4)] + [('a', 128 + 28 * n) for n in range(4)]
ZB = ZBL[:NSET]
WB = [16, 32]


def zr(Z, b):
    return f'{Z[0]}[{Z[1]+4*b}:{Z[1]+4*b+3}]'


def wdma(P):
    slot = P % NWS
    L = []
    for m in range(8):
        pre = ''
        if m == 0:
            pre = f's_add_u32 m0, s96, {slot*32768}\n    s_add_u32 s14, s97, {128*P}\n    '
        if m == 4:
            pre = f's_add_u32 m0, s96, {slot*32768+4096}\n    '
        L.append(pre + f'buffer_load_dwordx4 v{240+m}, s[88:91], s14 offen offset:{1024*(m&3)} lds')
    return L


def b_setup(k):
    k(f"""
    s_sub_u32 s88, s38, 3072
    s_subb_u32 s89, s39, 0
    s_mov_b32 s90, {2048*4096+3072}
    s_mov_b32 s91, 0x00020000
    """)
    k(f"""
    v_lshrrev_b32 v16, 3, v1
    v_lshrrev_b32 v17, 2, v16
    v_lshlrev_b32 v17, 3, v17
    v_and_b32 v16, 3, v16
    v_add_u32 v17, v17, v16
    v_lshlrev_b32 v17, 12, v17
    v_and_b32 v16, 7, v1
    v_xor_b32 v16, v16, v14
    v_lshl_add_u32 v220, v16, 4, v17
    v_xor_b32 v221, 64, v220
    v_add_u32 v221, {16*4096}, v221
    s_lshl_b32 s96, s4, 13
    s_lshl_b32 s97, s98, 18
    s_lshl_b32 s3, s4, 10
    s_add_u32 s97, s97, s3
    """)
    for m in range(8):
        c = m >> 1
        rowc = 32 * (c >> 1) + 4 * (c & 1)
        k(f'v_add_u32 v{240+m}, {rowc*4096 + 3072 - 1024*(m&3)}, v{220+(m&1)}')


def b_prefetch_list():
    L = wdma(0) + wdma(1)
    for j in range(8 if os.environ.get('KG_TOUCH') else 0):
        L.append(f"""buffer_load_dwordx4 v[{224+4*(j&3)}:{227+4*(j&3)}], v219, s[88:91], s7 offen
    s_add_u32 s7, s7, 4096""")
    return L


def zloads(ks):
    Z = ZB[ks % NSET]
    L = []
    for b in range(7):
        v = 12 if b < 4 else 3
        L.append(f'buffer_load_dwordx4 {zr(Z, b)}, v{v}, s[60:63], s12 offen offset:{1024*(b%4)} {SC}')
    L[-1] += f'\ns_add_u32 s12, s12, {54*1024}'
    return L


def wreads(ks):
    slot = (ks >> 1) % NWS
    W = WB[ks & 1]
    va = (6 if slot < 2 else 222) + (ks & 1)
    return [f'ds_read_b128 v[{W+4*c}:{W+4*c+3}], v{va} offset:{(slot%2)*32768+2048*c}' for c in range(4)]


def poll_loop(k, body, tag, sleep=2):
    pre = int(os.environ.get('KG_PRE' + tag, 0))
    sleep = int(os.environ.get('KG_SLP' + tag, sleep))
    if pre:
        k(f's_sleep {pre}')
    k(f"""
    s_mov_b32 s3, 0
kg_poll{tag}:
    {body}
    s_cmp_eq_u64 vcc, 0
    s_cbranch_scc1 kg_rdy{tag}
    s_add_u32 s3, s3, 1
    s_cmp_lt_u32 s3, {SPIN_MAX}
    s_cbranch_scc0 kg_rdy{tag}
    s_sleep {sleep}
    s_branch kg_poll{tag}
kg_rdy{tag}:
    """)


RB = [160, 168]
MB = [176, 180]
ACCM = 112


def tabreads(ks):
    R = RB[ks & 1]
    M = MB[ks & 1]
    return [f'ds_read_b128 v[{R}:{R+3}], v4 offset:{128*ks}',
            f'ds_read_b128 v[{R+4}:{R+7}], v4 offset:{128*ks+16}',
            f'ds_read_b128 v[{M}:{M+3}], v5 offset:{64*ks}']


def scale_ops(ks):
    W = WB[ks & 1]
    R = RB[ks & 1]
    L = []
    for c in range(4):
        for d in range(4):
            w = W + 4 * c + d
            t = 184 + 2 * ((4 * c + d) % 4)
            L.append(f"""v_lshlrev_b32 v{t}, 16, v{w}
    v_and_b32 v{t+1}, 0xffff0000, v{w}
    v_pk_mul_f32 v[{t}:{t+1}], v[{t}:{t+1}], v[{R+2*d}:{R+2*d+1}]
    v_cvt_pk_bf16_f32 v{w}, v{t}, v{t+1}""")
    return L


def phase_b(k):
    srd_ws(k, 60, 'Z2F')
    srd_ws(k, 64, 'Z1F')
    srd_ws(k, 68, 'PF')
    srd(k, 72, 'bsp', 4096)
    k(f"""
    s_mul_i32 s8, s99, 7
    s_min_u32 s8, s8, 47             ; phi0
    v_add_u32 v3, 4096, v12
    v_lshrrev_b32 v8, 2, v13
    v_lshlrev_b32 v8, 3, v8
    v_and_b32 v9, 3, v13
    v_add_u32 v8, v8, v9             ; row_local
    v_lshrrev_b32 v11, 1, v13
    v_xor_b32 v11, v11, v14
    v_lshlrev_b32 v11, 4, v11
    v_lshl_add_u32 v6, v13, 7, v11
    v_add_u32 v6, s96, v6
    v_xor_b32 v7, 64, v6
    v_add_u32 v222, 65536, v6
    v_add_u32 v223, 65536, v7
    s_mul_i32 s12, s4, {16*54}
    s_add_u32 s12, s12, s8
    s_lshl_b32 s12, s12, 10
    s_lshl_b32 s9, s98, 2
    s_add_u32 s9, s9, s4             ; tau
    s_lshl_b32 s13, s9, 10
    v_add_u32 v10, s13, v12
    v_lshrrev_b32 v217, 1, v10
    s_lshr_b32 s13, s4, 1
    s_lshl_b32 s13, s13, 5
    s_and_b32 s15, s4, 1
    s_lshl_b32 s15, s15, 2
    s_add_u32 s13, s13, s15
    s_lshl_b32 s15, s98, 6
    s_add_u32 s13, s13, s15
    s_lshl_b32 s13, s13, 1
    v_lshlrev_b32 v9, 1, v8
    buffer_load_ushort v206, v9, s[72:75], s13 offen
    s_lshl_b32 s10, s4, 12
    s_add_u32 s10, s10, {TAB}
    v_lshlrev_b32 v4, 5, v14
    v_add_u32 v4, s10, v4
    v_lshlrev_b32 v5, 4, v14
    v_mov_b32 v16, {ZERO}
    s_add_u32 s5, s10, 2048
    v_mov_b32 v17, s5
    v_cmp_eq_u32 vcc, 0, v13
    v_cndmask_b32 v16, v16, v17, vcc
    v_add_u32 v17, 1024, v17
    v_cmp_eq_u32 vcc, 1, v13
    v_cndmask_b32 v16, v16, v17, vcc
    v_add_u32 v5, v5, v16
    v_mov_b32 v16, 0
    v_mov_b32 v17, 0
    v_mov_b32 v18, 0
    v_mov_b32 v19, 0
    v_add_u32 v15, {ZERO}, v12
    ds_write_b128 v15, v[16:19]
    s_lshl_b32 s5, s4, 10
    s_lshr_b32 s6, s9, 1
    s_lshl_b32 s6, s6, 6
    s_lshl_b32 s7, s99, 3
    s_add_u32 s6, s6, s7
    v_and_b32 v2, 1, v1
    v_lshlrev_b32 v2, 2, v2
    s_waitcnt lgkmcnt(0)
    """)
    k('s_add_u32 s11, s6, 8192')
    poll_loop(k, f"""buffer_load_dwordx4 v[48:51], v12, s[84:87], s5 offen {SC}
    s_waitcnt vmcnt(0)
    v_min_u32 v48, v48, v49
    v_min3_u32 v48, v48, v50, v51
    v_cmp_eq_u32 vcc, 0, v48""", 'B', 32)
    flag_store(k, 54)
    for l in wreads(0):
        k(l)
    k.stamp(9)
    issued = [('f', 0)]

    def emit(l, tag):
        k(l)
        issued.append(tag)

    k('s_lshl_b32 s5, s4, 12\nv_lshlrev_b32 v15, 6, v1')
    for n in range(4):
        emit(f'buffer_load_dwordx4 v[{132+4*n}:{135+4*n}], v15, s[76:79], s5 offen offset:{16*n} {SC}', ('s', 0))
    for ks in range(2):
        for l in zloads(ks):
            emit(l, ('z', ks))
    def wait_for(tags, extra=''):
        idx = [i for i, t in enumerate(issued) if t in tags]
        n = len(issued) - 1 - max(idx)
        k(f's_waitcnt vmcnt({n}) {extra}')

    wait_for([('s', 0)])
    for e in range(8):
        m = 132 + 2 * e
        k(f"""
        v_mul_f32 v{m}, {f32(1.0/864)}, v{m}
        v_mov_b32 v15, {f32(1e-5)}
        v_fmac_f32 v15, {f32(1.0/864)}, v{m+1}
        v_fma_f32 v15, -v{m}, v{m}, v15
        v_max_f32 v15, {f32(1e-5)}, v15
        v_rsq_f32 v{148+e}, v15
        """)
    for d in range(4):
        m0, m1 = 132 + 4 * d, 134 + 4 * d
        k(f"""
        v_cvt_pk_bf16_f32 v{156+d}, v{m0}, v{m1}
        v_lshlrev_b32 v{m0+1}, 16, v{156+d}
        v_and_b32 v{m1+1}, 0xffff0000, v{156+d}
        v_sub_f32 v{m0}, v{m0}, v{m0+1}
        v_sub_f32 v{m1}, v{m1}, v{m1+1}
        v_cvt_pk_bf16_f32 v{184+d}, v{m0}, v{m1}
        """)
    k(f"""
    v_lshlrev_b32 v15, 5, v1
    v_add_u32 v15, s10, v15
    ds_write_b128 v15, v[148:151]
    ds_write_b128 v15, v[152:155] offset:16
    v_add_u32 v15, s10, v12
    ds_write_b128 v15, v[156:159] offset:2048
    ds_write_b128 v15, v[184:187] offset:3072
    s_waitcnt lgkmcnt(0)
    """)
    for l in tabreads(0):
        k(l)
    k('s_waitcnt lgkmcnt(0)')
    for l in scale_ops(0):
        k(l)
    nz = 2
    for ks in range(16):
        Z = ZB[ks % NSET]
        W = WB[ks & 1]
        M = MB[ks & 1]
        need = [('z', ks)] if not os.environ.get('KG_NOZ') else [('z', min(ks, 3))]
        if ks + 1 < 16 and (ks + 1) >> 1 >= 2 and not os.environ.get('KG_NOW'):
            need.append(('w', (ks + 1) >> 1))
        wait_for(need, 'lgkmcnt(0)' if os.environ.get('KG_NOSCALE') else '')
        early = []
        if ks + 1 < 16:
            early += [(None, l) for l in wreads(ks + 1) + tabreads(ks + 1)]
        mem = []
        cnt2 = 0 if not os.environ.get('KG_NOZ') else 2 if ks > 1 else 0
        while nz <= min(ks + DIST, 15) and cnt2 < 2:
            mem += [(('z', nz), l) for l in zloads(nz)]
            nz += 1
            cnt2 += 1
        if ks % 2 == 0 and (ks >> 1) + 2 < 8 and not os.environ.get('KG_NOW'):
            P = (ks >> 1) + 2
            mem += [(('w', P), l) for l in wdma(P)]
        if ks == 11:
            mem.append((('zf', 0), f'buffer_load_dword v15, v2, s[84:87], s11 offen {SC}'))
        if ks == 13:
            wait_for([('zf', 0)])
            k("""
            v_cmp_eq_u32 vcc, 0, v15
            s_cmp_eq_u64 vcc, 0
            s_cbranch_scc1 kg_z1ok
            """)
            poll_loop(k, f"""buffer_load_dword v15, v2, s[84:87], s11 offen {SC}
    s_waitcnt vmcnt(0)
    v_cmp_eq_u32 vcc, 0, v15""", 'Z', 4)
            k('kg_z1ok:')
            for b in range(7):
                mem.append((('e', 0), f"""s_add_u32 s13, s8, {b}
    s_lshl_b32 s{76+b}, s13, 16
    buffer_load_dwordx2 v[{192+2*b}:{193+2*b}], v217, s[64:67], s{76+b} offen {SC}"""))
        sc = scale_ops(ks + 1) if (ks + 1 < 16 and not os.environ.get('KG_NOSCALE')) else []
        MF = []
        for c in range(4):
            for b in range(7):
                a = 4 * (7 * c + b)
                cc = '0' if ks == 0 else f'a[{a}:{a+3}]'
                MF.append(f'v_mfma_f32_16x16x32_bf16 a[{a}:{a+3}], {zr(Z, b)}, v[{W+4*c}:{W+4*c+3}], {cc}')
            a = ACCM + 4 * c
            cc = '0' if ks == 0 else f'a[{a}:{a+3}]'
            MF.append(f'v_mfma_f32_16x16x32_bf16 a[{a}:{a+3}], v[{M}:{M+3}], v[{W+4*c}:{W+4*c+3}], {cc}')
        mi = 0
        for n, mm in enumerate(MF):
            k(mm)
            if n < len(early):
                k(early[n][1])
            if mi < len(mem) and (n >= len(early) or len(mem) > 24):
                t, l = mem[mi]
                k(l)
                issued.append(t)
                mi += 1
            W0 = int(os.environ.get('KG_W0', 13))
            if n == W0 and sc:
                k('s_waitcnt lgkmcnt(0)')
                flat = [x for g in sc for x in g.split('\n')]
            if n > W0 and sc:
                rem = 31 - n + 1
                take = -(-len(flat) // rem)
                for x in flat[:take]:
                    k(x)
                flat = flat[take:]
        assert mi == len(mem), (ks, mi, len(mem))
    k.stamp(10)
    for c in range(4):
        k(f'v_accvgpr_read_b32 v{16+2*c}, a{ACCM+4*c}\nv_accvgpr_read_b32 v{17+2*c}, a{ACCM+4*c+1}')
    k(f"""
    s_lshl_b32 s5, s4, 8
    s_add_u32 s5, s5, {CORR}
    v_lshlrev_b32 v15, 2, v13
    v_add_u32 v11, s5, v15
    v_add_f32 v16, v16, v17
    v_add_f32 v18, v18, v19
    v_add_f32 v20, v20, v21
    v_add_f32 v22, v22, v23
    s_mov_b64 exec, 0xffff
    ds_write_b32 v11, v16
    ds_write_b32 v11, v18 offset:64
    ds_write_b32 v11, v20 offset:128
    ds_write_b32 v11, v22 offset:192
    s_mov_b64 exec, -1
    s_barrier
    """)
    for w in range(4):
        k(f"""
        s_cmp_eq_u32 s4, {w}
        s_cbranch_scc0 kgB_red_{w}""")
        for c in range(4):
            if c == w:
                continue
            src = (w - c - 1) % 4
            k(f'v_add_u32 v11, {(c*3+src)*7168}, v12')
            for b in range(7):
                a = 4 * (7 * c + b)
                k(f'ds_write_b128 v11, a[{a}:{a+3}] offset:{1024*b}')
        for n in range(28):
            k(f'v_accvgpr_read_b32 v{16+n}, a{28*w+n}')
        k(f'kgB_red_{w}:')
    k(f"""
    s_mul_i32 s14, s4, {3*7168}
    v_add_u32 v11, s14, v12
    s_lshl_b32 s5, s4, 6
    s_add_u32 s5, s5, {CORR}
    v_add_u32 v15, s5, v15
    s_waitcnt lgkmcnt(0)
    s_barrier
    ds_read_b32 v140, v15
    ds_read_b32 v141, v15 offset:256
    ds_read_b32 v142, v15 offset:512
    ds_read_b32 v143, v15 offset:768
    """)
    for b in range(3):
        for s in range(3):
            r = 48 + 12 * b + 4 * s
            k(f'ds_read_b128 v[{r}:{r+3}], v11 offset:{s*7168+1024*b}')
    k(f"""
    s_waitcnt lgkmcnt(9) vmcnt(0)
    v_lshlrev_b32 v206, 16, v206
    v_add_f32 v140, v140, v141
    v_add_f32 v142, v142, v143
    v_sub_f32 v206, v206, v140
    v_sub_f32 v206, v206, v142
    v_mov_b32 v207, v206
    """)
    for b in range(3, 7):
        for s in range(3):
            r = 48 + 12 * b + 4 * s
            k(f'ds_read_b128 v[{r}:{r+3}], v11 offset:{s*7168+1024*b}')
    for b in range(7):
        k(f's_waitcnt lgkmcnt({min(15, 18-3*b)})')
        o = 16 + 4 * b
        r = 48 + 12 * b
        for p in range(2):
            k(f"""
            v_pk_add_f32 v[{o+2*p}:{o+2*p+1}], v[{o+2*p}:{o+2*p+1}], v[{r+2*p}:{r+2*p+1}]
            v_pk_add_f32 v[{r+4+2*p}:{r+4+2*p+1}], v[{r+4+2*p}:{r+4+2*p+1}], v[{r+8+2*p}:{r+8+2*p+1}]
            v_pk_add_f32 v[{o+2*p}:{o+2*p+1}], v[{o+2*p}:{o+2*p+1}], v[206:207]
            v_lshlrev_b32 v{r}, 16, v{192+2*b+p}
            v_and_b32 v{r+1}, 0xffff0000, v{192+2*b+p}
            v_pk_add_f32 v[{o+2*p}:{o+2*p+1}], v[{o+2*p}:{o+2*p+1}], v[{r+4+2*p}:{r+4+2*p+1}]
            v_pk_mul_f32 v[{o+2*p}:{o+2*p+1}], v[{o+2*p}:{o+2*p+1}], v[{r}:{r+1}]
            v_cvt_pk_bf16_f32 v{192+2*b+p}, v{o+2*p}, v{o+2*p+1}
            """)
    k(f"""
    s_add_u32 s5, s8, 1
    s_lshr_b32 s5, s5, 1
    s_lshl_b32 s5, s5, 17
    s_add_u32 s6, s5, {1<<17}
    s_add_u32 s7, s5, {2<<17}
    s_and_b32 s13, s8, 1
    s_cmp_eq_u32 s13, 0
    s_cbranch_scc0 kgB_odd
    s_add_u32 s13, s5, {3<<17}
    buffer_store_dwordx4 v[192:195], v10, s[68:71], s5 offen {SC}
    buffer_store_dwordx4 v[196:199], v10, s[68:71], s6 offen {SC}
    buffer_store_dwordx4 v[200:203], v10, s[68:71], s7 offen {SC}
    buffer_store_dwordx2 v[204:205], v10, s[68:71], s13 offen {SC}
    s_branch kgB_st
kgB_odd:
    s_sub_u32 s13, s5, {1<<17}
    buffer_store_dwordx4 v[194:197], v10, s[68:71], s5 offen {SC}
    buffer_store_dwordx4 v[198:201], v10, s[68:71], s6 offen {SC}
    buffer_store_dwordx4 v[202:205], v10, s[68:71], s7 offen {SC}
    buffer_store_dwordx2 v[192:193], v10, s[68:71], s13 offen offset:8 {SC}
kgB_st:
    """)
    k(f"""
    s_lshl_b32 s3, s98, 3
    s_add_u32 s3, s3, s99
    s_lshl_b32 s3, s3, 2
    s_add_u32 s3, s3, s4
    s_lshl_b32 s3, s3, 2
    s_add_u32 s3, s3, 4096
    v_mov_b32 v15, 0
    v_mov_b32 v16, 1
    s_waitcnt vmcnt(0)
    s_mov_b64 exec, 1
    buffer_store_dword v16, v15, s[84:87], s3 offen {SC}
    s_mov_b64 exec, -1
    """)
    k.stamp(11)
    k('s_barrier')
    c_panel(k)


NPS = 8
PSET = [16 + 4 * n for n in range(NPS)]
WOS = [48, 68]
ACC3 = 88


def c_panel(k):
    srd_ws(k, 56, 'WOF')
    k(f"""
    s_mul_i32 s5, s4, 40
    s_mul_i32 s6, s99, 5
    s_add_u32 s5, s5, s6
    s_lshl_b32 s5, s5, 10            ; (w*40 + 5e) KB
    s_mul_i32 s6, s4, 5120
    """)
    for n in range(7):
        k(f's_add_u32 m0, s6, {n*4*5120}')
        for b in range(4):
            k(f'buffer_load_dwordx4 v12, s[56:59], s5 offen offset:{1024*b} lds')
        k(f"""s_add_u32 m0, s6, {n*4*5120+4096}
        buffer_load_dwordx4 v3, s[56:59], s5 offen lds
        s_add_u32 s5, s5, {4*40*1024}""")


def phase_c(k):
    srd_ws(k, 60, 'PF')
    srd_ws(k, 64, 'X1F')
    srd_ws(k, 68, 'MODF')
    srd(k, 72, 'out', 2048 * 1280)
    k(f"""
    s_mul_i32 s8, s99, 5             ; delta0
    v_mul_u32_u24 v4, 1280, v8
    v_lshl_add_u32 v4, v14, 4, v4
    v_lshlrev_b32 v5, 5, v14
    s_mov_b32 s12, 0
    s_lshr_b32 s14, s4, 1
    s_lshl_b32 s14, s14, 5
    s_and_b32 s15, s4, 1
    s_lshl_b32 s15, s15, 2
    s_add_u32 s14, s14, s15
    s_lshl_b32 s15, s98, 6
    s_add_u32 s14, s14, s15
    s_mul_i32 s13, s14, 1280
    v_add_u32 v6, 61440, v12
    v_add_u32 v7, 122880, v12
    """)
    for b in range(5):
        k(f"""
        s_add_u32 s14, s8, {b}
        s_lshr_b32 s15, s14, 1           ; dblk
        s_and_b32 s14, s14, 1            ; h
        s_lshl_b32 s5, s15, 17
        s_lshl_b32 s6, s14, 3
        s_add_u32 s{76+b}, s5, s6        ; x1f soffset
        s_lshl_b32 s5, s15, 6
        s_add_u32 s5, s5, s6
        s_add_u32 s{88+b}, s5, s13
        s_lshl_b32 s5, s5, 1
        s_add_u32 s5, s5, {5*640*4}
        buffer_load_dwordx4 v[{228+4*b}:{231+4*b}], v5, s[68:71], s5 offen
        """)
    k(f"""
    s_lshl_b32 s3, s98, 7
    s_lshl_b32 s5, s4, 2
    s_add_u32 s3, s3, s5
    s_add_u32 s3, s3, 4096
    v_add_u32 v2, s3, v12
    s_lshr_b32 s5, s8, 1
    s_add_u32 s5, s5, 8
    v_add_u32 v17, s5, v1
    v_and_b32 v17, 15, v17
    v_lshlrev_b32 v18, 2, v17
    s_lshr_b32 s5, s9, 1
    s_lshl_b32 s5, s5, 6
    s_add_u32 s5, s5, 8192
    v_add_u32 v18, s5, v18
    v_cmp_gt_u32 vcc, 8, v1
    v_cndmask_b32 v2, v18, v2, vcc
    s_mov_b64 exec, 0x7ff
    """)
    poll_loop(k, f"""buffer_load_dword v15, v2, s[84:87], 0 offen {SC}
    s_waitcnt vmcnt(0)
    v_cmp_eq_u32 vcc, 0, v15""", 'C', 2)
    k('s_mov_b64 exec, -1')
    k.stamp(12)
    issued = []

    def pload(be):
        P = PSET[be % NPS]
        k(f"""buffer_load_dwordx4 v[{P}:{P+3}], v10, s[60:63], s12 offen {SC}
        s_add_u32 s12, s12, {128*1024}""")
        issued.append(be)

    def wo_reads(be):
        W = WOS[be & 1]
        va = (12, 6, 7)[be // 12]
        return [f'ds_read_b128 v[{W+4*b}:{W+4*b+3}], v{va} offset:{(be % 12)*5120+1024*b}' for b in range(5)]

    for be in range(NPS - 1):
        pload(be)
    for b in range(5):
        k(f'buffer_load_dwordx2 v[{196+2*b}:{197+2*b}], v10, s[64:67], s{76+b} offen {SC}')
        issued.append(-1)
    k('s_barrier')
    for l in wo_reads(0):
        k(l)
    for be in range(27):
        P = PSET[be % NPS]
        W = WOS[be & 1]
        last = max(i for i, t in enumerate(issued) if t == be)
        k(f's_waitcnt vmcnt({len(issued) - 1 - last}) lgkmcnt(0)')
        nxt = wo_reads(be + 1) if be + 1 < 27 else []
        for b in range(5):
            a = ACC3 + 4 * b
            cc = '0' if be == 0 else f'v[{a}:{a+3}]'
            k(f'v_mfma_f32_16x16x32_bf16 v[{a}:{a+3}], v[{W+4*b}:{W+4*b+3}], v[{P}:{P+3}], {cc}')
            if b < len(nxt):
                k(nxt[b])
        if be + NPS - 1 < 27:
            pload(be + NPS - 1)
    k.stamp(13)
    k('s_waitcnt vmcnt(0)')
    for b in range(5):
        o = ACC3 + 4 * b
        for p in range(2):
            r = 16 + 4 * b + 2 * p
            k(f"""
            v_lshlrev_b32 v{r}, 16, v{196+2*b+p}
            v_and_b32 v{r+1}, 0xffff0000, v{196+2*b+p}
            v_pk_fma_f32 v[{o+2*p}:{o+2*p+1}], v[{o+2*p}:{o+2*p+1}], v[{228+4*b+2*p}:{229+4*b+2*p}], v[{r}:{r+1}]
            v_cvt_pk_bf16_f32 v{196+2*b+p}, v{o+2*p}, v{o+2*p+1}
            """)
        k(f'buffer_store_dwordx2 v[{196+2*b}:{197+2*b}], v4, s[72:75], s{88+b} offen')
    k.stamp(14)


def make_kg():
    k = Kern('gemm_kernel', 256, 256, KG_LDS)
    k('''
    s_cmp_ge_u32 s2, 256
    s_cbranch_scc1 kg_exit
    ''')
    k.stamp(0)
    load_ptrs(k)
    k(f'''
    s_and_b32 s3, s2, 7              ; xcd
    s_lshr_b32 s5, s2, 3             ; kx
    s_lshr_b32 s6, s3, 1             ; xh
    s_and_b32 s7, s3, 1              ; xl
    s_lshl_b32 s54, s6, 2
    s_and_b32 s8, s5, 3
    s_add_u32 s54, s54, s8
    s_lshl_b32 s55, s7, 3
    s_lshr_b32 s8, s5, 2
    s_add_u32 s55, s55, s8
    s_lshl_b32 s98, s6, 3
    s_and_b32 s8, s5, 7
    s_add_u32 s98, s98, s8
    s_lshl_b32 s99, s7, 2
    s_lshr_b32 s8, s5, 3
    s_add_u32 s99, s99, s8
    v_and_b32 v1, 63, v0
    v_lshrrev_b32 v15, 6, v0
    v_lshlrev_b32 v12, 4, v1
    v_and_b32 v13, 15, v1
    v_lshrrev_b32 v14, 4, v1
    v_readfirstlane_b32 s4, v15
    s_waitcnt lgkmcnt(0)
    ''')
    phase_a(k)
    phase_b(k)
    phase_c(k)
    if os.environ.get('STAMP'):
        k('s_waitcnt vmcnt(0)')
    k.stamp(15)
    k.stamp_flush(2)
    k('kg_exit:\ns_endpgm')
    return k
```
